```python
import torch

def _softmax(x, axis=-1):
    return torch.softmax(x, dim=axis)
def _gelu(x):
    return torch.nn.functional.gelu(x, approximate="tanh")
def _silu(x):
    return torch.nn.functional.silu(x)
def _sigmoid(x):
    return torch.sigmoid(x)
def _layernorm(x, axis=-1, eps=1e-5):
    m = x.mean(dim=axis, keepdim=True)
    v = x.var(dim=axis, keepdim=True, unbiased=False)
    return (x - m) / torch.sqrt(v + eps)
def _scatter_add(tgt, idx, src, axis=0):
    return tgt.clone().index_add_(axis, idx, src)
def _segment_sum(src, seg, n):
    out = torch.zeros((n,) + src.shape[1:], dtype=src.dtype)
    return out.index_add_(0, seg, src)
def _pad(x, pw):
    flat = tuple(v for pair in reversed(pw) for v in pair)
    return torch.nn.functional.pad(x, flat)

kernel_name = 'sequential_preLN__sliding_block_cached__geglu_ffn__decode'

def setup_inputs():

    _w = (lambda a: (lambda t: t.to(torch.bfloat16) if t.is_floating_point() else t)(torch.as_tensor(a)))
    def _A_setup():
        B, Sq, D = 1, 1, 576
        Hq, Hkv, Sk, Dh = 32, 16, 65536, 128
        assert Hq % Hkv == 0, (Hq, Hkv)
        return {
            "x": _w((lambda *s: torch.randn(*s, dtype=torch.bfloat16) * 0.05)(B, Sq, D)),
            "k_cache": _w((lambda *s: torch.randn(*s, dtype=torch.bfloat16) * 3.2)(B, Hkv, Sk, Dh)),
            "v_cache": _w((lambda *s: torch.randn(*s, dtype=torch.bfloat16) * 0.4)(B, Hkv, Sk, Dh)),
            "wq": _w((lambda *s: torch.randn(*s, dtype=torch.bfloat16) * 3.2)(D, Hq * Dh) * (D ** -0.5)),
            "wo": _w((lambda *s: torch.randn(*s, dtype=torch.bfloat16) * 0.4)(Hq * Dh, D) * ((Hq * Dh) ** -0.5)),
        }
    _A_in = _A_setup()

    def _B_setup():
        B, S, D, F = 1, 1, 576, 4608
        return {
            "x": _w((lambda *s: torch.randn(*s, dtype=torch.bfloat16) * 0.05)(B, S, D)),
            "w_gate": _w((lambda *s: torch.randn(*s, dtype=torch.bfloat16) * 0.05)(D, F)),
            "w_up": _w((lambda *s: torch.randn(*s, dtype=torch.bfloat16) * 0.05)(D, F)),
            "w_down": _w((lambda *s: torch.randn(*s, dtype=torch.bfloat16) * 0.05)(F, D)),
        }
    _B_in = _B_setup()

    return {
        "A_x": _A_in["x"],
        "A_k_cache": _A_in["k_cache"],
        "A_v_cache": _A_in["v_cache"],
        "A_wq": _A_in["wq"],
        "A_wo": _A_in["wo"],
        "B_x": _B_in["x"],
        "B_w_gate": _B_in["w_gate"],
        "B_w_up": _B_in["w_up"],
        "B_w_down": _B_in["w_down"],
    }

def reference(A_x, A_k_cache, A_v_cache, A_wq, A_wo, B_x, B_w_gate, B_w_up, B_w_down):
    def _A_ref(x, k_cache, v_cache, wq, wo):
        B, Sq, D = x.shape
        Hq, Dh = 32, 128
        Hkv, Sk = k_cache.shape[1], k_cache.shape[2]
        W = min(4096, max(256, Sk // 4))
        rep = Hq // Hkv
        q = (lambda x, *d: x.permute(*d))((x @ wq).reshape(B, Sq, Hq, Dh), 0, 2, 1, 3)
        k = (lambda x, n, axis: torch.repeat_interleave(x, n, dim=axis))(k_cache[:, :, Sk - W:, :], rep, axis=1)
        v = (lambda x, n, axis: torch.repeat_interleave(x, n, dim=axis))(v_cache[:, :, Sk - W:, :], rep, axis=1)
        scores = torch.einsum("bhqd,bhkd->bhqk", q, k) * (Dh ** -0.5)
        p = _softmax(scores, axis=-1)
        o = torch.einsum("bhqk,bhkd->bhqd", p, v)
        return (lambda x, *d: x.permute(*d))(o, 0, 2, 1, 3).reshape(B, Sq, Hq * Dh) @ wo

    def _B_ref(x, w_gate, w_up, w_down):
        return (_gelu(x @ w_gate) * (x @ w_up)) @ w_down

    x = A_x
    h = x + _A_ref(_layernorm(x, axis=-1), A_k_cache, A_v_cache, A_wq, A_wo)
    h2 = h + _B_ref(_layernorm(h, axis=-1), B_w_gate, B_w_up, B_w_down)
    return h2
```

```python
import re

TRANS = ("v_exp_f32","v_log_f32","v_rcp_f32","v_rsq_f32","v_sqrt_f32","v_sin_f32","v_cos_f32","v_rcp_iflag_f32")

def regs_of(tok):
    tok = tok.strip()
    neg = tok.lstrip('-')
    if neg.startswith('abs(') or neg.startswith('|'):
        neg = neg.replace('abs(','').replace(')','').replace('|','')
    m = re.fullmatch(r'([vsa])(\d+)', neg)
    if m: return (m.group(1), [int(m.group(2))])
    m = re.fullmatch(r'([vsa])\[(\d+):(\d+)\]', neg)
    if m: return (m.group(1), list(range(int(m.group(2)), int(m.group(3))+1)))
    if neg == 'vcc': return ('s', [106,107])
    if neg == 'vcc_lo': return ('s', [106])
    if neg == 'vcc_hi': return ('s', [107])
    if neg == 'exec': return ('s', [126,127])
    if neg == 'exec_lo': return ('s',[126])
    if neg == 'exec_hi': return ('s',[127])
    if neg == 'm0': return ('s',[124])
    return (None, [])

class Ins:
    __slots__=("text","op","vw","vr","sw","sr","valu","trans","dpp","perml","mfma","vmem","ds","salu","rdlane","store_wide","store_data","srcC","lanesel")

def parse(text):
    t = text.split(';')[0].strip()
    parts = t.split(None,1)
    op = parts[0]
    rest = parts[1] if len(parts)>1 else ''
    ops=[]; depth=0; cur=''
    for ch in rest:
        if ch=='[': depth+=1
        if ch==']': depth-=1
        if ch==',' and depth==0: ops.append(cur.strip()); cur=''
        else: cur+=ch
    if cur.strip(): ops.append(cur.strip())
    mods=''
    clean=[]
    for o in ops:
        f=o.split()
        clean.append(f[0]) if f else None
        if len(f)>1: mods+=' '+' '.join(f[1:])
    I=Ins(); I.text=text; I.op=op
    I.vw=set(); I.vr=set(); I.sw=set(); I.sr=set()
    I.valu=op.startswith('v_'); I.mfma=op.startswith('v_mfma')
    base=op.replace('_e32','').replace('_e64','').replace('_dpp','')
    I.trans=base in TRANS
    I.dpp=op.endswith('_dpp') or 'row_' in mods or 'quad_perm' in mods
    I.perml=op.startswith('v_permlane')
    I.vmem=op.startswith(('buffer_','global_','flat_','scratch_'))
    I.ds=op.startswith('ds_')
    I.salu=op.startswith('s_')
    I.rdlane=op.startswith(('v_readlane','v_readfirstlane'))
    I.store_wide=False; I.store_data=set(); I.srcC=set(); I.lanesel=set()
    def W(tok):
        k,r=regs_of(tok)
        if k=='v': I.vw.update(r)
        elif k=='s': I.sw.update(r)
    def R(tok):
        k,r=regs_of(tok)
        if k=='v': I.vr.update(r)
        elif k=='s': I.sr.update(r)
    c=clean
    if I.mfma:
        I.valu=False
        W(c[0]); R(c[1]); R(c[2]); R(c[3])
        k,r=regs_of(c[3])
        if k=='v': I.srcC=set(r)
    elif I.valu:
        if base.startswith('v_cmp'):
            W(c[0]); [R(x) for x in c[1:]]
        elif base in ('v_readlane_b32','v_readfirstlane_b32'):
            W(c[0]); R(c[1])
            if len(c)>2:
                R(c[2]); k,r=regs_of(c[2]);
                if k=='s': I.lanesel=set(r)
        elif base=='v_writelane_b32':
            W(c[0]); R(c[0]); [R(x) for x in c[1:]]
        elif base in ('v_add_co_u32','v_sub_co_u32','v_subrev_co_u32'):
            W(c[0]); W(c[1]); [R(x) for x in c[2:]]
        elif base in ('v_addc_co_u32','v_subb_co_u32'):
            W(c[0]); W(c[1]); [R(x) for x in c[2:]]
        elif I.perml:
            W(c[0]); W(c[1]); R(c[0]); R(c[1])
        elif base in ('v_fmac_f32','v_dot2c_f32_bf16','v_pk_fmac_f16'):
            W(c[0]); R(c[0]); [R(x) for x in c[1:]]
        elif base=='v_cndmask_b32':
            W(c[0]); [R(x) for x in c[1:]]
            if len(c)<4: I.sr.update([106,107])
        elif base=='v_nop':
            pass
        else:
            W(c[0]); [R(x) for x in c[1:]]
        if I.dpp:
            I.vr |= I.vw
    elif I.vmem:
        if '_load' in op:
            if 'lds' in mods.split():
                [R(x) for x in c]
            else:
                W(c[0]); [R(x) for x in c[1:]]
        elif '_store' in op:
            [R(x) for x in c]
            data = c[0] if op.startswith('buffer_') else c[1]
            k,r=regs_of(data); I.store_data=set(r)
            I.store_wide = ('x3' in op or 'x4' in op)
        elif '_atomic' in op:
            [R(x) for x in c]
            if 'sc0' in mods.split(): W(c[0])
        else:
            pass
    elif I.ds:
        if op.startswith('ds_read') or '_rtn' in op or op.startswith(('ds_bpermute','ds_swizzle','ds_permute')):
            W(c[0]); [R(x) for x in c[1:]]
        else:
            [R(x) for x in c]
    elif I.salu:
        noW=('s_cmp','s_cbranch','s_branch','s_waitcnt','s_nop','s_barrier','s_endpgm','s_setprio','s_sleep','s_bitcmp','s_setpc')
        if op.startswith(noW):
            [R(x) for x in c]
        else:
            if c: W(c[0])
            [R(x) for x in c[1:]]
            if 'saveexec' in op: I.sw.update([126,127]); I.sr.update([126,127])
    return I

class Emitter:
    def __init__(self):
        self.out=[]
        self.hist=[]
        self.age=[]
        self.vmq=[]
        self.lgq=[]
        self.nnop=0
    def raw(self,s): self.out.append(s)
    def comment(self,s): self.out.append("  ; "+s)
    def _advance(self,n):
        for e in self.age: e[1]+=n
        self.age=[e for e in self.age if e[1]<=20]
    def _need(self,I):
        need=0
        for P,age in self.age:
            req=0
            if P.valu:
                if P.vw & I.vr:
                    if I.dpp and I.valu: req=max(req,2)
                    if I.perml: req=max(req,2)
                    if I.rdlane: req=max(req,1)
                    if I.mfma: req=max(req,2)
                    if P.trans and I.valu and not I.trans: req=max(req,1)
                    if P.trans and (I.mfma): req=max(req,2)
                if P.vw & I.vw and I.perml: req=max(req,2)
                if P.sw & I.sr:
                    if I.valu: req=max(req,2)
                    if I.vmem: req=max(req,5)
                    if I.lanesel & P.sw: req=max(req,4)
                if (P.sw & {126,127}) and I.dpp: req=max(req,5)
            if P.mfma:
                if I.mfma:
                    if P.vw & I.vr:
                        ab = (I.vr - I.srcC)
                        if P.vw & ab: req=max(req,8)
                        if P.vw & I.srcC:
                            if I.srcC==P.vw: req=max(req,0)
                            else: req=max(req,6)
                    if P.vw & I.vw and not (I.vw==P.vw): req=max(req,6)
                else:
                    if (I.valu or I.vmem or I.ds):
                        if P.vw & (I.vr|I.vw): req=max(req,8)
                    if I.valu and (P.srcC & I.vw): req=max(req,3)
            if P.vmem and P.store_wide:
                if P.store_data & I.vw:
                    req=max(req,2 if I.valu or I.mfma else 1)
            need=max(need,req-age)
        return need
    def I(self,text):
        for line in text.split('\n'):
            line=line.strip()
            if not line: continue
            self._one(line)
    def _one(self,text):
        I=parse(text)
        if I.op=='s_nop':
            n=int(text.split()[1])+1
            self.out.append("  "+text); self._advance(n); return
        need=self._need(I)
        while need>0:
            k=min(need,16)
            self.out.append(f"  s_nop {k-1}"); self._advance(k); need-=k; self.nnop+=1
        self.out.append("  "+text)
        self._advance(1)
        if I.valu or I.mfma or (I.vmem and I.store_wide):
            self.age.append([I,0])
    def settle(self, full=True):
        need=0
        for P,age in self.age:
            if P.mfma: need=max(need,8-age)
            elif P.valu:
                r=2
                if P.sw: r=5
                need=max(need,r-age)
            elif P.vmem: need=max(need,2-age)
        need-=1
        while need>0:
            k=min(need,16)
            self.out.append(f"  s_nop {k-1}"); self._advance(k); need-=k
    def label(self,name):
        self.out.append(f"{name}:")
    def branch(self,text):
        self.settle()
        self.out.append("  "+text); self._advance(1)
    def vm(self,text,tag=None):
        self.I(text); self.vmq.append(tag)
    def vm_wait(self,tag):
        if tag not in self.vmq: return
        idx=len(self.vmq)-1-self.vmq[::-1].index(tag)
        n=len(self.vmq)-1-idx
        assert n<=63
        self.I(f"s_waitcnt vmcnt({n})")
        self.vmq=self.vmq[idx+1:]
    def vm_wait_n(self,n):
        if len(self.vmq)>n:
            self.I(f"s_waitcnt vmcnt({n})")
            self.vmq=self.vmq[len(self.vmq)-n:] if n>0 else []
    def vm_all(self):
        self.I("s_waitcnt vmcnt(0)"); self.vmq=[]
    def lg(self,text,tag=None):
        self.I(text); self.lgq.append(tag)
    def lg_wait(self,tag):
        if tag not in self.lgq: return
        idx=len(self.lgq)-1-self.lgq[::-1].index(tag)
        n=len(self.lgq)-1-idx
        assert n<=15
        self.I(f"s_waitcnt lgkmcnt({n})")
        self.lgq=self.lgq[idx+1:]
    def lg_all(self):
        self.I("s_waitcnt lgkmcnt(0)"); self.lgq=[]
    def text(self): return "\n".join(self.out)+"\n"
```

```python
import sys, os
sys.path.insert(0, os.path.dirname(os.path.abspath(__file__)))
from emit import Emitter

NAME = "sequential_preLN__sliding_block_cached__geglu_ffn__decode_kernel"

class Opt:
    diag = False
    win = 6
    igo = 8
    nt = "nt"
    slowres = 3
    budget = 200000
    prefetch = True
O = Opt()

H1, H15, H3B, H2, H3A, H4 = 0xE8000, 0x10000, 0x14000, 0x20000, 0x60000, 0x84000
FL, EPOCH = 0xD8000, 0xE0000
TAGM = 0x3ff
F_TAG, F_Q, F_FAC, CNT_O, F_GOE, F_GOL, F_X, CNT_GU = 0, 4, 8, 12, 16, 20, 24, 28
L_TAG = 32
L_LN1, L_Q, L_FAC, L_OP, L_XLN2, L_GUP = 0x100, 0x600, 0x800, 0x900, 0x1900, 0x1E00
LDS_BYTES = 0x1E00 + 64*48

sX, sK, sV, sWQ, sWO, sBX, sWG, sWU, sWD, sOUT, sDBG, sWS = 4, 6, 8, 10, 12, 14, 16, 18, 20, 22, 24, 26
sJ, sS, sBUD = 28, 29, 30
sT0, sT1, sT2, sT3 = 48, 49, 50, 51
MARK = -1
LOG2E = 0x3fb8aa3b
e = Emitter()
I = e.I
uid = [0]
def L(p):
    uid[0] += 1
    return f"L_{p}_{uid[0]}"

def sp(r): return f"s[{r}:{r+1}]"
def vr(r, n=4): return f"v[{r}:{r+n-1}]"

def add64(d, b, off):
    I(f"s_add_u32 s{d}, s{b}, {off}")
    I(f"s_addc_u32 s{d+1}, s{b+1}, 0")

def srd(d, base, nrec):
    if d != base: I(f"s_mov_b32 s{d}, s{base}")
    I(f"s_and_b32 s{d+1}, s{base+1}, 0xffff")
    I(f"s_mov_b32 s{d+2}, {nrec}")
    I(f"s_mov_b32 s{d+3}, 0x20000")

nst = [0]
def stamp(k):
    if O.diag:
        I(f"s_memrealtime s[{64+2*k}:{65+2*k}]")

def stamps_out(role, n):
    if not O.diag: return
    I("s_waitcnt lgkmcnt(0)")
    I("s_mov_b64 exec, 1")
    add64(62, sWS, "0x20000000")
    I(f"s_add_u32 s61, s2, {role*256}")
    I("s_lshl_b32 s61, s61, 6")
    add64(62, 62, "s61")
    I("v_mov_b32 v2, 0")
    for k in range(n):
        I(f"v_mov_b32 v4, s{64+2*k}\nv_mov_b32 v5, s{65+2*k}")
        I(f"global_store_dwordx2 v2, v[4:5], s[62:63] offset:{8*k}")
        I("s_nop 1")
    I("s_mov_b64 exec, -1")

def budget(done):
    I(f"s_cmp_eq_u32 s{sBUD}, 0")
    e.raw(f"  s_cbranch_scc1 {done}"); e._advance(1)
    I(f"s_sub_u32 s{sBUD}, s{sBUD}, 1")

def lds_spin(addr, val, vt=2, va=3, cmp="ge"):
    lp, done = L("spin"), L("spun")
    I(f"v_mov_b32 v{va}, {addr}")
    e.settle()
    e.label(lp)
    I(f"ds_read_b32 v{vt}, v{va}")
    budget(done)
    I("s_waitcnt lgkmcnt(0)")
    I(f"v_readfirstlane_b32 s{sT3}, v{vt}")
    I(f"s_cmp_ge_u32 s{sT3}, {val}")
    e.raw(f"  s_cbranch_scc0 {lp}"); e._advance(1)
    e.label(done)
    I("s_waitcnt lgkmcnt(0)")
    e.lgq = []

def lds_set(addr, val=1, vt=2, va=3):
    I(f"v_mov_b32 v{va}, {addr}\nv_mov_b32 v{vt}, {val}")
    I(f"ds_write_b32 v{va}, v{vt}")

def poll(loads, regs, vt):
    lp, done = L("poll"), L("polled")
    e.vm_all() if e.vmq else None
    e.settle()
    e.label(lp)
    for t in loads: I(t)
    budget(done)
    I("s_waitcnt vmcnt(0)")
    r = list(regs)
    I(f"v_max3_u32 v{vt}, v{r[0]}, v{r[1]}, v{r[2]}")
    r = r[3:]
    while len(r) >= 2:
        I(f"v_max3_u32 v{vt}, v{vt}, v{r[0]}, v{r[1]}"); r = r[2:]
    if r: I(f"v_max_u32 v{vt}, v{vt}, v{r[0]}")
    I(f"v_cmp_eq_u32 vcc, -1, v{vt}")
    e.raw(f"  s_cbranch_vccnz {lp}"); e._advance(1)
    e.label(done)
    I("s_waitcnt vmcnt(0)")
    e.vmq = []

def poll_tag(loads, regs, vt, vtag):
    lp, done = L("tpoll"), L("tpolled")
    e.settle()
    e.label(lp)
    for t in loads: I(t)
    budget(done)
    I("s_waitcnt vmcnt(0)")
    r = list(regs)
    I(f"v_xor_b32 v{vt}, v{r[0]}, v{vtag}")
    for x in r[1:]:
        I(f"v_bitop3_b32 v{vt}, v{vt}, v{x}, v{vtag} bitop3:0xf6")
    I(f"v_and_b32 v{vt}, {TAGM:#x}, v{vt}")
    I(f"v_cmp_ne_u32 vcc, 0, v{vt}")
    e.raw(f"  s_cbranch_vccnz {lp}"); e._advance(1)
    e.label(done)
    I("s_waitcnt vmcnt(0)")
    e.vmq = []
    for x in r: I(f"v_and_b32 v{x}, {(~TAGM) & 0xffffffff:#x}, v{x}")

def tag4(r, vtag):
    I(f"s_movk_i32 s{sT3}, {TAGM:#x}")
    for k in range(4): I(f"v_bfi_b32 v{r+k}, s{sT3}, v{vtag}, v{r+k}")

def rows_allreduce(op, vs):
    for k in (8, 4, 2, 1):
        for v in vs:
            I(f"v_{op}_f32_dpp v{v}, v{v}, v{v} row_ror:{k} row_mask:0xf bank_mask:0xf")

def cross_allreduce(op, vs, ts):
    for sw in ("v_permlane16_swap_b32", "v_permlane32_swap_b32"):
        for v, t in zip(vs, ts): I(f"v_mov_b32 v{t}, v{v}")
        for v, t in zip(vs, ts): I(f"{sw} v{v}, v{t}")
        for v, t in zip(vs, ts): I(f"v_{op}_f32 v{v}, v{v}, v{t}")

def allreduce(op, vs, ts):
    rows_allreduce(op, vs); cross_allreduce(op, vs, ts)

def rscatter4(r):
    I(f"v_permlane32_swap_b32 v{r[0]}, v{r[2]}")
    I(f"v_permlane32_swap_b32 v{r[1]}, v{r[3]}")
    I(f"v_add_f32 v{r[0]}, v{r[0]}, v{r[2]}")
    I(f"v_add_f32 v{r[1]}, v{r[1]}, v{r[3]}")
    I(f"v_permlane16_swap_b32 v{r[0]}, v{r[1]}")
    I(f"v_add_f32 v{r[0]}, v{r[0]}, v{r[1]}")

def rne1(v, t):
    I(f"v_cvt_pk_bf16_f32 v{t}, v{v}, v{v}")
    I(f"v_lshlrev_b32 v{v}, 16, v{t}")

def rne2(a, b, t):
    I(f"v_cvt_pk_bf16_f32 v{t}, v{a}, v{b}")
    I(f"v_lshlrev_b32 v{a}, 16, v{t}")
    I(f"v_and_b32 v{b}, 0xffff0000, v{t}")

SEL = 4
def make_sel(t):
    m, b, h, c = t, t+1, t+2, t+3
    I(f"v_and_b32 v{m}, 15, v0")
    I(f"v_lshrrev_b32 v{b}, 3, v{m}")
    I(f"v_mul_u32_u24 v{b}, 0x0202, v{b}")
    I(f"v_add_u32 v{b}, 0x0100, v{b}")
    I(f"v_lshlrev_b32 v{h}, 16, v{b}")
    I(f"v_or_b32 v{h}, 0x0c0c, v{h}")
    I(f"v_or_b32 v{b}, 0x0c0c0000, v{b}")
    I(f"v_and_b32 v{c}, 1, v{m}")
    I(f"v_cmp_eq_u32 vcc, 1, v{c}")
    I(f"v_cndmask_b32 v{b}, v{b}, v{h}, vcc")
    I(f"v_bfe_u32 v{m}, v{m}, 1, 2")
    I(f"v_mov_b32 v{c}, 0x0c0c0c0c")
    for d in range(4):
        I(f"v_cmp_eq_u32 vcc, {d}, v{m}")
        I(f"v_cndmask_b32 v{SEL+d}, v{c}, v{b}, vcc")

def build_a(a, src):
    for d in range(4):
        I(f"v_perm_b32 v{a+d}, v{src}, v{src}, v{SEL+d}")

def mfma(acc, a, b, first=False):
    c = "0" if first else vr(acc)
    I(f"v_mfma_f32_16x16x32_bf16 {vr(acc)}, {vr(a)}, {vr(b)}, {c}")

def layernorm(f, nA, nB, maskB, t, pairs_out):
    s, u, mb, rs = t, t+1, t+2, t+3
    I(f"v_add_f32 v{s}, v{f[0]}, v{f[1]}")
    for x in f[2:]: I(f"v_add_f32 v{s}, v{s}, v{x}")
    allreduce("add", [s], [u])
    I(f"v_mul_f32 v{s}, 0x3ae38e39, v{s}")
    I(f"v_mov_b32 v{mb}, v{s}")
    rne1(mb, u)
    I(f"v_sub_f32 v{u}, v{f[0]}, v{s}")
    I(f"v_mul_f32 v{rs}, v{u}, v{u}")
    for x in f[1:nA]:
        I(f"v_sub_f32 v{u}, v{x}, v{s}")
        I(f"v_fmac_f32 v{rs}, v{u}, v{u}")
    I(f"s_mov_b64 exec, {maskB}")
    for x in f[nA:]:
        I(f"v_sub_f32 v{u}, v{x}, v{s}")
        I(f"v_fmac_f32 v{rs}, v{u}, v{u}")
    I("s_mov_b64 exec, -1")
    allreduce("add", [rs], [u])
    I(f"v_mul_f32 v{rs}, 0x3ae38e39, v{rs}")
    rne1(rs, u)
    I(f"v_add_f32 v{rs}, 0x3727c5ac, v{rs}")
    rne1(rs, u)
    I(f"v_sqrt_f32 v{rs}, v{rs}")
    rne1(rs, u)
    I(f"v_rcp_f32 v{rs}, v{rs}")
    for k in range(0, len(f), 2):
        a, b = f[k], f[k+1]
        I(f"v_sub_f32 v{a}, v{a}, v{mb}\nv_sub_f32 v{b}, v{b}, v{mb}")
        rne2(a, b, u)
        I(f"v_mul_f32 v{a}, v{a}, v{rs}\nv_mul_f32 v{b}, v{b}, v{rs}")
        I(f"v_cvt_pk_bf16_f32 v{pairs_out[k//2]}, v{a}, v{b}")

def prologue():
    e.raw(f".globl {NAME}\n.p2align 8\n.type {NAME},@function\n{NAME}:")
    I("s_cmp_ge_u32 s2, 256")
    I("s_cbranch_scc1 L_end")
    I("s_load_dwordx16 s[4:19], s[0:1], 0")
    I("s_load_dwordx8 s[20:27], s[0:1], 64")
    if O.diag:
        for k in range(66, 88): I(f"s_mov_b32 s{k}, 0")
    stamp(0)
    I("v_lshrrev_b32 v1, 6, v0")
    I("v_and_b32 v0, 63, v0")
    I("v_readfirstlane_b32 s3, v1")
    I("v_lshlrev_b32 v2, 2, v0\nv_mov_b32 v3, 0")
    I("ds_write_b32 v2, v3")
    I("s_and_b32 s28, s2, 7\ns_lshl_b32 s28, s28, 1\ns_bfe_u32 s29, s2, 0x10003\ns_add_u32 s28, s28, s29")
    I("s_lshr_b32 s29, s2, 4")
    I(f"s_mov_b32 s{sBUD}, {O.budget}")
    I("s_waitcnt lgkmcnt(0)")
    I("s_cmp_eq_u32 s3, 0\ns_cbranch_scc1 L_T0")
    I("s_barrier")
    I("s_cmp_eq_u32 s3, 1\ns_cbranch_scc1 L_C")
    I("s_cmp_ge_u32 s3, 6\ns_cbranch_scc1 L_T")

def role_A():
    KB, VB = 40, 104
    def KR(t, ee, l): return KB + 4*(4*t + 2*ee + l)
    def VR(i): return VB + 4*i
    QA, S0, S1, P = 8, 16, 17, 18
    ACC = 28
    I("s_setprio 2")
    I("s_sub_u32 s3, s3, 2")
    I("v_bfe_u32 v8, v0, 1, 3\nv_lshlrev_b32 v8, 8, v8")
    I("v_lshrrev_b32 v9, 4, v0")
    I("v_and_b32 v10, 1, v0")
    I("v_lshl_add_u32 v11, v9, 1, v10\nv_lshl_add_u32 v1, v11, 4, v8")
    I("v_xor_b32 v10, 1, v10\nv_lshl_add_u32 v11, v9, 1, v10\nv_lshl_add_u32 v2, v11, 4, v8")
    I("v_and_b32 v10, 15, v0\nv_lshlrev_b32 v10, 4, v10\nv_lshl_add_u32 v3, v9, 12, v10")
    I("s_lshl_b32 s48, s28, 24\ns_lshl_b32 s49, s29, 16\ns_add_u32 s48, s48, s49\ns_lshl_b32 s49, s3, 14\ns_add_u32 s48, s48, s49")
    I(f"s_add_u32 s48, s48, {61440*256}")
    I("s_movk_i32 s40, 0x1000\ns_movk_i32 s41, 0x2000\ns_movk_i32 s42, 0x3000")
    add64(32, sK, "s48"); srd(32, 32, 16384)
    add64(36, sV, "s48"); srd(36, 36, 16384)
    seq = [("K", k) for k in range(16)] + [("V", i) for i in range(16)]
    def issue(n):
        kind, k = seq[n]
        if kind == "K":
            t, ee, l = k >> 2, (k >> 1) & 1, k & 1
            so = "0" if t == 0 else f"s{39+t}"
            e.vm(f"buffer_load_dwordx4 {vr(KR(t,ee,l))}, v{1+ee}, s[32:35], {so} offen offset:{ee*2048+l*128} {O.nt}", ("K", k))
        else:
            e.vm(f"buffer_load_dwordx4 {vr(VR(k))}, v3, s[36:39], 0 offen offset:{256*(8*(k&1)+(k>>1))} {O.nt}", ("V", k))
    for n in range(O.win): issue(n)
    stamp(1)
    make_sel(20)
    nxt = O.win
    while nxt < 16 + O.win:
        e.vm_wait_n(O.win - 1); issue(nxt); nxt += 1
    e.vm_wait(("K", 15))
    stamp(2)
    lds_spin(F_Q, 1, 20, 21)
    stamp(3)
    I("v_and_b32 v20, 1, v0\nv_lshlrev_b32 v20, 8, v20")
    I("v_bfe_u32 v21, v0, 1, 1")
    I("v_lshrrev_b32 v22, 4, v0\nv_lshl_add_u32 v21, v22, 1, v21")
    I(f"v_lshl_add_u32 v20, v21, 4, v20")
    I("s_mov_b32 s46, 0xaaaaaaaa\ns_mov_b32 s47, 0xaaaaaaaa")
    e.lg(f"ds_read_b128 {vr(QA)}, v20 offset:{L_Q}", "qa0")
    e.lg(f"ds_read_b128 {vr(QA+4)}, v20 offset:{L_Q+128}", "qa1")
    e.lg_wait("qa1")
    DA = VR(12)
    extra = [16+6, 16+7, 16+8, 16+9]
    for t in range(4):
        d0, d1 = DA + 8*(t & 1), DA + 8*(t & 1) + 4
        for ee, d in ((0, d0), (1, d1)):
            mfma(d, QA, KR(t, ee, 0), first=True)
            mfma(d, QA+4, KR(t, ee, 1))
        if nxt in extra: issue(nxt); nxt += 1
        if t >= 1: merge_tile(t-1, DA, S0)
    merge_tile(3, DA, S0)
    rne2(S0, S1, 20)
    I(f"v_mul_f32 v{S0}, 0x3db504f3, v{S0}\nv_mul_f32 v{S1}, 0x3db504f3, v{S1}")
    rne2(S0, S1, 20)
    M0, L0, M1, L1 = 24, 25, 26, 27
    I(f"v_mov_b32 v{M0}, v{S0}\nv_mov_b32 v{M1}, v{S1}")
    allreduce("max", [M0, M1], [20, 21])
    I(f"v_sub_f32 v{S0}, v{S0}, v{M0}\nv_sub_f32 v{S1}, v{S1}, v{M1}")
    I(f"v_mul_f32 v{S0}, {LOG2E:#x}, v{S0}\nv_mul_f32 v{S1}, {LOG2E:#x}, v{S1}")
    I(f"v_exp_f32 v{S0}, v{S0}\nv_exp_f32 v{S1}, v{S1}")
    I(f"v_cvt_pk_bf16_f32 v{P}, v{S0}, v{S1}")
    I(f"v_mov_b32 v{L0}, v{S0}\nv_mov_b32 v{L1}, v{S1}")
    lds_set(F_GOE, 1, 20, 21)
    allreduce("add", [L0, L1], [20, 21])
    I("s_lshl_b32 s48, s28, 10\ns_lshl_b32 s49, s29, 6\ns_add_u32 s48, s48, s49\ns_lshl_b32 s49, s3, 4\ns_add_u32 s48, s48, s49")
    I(f"s_add_u32 s48, s48, {H15}")
    add64(44, sWS, "s48")
    I(f"v_mov_b32 v20, {L_TAG}")
    e.lg("ds_read_b32 v21, v20", "tag"); e.lg_wait("tag")
    I("v_and_b32 v21, 0xffff, v21")
    I(f"v_or_b32 v{M0}, v{M0}, v21\nv_or_b32 v{M1}, v{M1}, v21")
    I("v_mov_b32 v20, 0")
    I("s_mov_b64 exec, 1")
    e.vm(f"global_store_dwordx4 v20, {vr(M0)}, s[44:45] sc1", "ml")
    I("s_mov_b64 exec, -1")
    stamp(4)
    for i in range(16):
        e.vm_wait(("V", i))
        a = QA + 4*(i & 1)
        I(f"v_mov_b32_dpp v{20+(i&1)}, v{P} row_newbcast:{i} row_mask:0xf bank_mask:0xf")
        build_a(a, 20 + (i & 1))
        mfma(ACC, a, VR(i), first=(i == 0))
        while nxt < 32 and nxt - 16 <= i + O.win:
            issue(nxt); nxt += 1
        if i == O.igo:
            lds_set(F_GOL, 1, 22, 23)
    stamp(5)
    lds_spin(F_FAC, 1, 20, 21)
    I(f"s_lshl_b32 s48, s3, 3\ns_add_u32 s48, s48, {L_FAC}\nv_mov_b32 v20, s48")
    e.lg("ds_read_b64 v[22:23], v20", "fac")
    I("v_lshrrev_b32 v21, 4, v0")
    I("v_and_b32 v24, 15, v0\nv_lshlrev_b32 v24, 1, v24")
    I("v_and_b32 v25, 1, v21\nv_add_u32 v24, v24, v25")
    I("v_lshrrev_b32 v25, 1, v21\nv_lshl_add_u32 v24, v25, 5, v24")
    I(f"s_lshl_b32 s48, s3, 10\ns_add_u32 s48, s48, {L_OP}")
    I("v_lshl_add_u32 v24, v24, 4, s48")
    I("s_mov_b32 s48, 0\ns_mov_b32 s49, -1")
    e.lg_wait("fac")
    I("v_cndmask_b32 v22, v22, v23, s[48:49]")
    for r in range(4): I(f"v_mul_f32 v{ACC+r}, v{ACC+r}, v22")
    e.lg(f"ds_write_b128 v24, {vr(ACC)}", "op")
    I(f"v_mov_b32 v20, {CNT_O}\nv_mov_b32 v21, 1")
    e.lg_wait("op")
    I("s_mov_b64 exec, 1")
    e.lg("ds_add_rtn_u32 v21, v20, v21", "cnt")
    e.lg_wait("cnt")
    I("v_readfirstlane_b32 s48, v21")
    I("s_mov_b64 exec, -1")
    I("s_cmp_eq_u32 s48, 3")
    e.branch("s_cbranch_scc0 L_A_done")
    I(f"v_lshlrev_b32 v20, 4, v0")
    for w in range(4): e.lg(f"ds_read_b128 {vr(40+4*w)}, v20 offset:{L_OP+1024*w}", ("o", w))
    I("v_lshrrev_b32 v21, 4, v0\nv_lshlrev_b32 v21, 12, v21\nv_and_b32 v22, 15, v0\nv_lshl_add_u32 v21, v22, 4, v21")
    I(f"s_lshl_b32 s48, s28, 14\ns_lshl_b32 s49, s29, 8\ns_add_u32 s48, s48, s49\ns_add_u32 s48, s48, {H2}")
    add64(44, sWS, "s48")
    e.lg_wait(("o", 1))
    for r in range(4): I(f"v_add_f32 v{40+r}, v{40+r}, v{44+r}")
    e.lg_wait(("o", 3))
    for r in range(4): I(f"v_add_f32 v{48+r}, v{48+r}, v{52+r}")
    for r in range(4): I(f"v_add_f32 v{40+r}, v{40+r}, v{48+r}")
    e.vm(f"global_store_dwordx4 v21, {vr(40)}, s[44:45] sc1", "h2")
    e.label("L_A_done")
    stamp(6)
    stamps_out(2, 7) if False else None
    if O.diag:
        I("s_add_u32 s60, s3, 2")
        stamps_dyn(7)
    I("s_endpgm")

def stamps_dyn(n):
    n = 12
    I("s_memrealtime s[86:87]")
    I("s_waitcnt lgkmcnt(0)")
    I("s_mov_b64 exec, 1")
    add64(62, sWS, "0x20000000")
    I("s_lshl_b32 s61, s60, 8\ns_add_u32 s61, s61, s2\ns_lshl_b32 s61, s61, 7")
    add64(62, 62, "s61")
    I("v_mov_b32 v2, 0")
    for k in range(n):
        I(f"v_mov_b32 v4, s{64+2*k}\nv_mov_b32 v5, s{65+2*k}")
        I(f"global_store_dwordx2 v2, v[4:5], s[62:63] offset:{8*k}")
        I("s_nop 1")

def merge_tile(t, DA, S0):
    d0, d1 = DA + 8*(t & 1), DA + 8*(t & 1) + 4
    for h in range(2):
        I(f"v_cndmask_b32 v{d0+h}, v{d0+h}, v{d1+h}, s[46:47]")
        I(f"v_cndmask_b32 v{d0+2+h}, v{d1+2+h}, v{d0+2+h}, s[46:47]")
    for h in range(2):
        I(f"v_add_f32_dpp v{S0+h}, v{d0+2+h}, v{d0+h} quad_perm:[1,0,3,2] row_mask:{1<<t:#x} bank_mask:0xf")

def role_T0_head():
    WB = 32
    e.label("L_T0")
    I("s_setprio 3")
    I("v_lshlrev_b32 v1, 4, v0")
    I("v_lshrrev_b32 v8, 4, v0\nv_bfe_u32 v9, v0, 3, 1")
    I("v_and_b32 v10, 7, v0\nv_lshlrev_b32 v10, 4, v10")
    I("v_lshl_add_u32 v11, v8, 3, v9\nv_lshl_add_u32 v2, v11, 13, v10")
    I("v_lshl_add_u32 v11, v8, 2, v9\nv_lshl_add_u32 v3, v11, 13, v10")
    I("s_lshr_b32 s48, s29, 2\ns_mul_i32 s49, s48, 0x120000\ns_and_b32 s50, s29, 3\ns_lshl_b32 s50, s50, 7\ns_add_u32 s49, s49, s50")
    I("s_lshl_b32 s50, s28, 9\ns_add_u32 s49, s49, s50")
    I(f"s_mov_b32 s32, s{sX}"); srd(32, sX, 1152)
    e.vm(f"buffer_load_dwordx4 {vr(8)}, v1, s[32:35], 0 offen", "xa")
    e.vm(f"buffer_load_dwordx4 {vr(12)}, v1, s[32:35], 0 offen offset:1024", "xb")
    add64(36, sWQ, "s49"); srd(36, 36, 144*8192)
    steps = []
    for Ig in range(4):
        for ii in range(4): steps.append((2, (32*Ig + 2*ii)*8192))
    steps += [(3, 128*8192), (3, 130*8192)]
    for k, (vo, so) in enumerate(steps):
        if so: I(f"s_mov_b32 s50, {so}")
        e.vm(f"buffer_load_dwordx4 {vr(WB+4*k)}, v{vo}, s[36:39], {'s50' if so else '0'} offen {O.nt}", ("wq", k))
    I("s_barrier")
    stamp(1)
    e.vm_wait("xb")
    f = list(range(16, 32))
    for k in range(8):
        src = 8 + k//2 if k < 8 else 0
    for half, base in ((0, 8), (1, 12)):
        for d in range(4):
            I(f"v_lshlrev_b32 v{16+8*half+2*d}, 16, v{base+d}")
            I(f"v_and_b32 v{17+8*half+2*d}, 0xffff0000, v{base+d}")
    layernorm(f, 8, 8, "0xff", 104, [8, 9, 10, 11, 12, 13, 14, 15])
    e.lg(f"ds_write_b128 v1, {vr(8)} offset:{L_LN1}", "ln")
    I("s_mov_b64 exec, 0xff")
    e.lg(f"ds_write_b128 v1, {vr(12)} offset:{L_LN1+1024}", "ln2")
    I("s_mov_b64 exec, -1")
    make_sel(104)
    I("v_lshrrev_b32 v8, 4, v0\nv_lshlrev_b32 v9, 4, v8\nv_lshlrev_b32 v10, 3, v8")
    I(f"s_mul_i32 s50, s48, 288\ns_add_u32 s50, s50, {L_LN1}")
    I("v_add_u32 v9, s50, v9\nv_add_u32 v10, s50, v10")
    e.lg_all()
    for Ig in range(4): e.lg(f"ds_read_b128 {vr(108+4*Ig)}, v9 offset:{64*Ig}", ("pk", Ig))
    e.lg(f"ds_read_b64 v[124:125], v10 offset:256", ("pk", 4))
    stamp(2)
    ACC = 16
    for k in range(18):
        Ig, ii = (k >> 2, k & 3) if k < 16 else (4, k - 16)
        if ii == 0: e.lg_wait(("pk", Ig))
        a = 8 + 4*(k & 1) if False else (20 + 4*(k & 1))
        build_a(a, 108 + 4*Ig + ii)
        e.vm_wait(("wq", k))
        mfma(ACC, a, WB + 4*k, first=(k == 0))
    stamp(3)
    half_combine(ACC, 20)
    lds_spin(F_TAG, 1, 24, 25)
    I(f"v_mov_b32 v24, {L_TAG}")
    e.lg("ds_read_b32 v25, v24", "tag"); e.lg_wait("tag")
    I(f"v_mov_b32 v28, v{ACC}\nv_mov_b32 v29, v{ACC+1}\nv_mov_b32 v30, v25\nv_mov_b32 v31, v25")
    I(f"v_mov_b32 v20, v{ACC+2}\nv_mov_b32 v21, v{ACC+3}\nv_mov_b32 v22, v25\nv_mov_b32 v23, v25")
    I("v_and_b32 v24, 7, v0\nv_lshlrev_b32 v24, 1, v24\nv_lshrrev_b32 v25, 4, v0\nv_add_u32 v24, v24, v25\nv_lshlrev_b32 v24, 4, v24")
    I("s_lshl_b32 s49, s28, 13\ns_lshl_b32 s50, s48, 11\ns_add_u32 s49, s49, s50\ns_and_b32 s50, s29, 3\ns_lshl_b32 s50, s50, 8\ns_add_u32 s49, s49, s50")
    I(f"s_add_u32 s49, s49, {H1}")
    add64(44, sWS, "s49")
    I("s_mov_b32 exec_lo, 0x00ff00ff\ns_mov_b32 exec_hi, 0")
    e.vm(f"global_store_dwordx4 v24, v[28:31], s[44:45] sc1", "h1")
    e.vm(f"global_store_dwordx4 v24, v[20:23], s[44:45] offset:1024 sc1", "h1b")
    I("s_mov_b64 exec, -1")
    stamp(4)
    I("s_mov_b32 s3, 0")
    e.branch("s_branch L_Tail")

def half_combine(acc, t):
    for r in range(4): I(f"v_mov_b32 v{t+r}, v{acc+r}")
    for r in range(4): I(f"v_permlane32_swap_b32 v{acc+r}, v{t+r}")
    for r in range(4): I(f"v_add_f32_dpp v{acc+r}, v{t+r}, v{acc+r} row_ror:8 row_mask:0xf bank_mask:0xf")

def role_C():
    e.comment("===== wave 1: hand-off bookkeeping")
    e.label("L_C")
    I("s_setprio 3")
    I("v_lshlrev_b32 v1, 4, v0")
    for r in range(4): I(f"v_mov_b32 v{12+r}, -1")
    add64(34, sWS, EPOCH)
    I("s_load_dword s56, s[34:35], 0")
    lw, lz, lc = L("cwo"), L("cz"), L("cdone")
    I("s_cmp_ge_u32 s29, 13"); e.branch(f"s_cbranch_scc1 {lz}")
    I("s_cmp_ge_u32 s29, 9"); e.branch(f"s_cbranch_scc0 {lc}")
    I(f"s_lshl_b32 s48, s28, 2\ns_add_u32 s48, s48, s29\ns_sub_u32 s48, s48, 9\ns_lshl_b32 s48, s48, 12\ns_add_u32 s48, s48, {H2}")
    add64(32, sWS, "s48")
    for k in range(4): I(f"global_store_dwordx4 v1, v[12:15], s[32:33] offset:{1024*k} sc1")
    e.branch(f"s_branch {lc}")
    e.label(lz)
    I("s_mul_i32 s48, s28, 3\ns_add_u32 s48, s48, s29\ns_sub_u32 s48, s48, 13")
    I(f"s_mul_i32 s49, s48, 3072\ns_add_u32 s49, s49, {H3A}")
    add64(32, sWS, "s49")
    for k in range(3): I(f"global_store_dwordx4 v1, v[12:15], s[32:33] offset:{1024*k} sc1")
    I(f"s_mul_i32 s49, s48, 6912\ns_add_u32 s49, s49, {H4}")
    add64(32, sWS, "s49")
    for k in range(4): I(f"global_store_dwordx4 v1, v[12:15], s[32:33] offset:{1024*k} sc1")
    add64(32, 32, 4096)
    for k in range(2): I(f"global_store_dwordx4 v1, v[12:15], s[32:33] offset:{1024*k} sc1")
    I(f"s_mul_i32 s49, s48, 768\ns_add_u32 s49, s49, {H3B}")
    add64(36, sWS, "s49")
    I("s_mov_b32 exec_lo, -1\ns_mov_b32 exec_hi, 0xffff")
    I(f"global_store_dwordx4 v1, v[12:15], s[32:33] offset:2048 sc1")
    I(f"global_store_dwordx4 v1, v[12:15], s[36:37] sc1")
    I("s_mov_b64 exec, -1")
    e.label(lc)
    if O.prefetch:
        lp = L("pc")
        I("s_getpc_b64 s[32:33]")
        e.label(lp)
        I(f"s_sub_u32 s32, s32, {lp}-{NAME}\ns_subb_u32 s33, s33, 0")
        I("s_lshr_b32 s48, s2, 3\ns_and_b32 s48, s48, PF_MASK\ns_lshl_b32 s48, s48, 10")
        I("v_add_u32 v2, s48, v1\nv_min_u32 v2, CODE_BYTES-16, v2")
        I("global_load_dwordx4 v[16:19], v2, s[32:33]")
    stamp(1)
    I("s_waitcnt lgkmcnt(0)")
    I("s_add_u32 s56, s56, 1")
    I(f"v_mov_b32 v40, s56\nv_mov_b32 v41, s56\nv_mov_b32 v42, s56\nv_mov_b32 v43, s56")
    I(f"v_mov_b32 v3, {L_TAG}\nds_write_b32 v3, v40\ns_waitcnt lgkmcnt(0)")
    lds_set(F_TAG, 1, 2, 3)
    lf = L("noflag"); lfz = L("zflag")
    I("s_cmp_ge_u32 s29, 9"); e.branch(f"s_cbranch_scc0 {lf}")
    I("s_waitcnt vmcnt(0)")
    I("s_cmp_ge_u32 s29, 13"); e.branch(f"s_cbranch_scc1 {lfz}")
    I(f"s_lshl_b32 s48, s28, 10\ns_add_u32 s49, s29, 39\ns_lshl_b32 s49, s49, 4\ns_add_u32 s48, s48, s49\ns_add_u32 s48, s48, {FL}")
    add64(32, sWS, "s48")
    I("v_mov_b32 v2, 0\ns_mov_b64 exec, 1")
    I("global_store_dwordx4 v2, v[40:43], s[32:33] sc1")
    I("s_mov_b64 exec, -1")
    e.branch(f"s_branch {lf}")
    e.label(lfz)
    I(f"s_mul_i32 s48, s28, 3\ns_add_u32 s48, s48, s29\ns_sub_u32 s48, s48, 13\ns_lshl_b32 s48, s48, 4\ns_add_u32 s48, s48, {FL}")
    add64(32, sWS, "s48")
    I("v_lshlrev_b32 v2, 10, v0\ns_mov_b64 exec, 0xffff")
    I("global_store_dwordx4 v2, v[40:43], s[32:33] sc1")
    I("s_mov_b64 exec, -1")
    e.label(lf)
    stamp(2)
    I(f"s_lshl_b32 s48, s28, 13\ns_add_u32 s48, s48, {H1}"); add64(32, sWS, "s48")
    add64(34, 32, 4096)
    lp, dn = L("qp"), L("qpd")
    e.settle(); e.label(lp)
    for k in range(8):
        I(f"global_load_dwordx4 {vr(44+4*k)}, v1, s[{32+2*(k>>2)}:{33+2*(k>>2)}] offset:{1024*(k&3)} sc1")
    budget(dn)
    I("s_waitcnt vmcnt(0)")
    I("v_xor_b32 v8, v46, v40")
    for k in range(8):
        for x in ((47,) if k == 0 else (46+4*k, 47+4*k)): I(f"v_bitop3_b32 v8, v8, v{x}, v40 bitop3:0xf6")
    I("v_cmp_ne_u32 vcc, 0, v8"); e.raw(f"  s_cbranch_vccnz {lp}"); e._advance(1)
    e.label(dn)
    I("s_waitcnt vmcnt(0)")
    for half in range(2):
        for r in range(2):
            d = 16 + 2*half + r
            I(f"v_add_f32 v{d}, v{44+4*half+r}, v{52+4*half+r}")
            I(f"v_add_f32 v{20+2*half+r}, v{60+4*half+r}, v{68+4*half+r}")
    for r in range(4): I(f"v_add_f32 v{16+r}, v{16+r}, v{20+r}")
    I("v_cvt_pk_bf16_f32 v8, v16, v17\nv_cvt_pk_bf16_f32 v9, v18, v19")
    I("v_lshlrev_b32 v2, 3, v0")
    I(f"ds_write_b64 v2, v[8:9] offset:{L_Q}")
    I("s_waitcnt lgkmcnt(0)")
    lds_set(F_Q, 1, 2, 3)
    stamp(3)
    lp, dn = L("af"), L("afd")
    I(f"s_lshl_b32 s48, s28, 10\ns_add_u32 s48, s48, {FL}"); add64(32, sWS, "s48")
    e.settle(); e.label(lp)
    I("s_mov_b32 exec_lo, -1\ns_mov_b32 exec_hi, 0xfffff")
    I("global_load_dwordx4 v[16:19], v1, s[32:33] sc1")
    budget(dn)
    I("s_waitcnt vmcnt(0)")
    I("v_xor_b32 v8, v16, v40")
    for x in (17, 18, 19): I(f"v_bitop3_b32 v8, v8, v{x}, v40 bitop3:0xf6")
    I("v_cmp_ne_u32 vcc, 0, v8"); e.raw(f"  s_cbranch_vccnz {lp}"); e._advance(1)
    e.label(dn)
    I("s_mov_b64 exec, -1")
    I("s_waitcnt vmcnt(0)")
    stamp(8)
    I(f"s_lshl_b32 s48, s28, 10\ns_add_u32 s48, s48, {H15}"); add64(32, sWS, "s48")
    lp, dn = L("sp"), L("spd")
    e.settle(); e.label(lp)
    I("global_load_dwordx4 v[16:19], v1, s[32:33] sc1")
    budget(dn)
    I("s_waitcnt vmcnt(0)")
    I("v_xor_b32 v8, v16, v40")
    I("v_bitop3_b32 v8, v8, v18, v40 bitop3:0xf6")
    I("v_and_b32 v8, 0xffff, v8")
    I("v_cmp_ne_u32 vcc, 0, v8"); e.raw(f"  s_cbranch_vccnz {lp}"); e._advance(1)
    e.label(dn)
    I("s_waitcnt vmcnt(0)")
    I("v_and_b32 v16, 0xffff0000, v16\nv_and_b32 v18, 0xffff0000, v18")
    I("v_mov_b32 v20, v16\nv_mov_b32 v21, v18")
    allreduce("max", [20, 21], [22, 23])
    I("v_sub_f32 v16, v16, v20\nv_sub_f32 v18, v18, v21")
    I(f"v_mul_f32 v16, {LOG2E:#x}, v16\nv_mul_f32 v18, {LOG2E:#x}, v18")
    I("v_exp_f32 v16, v16\nv_exp_f32 v18, v18")
    I("v_mul_f32 v17, v17, v16\nv_mul_f32 v19, v19, v18")
    allreduce("add", [17, 19], [22, 23])
    I("v_rcp_f32 v17, v17\nv_rcp_f32 v19, v19")
    I("v_mul_f32 v16, v16, v17\nv_mul_f32 v17, v18, v19")
    I(f"v_and_b32 v2, 3, v0\nv_lshlrev_b32 v2, 3, v2")
    I("s_lshl_b32 s48, s29, 2\ns_lshl_b64 exec, 0xf, s48")
    I(f"ds_write_b64 v2, v[16:17] offset:{L_FAC}")
    I("s_mov_b64 exec, -1")
    I("s_waitcnt lgkmcnt(0)")
    lds_set(F_FAC, 1, 2, 3)
    stamp(4)
    I("s_cmp_ge_u32 s29, 9"); e.branch("s_cbranch_scc1 L_C_done")
    I("s_mov_b32 s3, 5")
    e.branch("s_branch L_FFN")
    e.label("L_C_done")
    if O.diag:
        I("s_mov_b32 s60, 1"); stamps_dyn(5)
    I("s_endpgm")

def role_T():
    e.comment("===== waves 6..9 (tail index 1..4) and wave 0 after its q slice")
    e.label("L_T")
    I("s_sub_u32 s3, s3, 5")
    make_sel(8)
    e.label("L_Tail")
    I("s_setprio 0")
    I("s_cmp_ge_u32 s29, 13"); e.branch("s_cbranch_scc1 L_RED")
    I("s_cmp_ge_u32 s29, 9"); e.branch("s_cbranch_scc1 L_WO")
    I("s_lshr_b32 s48, s28, 1\ns_mul_i32 s48, s48, 9\ns_add_u32 s48, s48, s29\ns_and_b32 s48, s48, 7")
    l1, l2 = L("goe"), L("go")
    I(f"s_cmp_eq_u32 s48, {O.slowres}"); e.branch(f"s_cbranch_scc1 {l1}")
    lds_spin(F_GOL, 1, 8, 9)
    e.branch(f"s_branch {l2}")
    e.label(l1)
    lds_spin(F_GOE, 1, 8, 9)
    e.label(l2)
    e.branch("s_branch L_FFN")

def colblock_voff(v, rowstride, t):
    I(f"v_lshrrev_b32 v{t}, 4, v0\nv_mul_u32_u24 v{t}, {rowstride}, v{t}")
    I(f"v_and_b32 v{t+1}, 15, v0\nv_lshl_add_u32 v{v}, v{t+1}, 4, v{t}")
    I(f"s_lshl_b32 s48, s3, 8\nv_add_u32 v{v}, s48, v{v}")
    I(f"s_cmp_eq_u32 s3, 4\ns_cselect_b32 s48, 8, 16")
    I(f"v_cmp_gt_u32 vcc, s48, v{t+1}\nv_mov_b32 v{t}, 0x7fffffff")
    I(f"v_cndmask_b32 v{v}, v{t}, v{v}, vcc")

def publish_cols(acc, region, stride, prod_sgpr, t):
    I(f"v_and_b32 v{t}, 15, v0\nv_lshlrev_b32 v{t}, 1, v{t}\nv_lshrrev_b32 v{t+1}, 4, v0\nv_add_u32 v{t}, v{t}, v{t+1}")
    I(f"s_lshl_b32 s48, s3, 5\nv_add_u32 v{t}, s48, v{t}")
    I(f"v_mul_u32_u24 v{t}, {stride}, v{t}")
    I(f"s_lshl_b32 s48, s{prod_sgpr}, 4\ns_add_u32 s48, s48, {region}")
    add64(44, sWS, "s48")
    I("s_cmp_eq_u32 s3, 4\ns_cselect_b32 s48, 0x00ff00ff, -1\ns_mov_b32 exec_lo, s48\ns_mov_b32 exec_hi, 0")

def role_WO():
    WB = 104
    e.label("L_WO")
    lds_spin(F_GOE, 1, 8, 9)
    stamp(5)
    colblock_voff(1, 1152, 8)
    I("s_lshl_b32 s48, s28, 2\ns_add_u32 s48, s48, s29\ns_sub_u32 s52, s48, 9")
    I("s_mul_i32 s48, s52, 73728")
    add64(32, sWO, "s48"); srd(32, 32, 64*1152)
    e.vmq = []
    for i in range(16):
        if i: I(f"s_mov_b32 s48, {4608*i}")
        if i >= O.wowin: e.vm_wait_n(O.wowin - 1)
        e.vm(f"buffer_load_dwordx4 {vr(WB+4*i)}, v1, s[32:35], {'s48' if i else '0'} offen {O.nt}", ("wo", i))
    I(f"s_lshl_b32 s48, s52, 12\ns_add_u32 s48, s48, {H2}")
    add64(36, sWS, "s48")
    I("v_lshlrev_b32 v2, 4, v0")
    publish_cols(0, H3A, 1024, 52, 8)
    I("s_mov_b64 s[54:55], exec\ns_mov_b64 exec, -1")
    lds_spin(F_FAC, 1, 10, 11)
    e.vm_all()
    stamp(6)
    I("s_setprio 3")
    poll([f"global_load_dwordx4 {vr(16+4*k)}, v2, s[36:37] offset:{1024*k} sc1" for k in range(4)], range(16, 32), 10)
    stamp(7)
    for r in range(4):
        I(f"v_add_f32 v{16+r}, v{16+r}, v{20+r}\nv_add_f32 v{24+r}, v{24+r}, v{28+r}")
    for r in range(4): I(f"v_add_f32 v{16+r}, v{16+r}, v{24+r}")
    rscatter4([16, 17, 18, 19])
    I("v_cvt_pk_bf16_f32 v16, v16, v16")
    ACC = 28
    for i in range(16):
        t, a = 18 + (i & 1), 20 + 4*(i & 1)
        I(f"v_mov_b32_dpp v{t}, v16 row_newbcast:{i} row_mask:0xf bank_mask:0xf")
        build_a(a, t)
        mfma(ACC, a, WB + 4*i, first=(i == 0))
    I("s_mov_b64 exec, s[54:55]")
    I(f"global_store_dwordx4 v8, {vr(ACC)}, s[44:45] sc1")
    I("s_mov_b64 exec, -1")
    if O.diag:
        tail_stamps(8)
    I("s_endpgm")

def tail_stamps(n):
    I("s_add_u32 s60, s3, 5\ns_cmp_eq_u32 s3, 0\ns_cselect_b32 s60, 0, s60\ns_cmp_eq_u32 s3, 5\ns_cselect_b32 s60, 1, s60")
    stamps_dyn(n)

def role_RED():
    e.comment("===== column reducers")
    e.label("L_RED")
    I("s_cmp_ge_u32 s3, 3"); e.branch("s_cbranch_scc1 L_RED_done")
    I("s_mul_i32 s48, s28, 3\ns_add_u32 s48, s48, s29\ns_sub_u32 s48, s48, 13\ns_mul_i32 s48, s48, 3\ns_add_u32 s52, s48, s3")
    I("v_lshrrev_b32 v8, 4, v0\nv_lshlrev_b32 v9, 1, v8\ns_lshl_b32 s48, s52, 3\nv_add_u32 v9, s48, v9")
    I(f"global_load_ushort v10, v9, {sp(sX)}")
    I(f"s_lshl_b32 s48, s52, 10\ns_add_u32 s48, s48, {H3A}"); add64(32, sWS, "s48")
    I(f"s_mul_i32 s48, s52, 2304\ns_add_u32 s48, s48, {H4}"); add64(36, sWS, "s48"); srd(36, 36, 2304)
    I("v_lshlrev_b32 v1, 4, v0")
    I(f"v_mul_u32_u24 v11, 2304, v0")
    I(f"s_lshl_b32 s48, s52, 4\ns_add_u32 s48, s48, {H3B}"); add64(40, sWS, "s48")
    lds_spin(F_FAC, 1, 12, 13)
    I("s_waitcnt vmcnt(0)"); e.vmq = []
    I("v_lshlrev_b32 v10, 16, v10")
    stamp(5)
    I("s_setprio 3")
    poll(["global_load_dwordx4 v[16:19], v1, s[32:33] sc1"], range(16, 20), 12)
    stamp(6)
    rscatter4([16, 17, 18, 19])
    rows_allreduce("add", [16])
    rne1(16, 12)
    I("v_add_f32 v10, v10, v16")
    rne1(10, 12)
    I("v_mov_b32 v20, v10\nv_mov_b32 v21, v10")
    I("v_permlane16_swap_b32 v20, v21")
    I("v_mov_b32 v22, v20\nv_mov_b32 v23, v21")
    I("v_permlane32_swap_b32 v20, v22\nv_permlane32_swap_b32 v21, v23")
    I("s_mov_b64 exec, 0xffff")
    I("global_store_dwordx4 v11, v[20:23], s[40:41] sc1")
    I("s_mov_b64 exec, -1")
    stamp(7)
    poll([f"buffer_load_dwordx4 {vr(16+4*k)}, v1, s[36:39], 0 offen offset:{1024*k} sc1" for k in range(3)], range(16, 28), 12)
    stamp(8)
    for r in range(4): I(f"v_add_f32 v{16+r}, v{16+r}, v{20+r}")
    for r in range(4): I(f"v_add_f32 v{16+r}, v{16+r}, v{24+r}")
    rscatter4([16, 17, 18, 19])
    rows_allreduce("add", [16])
    rne1(16, 12)
    I("v_add_f32 v10, v10, v16")
    I("v_cvt_pk_bf16_f32 v10, v10, v10")
    I("s_mov_b32 exec_lo, 0x00010001\ns_mov_b32 exec_hi, 0x00010001")
    I(f"global_store_short v9, v10, {sp(sOUT)}")
    le = L("noep")
    I("s_cmp_eq_u32 s52, 0"); e.branch(f"s_cbranch_scc0 {le}")
    I(f"v_mov_b32 v12, {L_TAG}\nds_read_b32 v13, v12\nv_mov_b32 v14, 0")
    add64(32, sWS, EPOCH)
    I("s_mov_b64 exec, 1\ns_waitcnt lgkmcnt(0)")
    I("global_store_dword v14, v13, s[32:33]")
    e.label(le)
    I("s_mov_b64 exec, -1")
    e.label("L_RED_done")
    if O.diag:
        tail_stamps(8)
    I("s_endpgm")

def role_FFN():
    GB, DB = 88, 136
    e.label("L_FFN")
    stamp(5)
    I("s_lshr_b32 s48, s28, 1\ns_mul_i32 s48, s48, 9\ns_add_u32 s48, s48, s29\ns_lshl_b32 s48, s48, 6")
    I("s_and_b32 s49, s28, 1\ns_lshl_b32 s49, s49, 5\ns_add_u32 s52, s48, s49")
    I("s_mul_i32 s53, s28, 9\ns_add_u32 s53, s53, s29")
    I("v_lshrrev_b32 v8, 4, v0\nv_bfe_u32 v9, v0, 3, 1\nv_lshl_add_u32 v8, v8, 3, v9")
    I("s_mul_i32 s48, s3, 96\nv_add_u32 v8, s48, v8\nv_mul_u32_u24 v8, 9216, v8")
    I("v_and_b32 v9, 3, v0\nv_lshlrev_b32 v9, 4, v9\ns_lshl_b32 s48, s52, 1\nv_add3_u32 v8, v8, v9, s48")
    I("v_bfe_u32 v9, v0, 2, 1\nv_cmp_eq_u32 vcc, 1, v9")
    I(f"v_mov_b32 v10, s{sWG}\nv_mov_b32 v11, s{sWU}\nv_cndmask_b32 v10, v10, v11, vcc")
    I(f"v_mov_b32 v11, s{sWG+1}\nv_mov_b32 v12, s{sWU+1}\nv_cndmask_b32 v11, v11, v12, vcc")
    I("v_add_co_u32 v10, vcc, v10, v8\nv_addc_co_u32 v11, vcc, 0, v11, vcc")
    I(f"s_mov_b32 s48, {2*9216}\ns_mov_b32 s49, 0\ns_mov_b32 s50, {26*9216}\ns_mov_b32 s51, 0")
    e.vmq = []
    for k in range(12):
        e.vm(f"global_load_dwordx4 {vr(GB+4*k)}, v[10:11], off {O.nt}", ("gu", k))
        if k < 11: I(f"v_lshl_add_u64 v[10:11], v[10:11], 0, {'s[50:51]' if (k & 3) == 3 else 's[48:49]'}")
    lc, lj = L("ffc"), L("ffj")
    I("s_cmp_eq_u32 s3, 5"); e.branch(f"s_cbranch_scc1 {lc}")
    colblock_voff(1, 1152, 8)
    I("s_mul_i32 s48, s52, 1152"); add64(32, sWD, "s48"); srd(32, 32, 32*1152)
    for i in range(8):
        if i: I(f"s_mov_b32 s48, {4608*i}")
        I(f"buffer_load_dwordx4 {vr(DB+4*i)}, v1, s[32:35], {'s48' if i else '0'} offen {O.nt}")
    lds_spin(F_X, 1, 8, 9)
    stamp(6)
    I("s_waitcnt vmcnt(8)")
    e.branch(f"s_branch {lj}")
    e.label(lc)
    I(f"s_and_b32 s48, s53, 15\ns_mul_i32 s48, s48, 2304\ns_add_u32 s48, s48, {H3B}")
    add64(36, sWS, "s48"); srd(36, 36, 2304)
    I("v_lshlrev_b32 v1, 4, v0")
    make_sel(12)
    I("s_setprio 3")
    e.vmq = []
    poll([f"buffer_load_dwordx4 {vr(16+4*k)}, v1, s[36:39], 0 offen offset:{1024*k} sc1" for k in range(3)], range(16, 28), 8)
    stamp(6)
    f = list(range(16, 28))
    layernorm(f, 8, 4, "0xffff", 8, [28, 29, 30, 31, 32, 33])
    I("v_lshlrev_b32 v2, 3, v0")
    I(f"ds_write_b64 v2, v[28:29] offset:{L_XLN2}\nds_write_b64 v2, v[30:31] offset:{L_XLN2+512}")
    I("s_mov_b64 exec, 0xffff")
    I(f"ds_write_b64 v2, v[32:33] offset:{L_XLN2+1024}")
    I("s_mov_b64 exec, -1")
    I("s_waitcnt lgkmcnt(0)")
    lds_set(F_X, 1, 2, 3)
    e.settle()
    e.label(lj)
    e.vmq = []; e.lgq = []
    stamp(7)
    I("s_setprio 3")
    I(f"v_lshrrev_b32 v8, 4, v0\nv_lshlrev_b32 v8, 4, v8\ns_mul_i32 s48, s3, 192\ns_add_u32 s48, s48, {L_XLN2}\nv_add_u32 v8, s48, v8")
    for Ig in range(3): e.lg(f"ds_read_b128 {vr(12+4*Ig)}, v8 offset:{64*Ig}", ("pk", Ig))
    ACC = 24
    for k in range(12):
        Ig, ii = k >> 2, k & 3
        if ii == 0: e.lg_wait(("pk", Ig))
        a = 28 + 4*(k & 1)
        build_a(a, 12 + 4*Ig + ii)
        mfma(ACC, a, GB + 4*k, first=(k == 0))
    I("v_and_b32 v8, 7, v0\nv_lshlrev_b32 v8, 3, v8\nv_bfe_u32 v9, v0, 4, 1\nv_lshl_add_u32 v8, v9, 2, v8\nv_mul_u32_u24 v8, 48, v8")
    I(f"v_lshrrev_b32 v9, 5, v0\nv_lshl_add_u32 v8, v9, 2, v8\ns_lshl_b32 s48, s3, 3\ns_add_u32 s48, s48, {L_GUP}\nv_add_u32 v8, s48, v8")
    I("s_mov_b32 exec_lo, 0x00ff00ff\ns_mov_b32 exec_hi, 0xff00ff00")
    for r in range(4): I(f"ds_write_b32 v8, v{ACC+r} offset:{48*r}")
    I("s_mov_b64 exec, -1")
    I(f"v_mov_b32 v8, {CNT_GU}\nv_mov_b32 v9, 1")
    I("s_waitcnt lgkmcnt(0)")
    I("s_mov_b64 exec, 1\nds_add_u32 v8, v9\ns_mov_b64 exec, -1")
    I("s_cmp_eq_u32 s3, 5"); e.branch("s_cbranch_scc1 L_FFN_done")
    publish_cols(0, H4, 2304, 53, 40)
    I("s_mov_b64 s[54:55], exec\ns_mov_b64 exec, -1")
    I("v_bfe_u32 v8, v0, 3, 1\nv_lshlrev_b32 v8, 5, v8\nv_and_b32 v9, 7, v0\nv_lshl_add_u32 v8, v9, 2, v8\nv_lshrrev_b32 v9, 4, v0\nv_add_u32 v8, v8, v9")
    I(f"v_mul_u32_u24 v10, 48, v8")
    stamp(8)
    lds_spin(CNT_GU, 6, 8, 9)
    stamp(9)
    for k in range(3): e.lg(f"ds_read_b128 {vr(12+4*k)}, v10 offset:{L_GUP+16*k}", ("gp", k))
    e.lg_wait(("gp", 1))
    for r in range(4): I(f"v_add_f32 v{12+r}, v{12+r}, v{16+r}")
    e.lg_wait(("gp", 2))
    for r in range(4): I(f"v_add_f32 v{12+r}, v{12+r}, v{20+r}")
    I("v_add_f32 v12, v12, v13\nv_add_f32 v14, v14, v15\nv_add_f32 v12, v12, v14")
    rne1(12, 13)
    I("v_mov_b32_dpp v13, v12 row_ror:8 row_mask:0xf bank_mask:0xf")
    I("v_mul_f32 v14, v12, v12")
    I("v_mov_b32 v15, 0x3d372713\nv_fma_f32 v14, v14, v15, 1.0")
    I("v_mul_f32 v14, v14, v12")
    I("v_mul_f32 v14, 0xc0135761, v14")
    I("v_exp_f32 v14, v14")
    I("v_add_f32 v14, 1.0, v14")
    I("v_rcp_f32 v14, v14")
    I("v_mul_f32 v12, v12, v14")
    rne1(12, 14)
    I("v_mul_f32 v12, v12, v13")
    I("v_cvt_pk_bf16_f32 v16, v12, v12")
    I("s_waitcnt vmcnt(0)")
    stamp(10)
    ACC2 = 28
    for i in range(8):
        t, a = 18 + (i & 1), 20 + 4*(i & 1)
        I(f"v_mov_b32_dpp v{t}, v16 row_newbcast:{i} row_mask:0xf bank_mask:0xf")
        build_a(a, t)
        mfma(ACC2, a, DB + 4*i, first=(i == 0))
    I("s_mov_b64 exec, s[54:55]")
    I(f"global_store_dwordx4 v40, {vr(ACC2)}, s[44:45] sc1")
    I("s_mov_b64 exec, -1")
    e.label("L_FFN_done")
    if O.diag:
        tail_stamps(8)
    I("s_endpgm")

def build():
    O.wowin = getattr(O, "wowin", 16)
    prologue()
    role_A()
    role_T0_head()
    role_C()
    role_T()
    role_WO()
    role_RED()
    role_FFN()
    e.label("L_end")
    I("s_endpgm")
    e.raw("L_code_end:")
    head = []
    ref = open("sequential_preLN__sliding_block_cached__geglu_ffn__decode.s.ref").read().split("\n")
    for l in ref:
        if l.startswith("; @launch"): break
        if l.startswith("; Override") or l.startswith("; grid="): continue
        head.append(l)
    head.append(f"; @launch grid=(256,1,1) block=(640,1,1) lds={LDS_BYTES}")
    head.append('.amdgcn_target "amdgcn-amd-amdhsa--gfx950"')
    head.append(".text")
    head.append(f".set CODE_BYTES, L_code_end-{NAME}")
    head.append(".set PF_MASK, 15")
    tail = f""".section .rodata,"a"
.p2align 6
.amdhsa_kernel {NAME}
  .amdhsa_next_free_vgpr 168
  .amdhsa_next_free_sgpr 96
  .amdhsa_accum_offset 168
  .amdhsa_group_segment_fixed_size 0
  .amdhsa_kernarg_size 96
  .amdhsa_user_sgpr_count 2
  .amdhsa_user_sgpr_kernarg_segment_ptr 1
  .amdhsa_system_sgpr_workgroup_id_x 1
  .amdhsa_float_denorm_mode_32 3
.end_amdhsa_kernel
"""
    return "\n".join(head) + "\n" + e.text() + tail

if __name__ == "__main__":
    out = sys.argv[1]
    for a in sys.argv[2:]:
        k, v = a.split("=")
        cur = getattr(O, k, None)
        setattr(O, k, (v == "1") if isinstance(cur, bool) else (int(v) if isinstance(cur, int) or cur is None else v))
    txt = build()
    open(out, "w").write(txt)
    print(f"wrote {out}: {len(txt)} bytes, nops {e.nnop}")
```

```python
import sys, os
sys.path.insert(0, os.path.dirname(os.path.abspath(__file__)))
from emit import Emitter

NAME = "sequential_preLN__sliding_block_cached__geglu_ffn__decode_kernel"

class Opt:
    diag = False
    win = 6
    igo = 8
    nt = "nt"
    slowres = 3
    budget = 200000
    prefetch = True
    pad = 0
O = Opt()

H1, H15, H3B, H2, H3A, H4 = 0xE8000, 0x10000, 0x14000, 0x20000, 0x60000, 0x84000
FL, EPOCH = 0xD8000, 0xE0000
TAGM = 0x3ff
F_TAG, F_Q, F_FAC, CNT_O, F_GOE, F_GOL, F_X, CNT_GU = 0, 4, 8, 12, 16, 20, 24, 28
L_TAG = 32
L_LN1, L_Q, L_FAC, L_OP, L_XLN2, L_GUP = 0x100, 0x600, 0x800, 0x900, 0x1900, 0x1E00
LDS_BYTES = 0x1E00 + 64*48

sX, sK, sV, sWQ, sWO, sBX, sWG, sWU, sWD, sOUT, sDBG, sWS = 4, 6, 8, 10, 12, 14, 16, 18, 20, 22, 24, 26
sJ, sS, sBUD = 28, 29, 30
sT0, sT1, sT2, sT3 = 48, 49, 50, 51
MARK = -1
LOG2E = 0x3fb8aa3b
e = Emitter()
I = e.I
uid = [0]
def L(p):
    uid[0] += 1
    return f"L_{p}_{uid[0]}"

def sp(r): return f"s[{r}:{r+1}]"
def vr(r, n=4): return f"v[{r}:{r+n-1}]"

def add64(d, b, off):
    I(f"s_add_u32 s{d}, s{b}, {off}")
    I(f"s_addc_u32 s{d+1}, s{b+1}, 0")

def srd(d, base, nrec):
    if d != base: I(f"s_mov_b32 s{d}, s{base}")
    I(f"s_and_b32 s{d+1}, s{base+1}, 0xffff")
    I(f"s_mov_b32 s{d+2}, {nrec}")
    I(f"s_mov_b32 s{d+3}, 0x20000")

nst = [0]
def stamp(k):
    if O.diag:
        I(f"s_memrealtime s[{64+2*k}:{65+2*k}]")

def stamps_out(role, n):
    if not O.diag: return
    I("s_waitcnt lgkmcnt(0)")
    I("s_mov_b64 exec, 1")
    add64(62, sWS, "0x20000000")
    I(f"s_add_u32 s61, s2, {role*256}")
    I("s_lshl_b32 s61, s61, 6")
    add64(62, 62, "s61")
    I("v_mov_b32 v2, 0")
    for k in range(n):
        I(f"v_mov_b32 v4, s{64+2*k}\nv_mov_b32 v5, s{65+2*k}")
        I(f"global_store_dwordx2 v2, v[4:5], s[62:63] offset:{8*k}")
        I("s_nop 1")
    I("s_mov_b64 exec, -1")

def budget(done):
    I(f"s_cmp_eq_u32 s{sBUD}, 0")
    e.raw(f"  s_cbranch_scc1 {done}"); e._advance(1)
    I(f"s_sub_u32 s{sBUD}, s{sBUD}, 1")

def lds_spin(addr, val, vt=2, va=3, cmp="ge"):
    lp, done = L("spin"), L("spun")
    I(f"v_mov_b32 v{va}, {addr}")
    e.settle()
    e.label(lp)
    I(f"ds_read_b32 v{vt}, v{va}")
    budget(done)
    I("s_waitcnt lgkmcnt(0)")
    I(f"v_readfirstlane_b32 s{sT3}, v{vt}")
    I(f"s_cmp_ge_u32 s{sT3}, {val}")
    e.raw(f"  s_cbranch_scc0 {lp}"); e._advance(1)
    e.label(done)
    I("s_waitcnt lgkmcnt(0)")
    e.lgq = []

def lds_set(addr, val=1, vt=2, va=3):
    I(f"v_mov_b32 v{va}, {addr}\nv_mov_b32 v{vt}, {val}")
    I(f"ds_write_b32 v{va}, v{vt}")

def poll(loads, regs, vt):
    lp, done = L("poll"), L("polled")
    e.vm_all() if e.vmq else None
    e.settle()
    e.label(lp)
    for t in loads: I(t)
    budget(done)
    I("s_waitcnt vmcnt(0)")
    r = list(regs)
    I(f"v_max3_u32 v{vt}, v{r[0]}, v{r[1]}, v{r[2]}")
    r = r[3:]
    while len(r) >= 2:
        I(f"v_max3_u32 v{vt}, v{vt}, v{r[0]}, v{r[1]}"); r = r[2:]
    if r: I(f"v_max_u32 v{vt}, v{vt}, v{r[0]}")
    I(f"v_cmp_eq_u32 vcc, -1, v{vt}")
    e.raw(f"  s_cbranch_vccnz {lp}"); e._advance(1)
    e.label(done)
    I("s_waitcnt vmcnt(0)")
    e.vmq = []

def poll_tag(loads, regs, vt, vtag):
    lp, done = L("tpoll"), L("tpolled")
    e.settle()
    e.label(lp)
    for t in loads: I(t)
    budget(done)
    I("s_waitcnt vmcnt(0)")
    r = list(regs)
    I(f"v_xor_b32 v{vt}, v{r[0]}, v{vtag}")
    for x in r[1:]:
        I(f"v_bitop3_b32 v{vt}, v{vt}, v{x}, v{vtag} bitop3:0xf6")
    I(f"v_and_b32 v{vt}, {TAGM:#x}, v{vt}")
    I(f"v_cmp_ne_u32 vcc, 0, v{vt}")
    e.raw(f"  s_cbranch_vccnz {lp}"); e._advance(1)
    e.label(done)
    I("s_waitcnt vmcnt(0)")
    e.vmq = []
    for x in r: I(f"v_and_b32 v{x}, {(~TAGM) & 0xffffffff:#x}, v{x}")

def tag4(r, vtag):
    I(f"s_movk_i32 s{sT3}, {TAGM:#x}")
    for k in range(4): I(f"v_bfi_b32 v{r+k}, s{sT3}, v{vtag}, v{r+k}")

def rows_allreduce(op, vs):
    for k in (8, 4, 2, 1):
        for v in vs:
            I(f"v_{op}_f32_dpp v{v}, v{v}, v{v} row_ror:{k} row_mask:0xf bank_mask:0xf")

def cross_allreduce(op, vs, ts):
    for sw in ("v_permlane16_swap_b32", "v_permlane32_swap_b32"):
        for v, t in zip(vs, ts): I(f"v_mov_b32 v{t}, v{v}")
        for v, t in zip(vs, ts): I(f"{sw} v{v}, v{t}")
        for v, t in zip(vs, ts): I(f"v_{op}_f32 v{v}, v{v}, v{t}")

def allreduce(op, vs, ts):
    rows_allreduce(op, vs); cross_allreduce(op, vs, ts)

def rscatter4(r):
    I(f"v_permlane32_swap_b32 v{r[0]}, v{r[2]}")
    I(f"v_permlane32_swap_b32 v{r[1]}, v{r[3]}")
    I(f"v_add_f32 v{r[0]}, v{r[0]}, v{r[2]}")
    I(f"v_add_f32 v{r[1]}, v{r[1]}, v{r[3]}")
    I(f"v_permlane16_swap_b32 v{r[0]}, v{r[1]}")
    I(f"v_add_f32 v{r[0]}, v{r[0]}, v{r[1]}")

def rne1(v, t):
    I(f"v_cvt_pk_bf16_f32 v{t}, v{v}, v{v}")
    I(f"v_lshlrev_b32 v{v}, 16, v{t}")

def rne2(a, b, t):
    I(f"v_cvt_pk_bf16_f32 v{t}, v{a}, v{b}")
    I(f"v_lshlrev_b32 v{a}, 16, v{t}")
    I(f"v_and_b32 v{b}, 0xffff0000, v{t}")

SEL = 4
def make_sel(t):
    m, b, h, c = t, t+1, t+2, t+3
    I(f"v_and_b32 v{m}, 15, v0")
    I(f"v_lshrrev_b32 v{b}, 3, v{m}")
    I(f"v_mul_u32_u24 v{b}, 0x0202, v{b}")
    I(f"v_add_u32 v{b}, 0x0100, v{b}")
    I(f"v_lshlrev_b32 v{h}, 16, v{b}")
    I(f"v_or_b32 v{h}, 0x0c0c, v{h}")
    I(f"v_or_b32 v{b}, 0x0c0c0000, v{b}")
    I(f"v_and_b32 v{c}, 1, v{m}")
    I(f"v_cmp_eq_u32 vcc, 1, v{c}")
    I(f"v_cndmask_b32 v{b}, v{b}, v{h}, vcc")
    I(f"v_bfe_u32 v{m}, v{m}, 1, 2")
    I(f"v_mov_b32 v{c}, 0x0c0c0c0c")
    for d in range(4):
        I(f"v_cmp_eq_u32 vcc, {d}, v{m}")
        I(f"v_cndmask_b32 v{SEL+d}, v{c}, v{b}, vcc")

def build_a(a, src):
    for d in range(4):
        I(f"v_perm_b32 v{a+d}, v{src}, v{src}, v{SEL+d}")

def mfma(acc, a, b, first=False):
    c = "0" if first else vr(acc)
    I(f"v_mfma_f32_16x16x32_bf16 {vr(acc)}, {vr(a)}, {vr(b)}, {c}")

def layernorm(f, nA, nB, maskB, t, pairs_out):
    s, u, mb, rs = t, t+1, t+2, t+3
    I(f"v_add_f32 v{s}, v{f[0]}, v{f[1]}")
    for x in f[2:]: I(f"v_add_f32 v{s}, v{s}, v{x}")
    allreduce("add", [s], [u])
    I(f"v_mul_f32 v{s}, 0x3ae38e39, v{s}")
    I(f"v_mov_b32 v{mb}, v{s}")
    rne1(mb, u)
    I(f"v_sub_f32 v{u}, v{f[0]}, v{s}")
    I(f"v_mul_f32 v{rs}, v{u}, v{u}")
    for x in f[1:nA]:
        I(f"v_sub_f32 v{u}, v{x}, v{s}")
        I(f"v_fmac_f32 v{rs}, v{u}, v{u}")
    I(f"s_mov_b64 exec, {maskB}")
    for x in f[nA:]:
        I(f"v_sub_f32 v{u}, v{x}, v{s}")
        I(f"v_fmac_f32 v{rs}, v{u}, v{u}")
    I("s_mov_b64 exec, -1")
    allreduce("add", [rs], [u])
    I(f"v_mul_f32 v{rs}, 0x3ae38e39, v{rs}")
    rne1(rs, u)
    I(f"v_add_f32 v{rs}, 0x3727c5ac, v{rs}")
    rne1(rs, u)
    I(f"v_sqrt_f32 v{rs}, v{rs}")
    rne1(rs, u)
    I(f"v_rcp_f32 v{rs}, v{rs}")
    for k in range(0, len(f), 2):
        a, b = f[k], f[k+1]
        I(f"v_sub_f32 v{a}, v{a}, v{mb}\nv_sub_f32 v{b}, v{b}, v{mb}")
        rne2(a, b, u)
        I(f"v_mul_f32 v{a}, v{a}, v{rs}\nv_mul_f32 v{b}, v{b}, v{rs}")
        I(f"v_cvt_pk_bf16_f32 v{pairs_out[k//2]}, v{a}, v{b}")

def prologue():
    e.raw(f".globl {NAME}\n.p2align 8\n.type {NAME},@function\n{NAME}:")
    I("s_cmp_ge_u32 s2, 256")
    I("s_cbranch_scc1 L_end")
    I("s_load_dwordx16 s[4:19], s[0:1], 0")
    I("s_load_dwordx8 s[20:27], s[0:1], 64")
    if O.pad: I("s_memrealtime s[90:91]")
    if O.diag:
        for k in range(66, 88): I(f"s_mov_b32 s{k}, 0")
    stamp(0)
    I("v_lshrrev_b32 v1, 6, v0")
    I("v_and_b32 v0, 63, v0")
    I("v_readfirstlane_b32 s3, v1")
    I("v_lshlrev_b32 v2, 2, v0\nv_mov_b32 v3, 0")
    I("ds_write_b32 v2, v3")
    I("s_and_b32 s28, s2, 7\ns_lshl_b32 s28, s28, 1\ns_bfe_u32 s29, s2, 0x10003\ns_add_u32 s28, s28, s29")
    I("s_lshr_b32 s29, s2, 4")
    I(f"s_mov_b32 s{sBUD}, {O.budget}")
    I("s_waitcnt lgkmcnt(0)")
    I("s_cmp_eq_u32 s3, 0\ns_cbranch_scc1 L_T0")
    I("s_barrier")
    I("s_cmp_eq_u32 s3, 1\ns_cbranch_scc1 L_C")
    I("s_cmp_ge_u32 s3, 6\ns_cbranch_scc1 L_T")

def role_A():
    KB, VB = 40, 104
    def KR(t, ee, l): return KB + 4*(4*t + 2*ee + l)
    def VR(i): return VB + 4*i
    QA, S0, S1, P = 8, 16, 17, 18
    ACC = 28
    I("s_setprio 2")
    I("s_sub_u32 s3, s3, 2")
    I("v_bfe_u32 v8, v0, 1, 3\nv_lshlrev_b32 v8, 8, v8")
    I("v_lshrrev_b32 v9, 4, v0")
    I("v_and_b32 v10, 1, v0")
    I("v_lshl_add_u32 v11, v9, 1, v10\nv_lshl_add_u32 v1, v11, 4, v8")
    I("v_xor_b32 v10, 1, v10\nv_lshl_add_u32 v11, v9, 1, v10\nv_lshl_add_u32 v2, v11, 4, v8")
    I("v_and_b32 v10, 15, v0\nv_lshlrev_b32 v10, 4, v10\nv_lshl_add_u32 v3, v9, 12, v10")
    I("s_lshl_b32 s48, s28, 24\ns_lshl_b32 s49, s29, 16\ns_add_u32 s48, s48, s49\ns_lshl_b32 s49, s3, 14\ns_add_u32 s48, s48, s49")
    I(f"s_add_u32 s48, s48, {61440*256}")
    I("s_movk_i32 s40, 0x1000\ns_movk_i32 s41, 0x2000\ns_movk_i32 s42, 0x3000")
    add64(32, sK, "s48"); srd(32, 32, 16384)
    add64(36, sV, "s48"); srd(36, 36, 16384)
    seq = [("K", k) for k in range(16)] + [("V", i) for i in range(16)]
    def issue(n):
        kind, k = seq[n]
        if kind == "K":
            t, ee, l = k >> 2, (k >> 1) & 1, k & 1
            so = "0" if t == 0 else f"s{39+t}"
            e.vm(f"buffer_load_dwordx4 {vr(KR(t,ee,l))}, v{1+ee}, s[32:35], {so} offen offset:{ee*2048+l*128} {O.nt}", ("K", k))
        else:
            e.vm(f"buffer_load_dwordx4 {vr(VR(k))}, v3, s[36:39], 0 offen offset:{256*(8*(k&1)+(k>>1))} {O.nt}", ("V", k))
    for n in range(O.win): issue(n)
    stamp(1)
    make_sel(20)
    nxt = O.win
    while nxt < 16 + O.win:
        e.vm_wait_n(O.win - 1); issue(nxt); nxt += 1
    e.vm_wait(("K", 15))
    stamp(2)
    lds_spin(F_Q, 1, 20, 21)
    stamp(3)
    I("v_and_b32 v20, 1, v0\nv_lshlrev_b32 v20, 8, v20")
    I("v_bfe_u32 v21, v0, 1, 1")
    I("v_lshrrev_b32 v22, 4, v0\nv_lshl_add_u32 v21, v22, 1, v21")
    I(f"v_lshl_add_u32 v20, v21, 4, v20")
    I("s_mov_b32 s46, 0xaaaaaaaa\ns_mov_b32 s47, 0xaaaaaaaa")
    e.lg(f"ds_read_b128 {vr(QA)}, v20 offset:{L_Q}", "qa0")
    e.lg(f"ds_read_b128 {vr(QA+4)}, v20 offset:{L_Q+128}", "qa1")
    e.lg_wait("qa1")
    DA = VR(12)
    extra = [16+6, 16+7, 16+8, 16+9]
    for t in range(4):
        d0, d1 = DA + 8*(t & 1), DA + 8*(t & 1) + 4
        for ee, d in ((0, d0), (1, d1)):
            mfma(d, QA, KR(t, ee, 0), first=True)
            mfma(d, QA+4, KR(t, ee, 1))
        if nxt in extra: issue(nxt); nxt += 1
        if t >= 1: merge_tile(t-1, DA, S0)
    merge_tile(3, DA, S0)
    rne2(S0, S1, 20)
    I(f"v_mul_f32 v{S0}, 0x3db504f3, v{S0}\nv_mul_f32 v{S1}, 0x3db504f3, v{S1}")
    rne2(S0, S1, 20)
    M0, L0, M1, L1 = 24, 25, 26, 27
    I(f"v_mov_b32 v{M0}, v{S0}\nv_mov_b32 v{M1}, v{S1}")
    allreduce("max", [M0, M1], [20, 21])
    I(f"v_sub_f32 v{S0}, v{S0}, v{M0}\nv_sub_f32 v{S1}, v{S1}, v{M1}")
    I(f"v_mul_f32 v{S0}, {LOG2E:#x}, v{S0}\nv_mul_f32 v{S1}, {LOG2E:#x}, v{S1}")
    I(f"v_exp_f32 v{S0}, v{S0}\nv_exp_f32 v{S1}, v{S1}")
    I(f"v_cvt_pk_bf16_f32 v{P}, v{S0}, v{S1}")
    I(f"v_mov_b32 v{L0}, v{S0}\nv_mov_b32 v{L1}, v{S1}")
    lds_set(F_GOE, 1, 20, 21)
    allreduce("add", [L0, L1], [20, 21])
    I("s_lshl_b32 s48, s28, 10\ns_lshl_b32 s49, s29, 6\ns_add_u32 s48, s48, s49\ns_lshl_b32 s49, s3, 4\ns_add_u32 s48, s48, s49")
    I(f"s_add_u32 s48, s48, {H15}")
    add64(44, sWS, "s48")
    I(f"v_mov_b32 v20, {L_TAG}")
    e.lg("ds_read_b32 v21, v20", "tag"); e.lg_wait("tag")
    I("v_and_b32 v21, 0xffff, v21")
    I(f"v_or_b32 v{M0}, v{M0}, v21\nv_or_b32 v{M1}, v{M1}, v21")
    I("v_mov_b32 v20, 0")
    I("s_mov_b64 exec, 1")
    e.vm(f"global_store_dwordx4 v20, {vr(M0)}, s[44:45] sc1", "ml")
    I("s_mov_b64 exec, -1")
    stamp(4)
    for i in range(16):
        e.vm_wait(("V", i))
        a = QA + 4*(i & 1)
        I(f"v_mov_b32_dpp v{20+(i&1)}, v{P} row_newbcast:{i} row_mask:0xf bank_mask:0xf")
        build_a(a, 20 + (i & 1))
        mfma(ACC, a, VR(i), first=(i == 0))
        while nxt < 32 and nxt - 16 <= i + O.win:
            issue(nxt); nxt += 1
        if i == O.igo:
            lds_set(F_GOL, 1, 22, 23)
    stamp(5)
    lds_spin(F_FAC, 1, 20, 21)
    I(f"s_lshl_b32 s48, s3, 3\ns_add_u32 s48, s48, {L_FAC}\nv_mov_b32 v20, s48")
    e.lg("ds_read_b64 v[22:23], v20", "fac")
    I("v_lshrrev_b32 v21, 4, v0")
    I("v_and_b32 v24, 15, v0\nv_lshlrev_b32 v24, 1, v24")
    I("v_and_b32 v25, 1, v21\nv_add_u32 v24, v24, v25")
    I("v_lshrrev_b32 v25, 1, v21\nv_lshl_add_u32 v24, v25, 5, v24")
    I(f"s_lshl_b32 s48, s3, 10\ns_add_u32 s48, s48, {L_OP}")
    I("v_lshl_add_u32 v24, v24, 4, s48")
    I("s_mov_b32 s48, 0\ns_mov_b32 s49, -1")
    e.lg_wait("fac")
    I("v_cndmask_b32 v22, v22, v23, s[48:49]")
    for r in range(4): I(f"v_mul_f32 v{ACC+r}, v{ACC+r}, v22")
    e.lg(f"ds_write_b128 v24, {vr(ACC)}", "op")
    I(f"v_mov_b32 v20, {CNT_O}\nv_mov_b32 v21, 1")
    e.lg_wait("op")
    I("s_mov_b64 exec, 1")
    e.lg("ds_add_rtn_u32 v21, v20, v21", "cnt")
    e.lg_wait("cnt")
    I("v_readfirstlane_b32 s48, v21")
    I("s_mov_b64 exec, -1")
    I("s_cmp_eq_u32 s48, 3")
    e.branch("s_cbranch_scc0 L_A_done")
    I(f"v_lshlrev_b32 v20, 4, v0")
    for w in range(4): e.lg(f"ds_read_b128 {vr(40+4*w)}, v20 offset:{L_OP+1024*w}", ("o", w))
    I("v_lshrrev_b32 v21, 4, v0\nv_lshlrev_b32 v21, 12, v21\nv_and_b32 v22, 15, v0\nv_lshl_add_u32 v21, v22, 4, v21")
    I(f"s_lshl_b32 s48, s28, 14\ns_lshl_b32 s49, s29, 8\ns_add_u32 s48, s48, s49\ns_add_u32 s48, s48, {H2}")
    add64(44, sWS, "s48")
    e.lg_wait(("o", 1))
    for r in range(4): I(f"v_add_f32 v{40+r}, v{40+r}, v{44+r}")
    e.lg_wait(("o", 3))
    for r in range(4): I(f"v_add_f32 v{48+r}, v{48+r}, v{52+r}")
    for r in range(4): I(f"v_add_f32 v{40+r}, v{40+r}, v{48+r}")
    e.vm(f"global_store_dwordx4 v21, {vr(40)}, s[44:45] sc1", "h2")
    e.label("L_A_done")
    stamp(6)
    stamps_out(2, 7) if False else None
    if O.diag:
        I("s_add_u32 s60, s3, 2")
        stamps_dyn(7)
    I("s_endpgm")

def stamps_dyn(n):
    n = 12
    I("s_memrealtime s[86:87]")
    I("s_waitcnt lgkmcnt(0)")
    I("s_mov_b64 exec, 1")
    add64(62, sWS, "0x20000000")
    I("s_lshl_b32 s61, s60, 8\ns_add_u32 s61, s61, s2\ns_lshl_b32 s61, s61, 7")
    add64(62, 62, "s61")
    I("v_mov_b32 v2, 0")
    for k in range(n):
        I(f"v_mov_b32 v4, s{64+2*k}\nv_mov_b32 v5, s{65+2*k}")
        I(f"global_store_dwordx2 v2, v[4:5], s[62:63] offset:{8*k}")
        I("s_nop 1")

def merge_tile(t, DA, S0):
    d0, d1 = DA + 8*(t & 1), DA + 8*(t & 1) + 4
    for h in range(2):
        I(f"v_cndmask_b32 v{d0+h}, v{d0+h}, v{d1+h}, s[46:47]")
        I(f"v_cndmask_b32 v{d0+2+h}, v{d1+2+h}, v{d0+2+h}, s[46:47]")
    for h in range(2):
        I(f"v_add_f32_dpp v{S0+h}, v{d0+2+h}, v{d0+h} quad_perm:[1,0,3,2] row_mask:{1<<t:#x} bank_mask:0xf")

def role_T0_head():
    WB = 32
    e.label("L_T0")
    I("s_setprio 3")
    I("v_lshlrev_b32 v1, 4, v0")
    I("v_lshrrev_b32 v8, 4, v0\nv_bfe_u32 v9, v0, 3, 1")
    I("v_and_b32 v10, 7, v0\nv_lshlrev_b32 v10, 4, v10")
    I("v_lshl_add_u32 v11, v8, 3, v9\nv_lshl_add_u32 v2, v11, 13, v10")
    I("v_lshl_add_u32 v11, v8, 2, v9\nv_lshl_add_u32 v3, v11, 13, v10")
    I("s_lshr_b32 s48, s29, 2\ns_mul_i32 s49, s48, 0x120000\ns_and_b32 s50, s29, 3\ns_lshl_b32 s50, s50, 7\ns_add_u32 s49, s49, s50")
    I("s_lshl_b32 s50, s28, 9\ns_add_u32 s49, s49, s50")
    I(f"s_mov_b32 s32, s{sX}"); srd(32, sX, 1152)
    e.vm(f"buffer_load_dwordx4 {vr(8)}, v1, s[32:35], 0 offen", "xa")
    e.vm(f"buffer_load_dwordx4 {vr(12)}, v1, s[32:35], 0 offen offset:1024", "xb")
    add64(36, sWQ, "s49"); srd(36, 36, 144*8192)
    steps = []
    for Ig in range(4):
        for ii in range(4): steps.append((2, (32*Ig + 2*ii)*8192))
    steps += [(3, 128*8192), (3, 130*8192)]
    for k, (vo, so) in enumerate(steps):
        if so: I(f"s_mov_b32 s50, {so}")
        e.vm(f"buffer_load_dwordx4 {vr(WB+4*k)}, v{vo}, s[36:39], {'s50' if so else '0'} offen {O.nt}", ("wq", k))
    I("s_barrier")
    stamp(1)
    e.vm_wait("xb")
    f = list(range(16, 32))
    for k in range(8):
        src = 8 + k//2 if k < 8 else 0
    for half, base in ((0, 8), (1, 12)):
        for d in range(4):
            I(f"v_lshlrev_b32 v{16+8*half+2*d}, 16, v{base+d}")
            I(f"v_and_b32 v{17+8*half+2*d}, 0xffff0000, v{base+d}")
    layernorm(f, 8, 8, "0xff", 104, [8, 9, 10, 11, 12, 13, 14, 15])
    e.lg(f"ds_write_b128 v1, {vr(8)} offset:{L_LN1}", "ln")
    I("s_mov_b64 exec, 0xff")
    e.lg(f"ds_write_b128 v1, {vr(12)} offset:{L_LN1+1024}", "ln2")
    I("s_mov_b64 exec, -1")
    make_sel(104)
    I("v_lshrrev_b32 v8, 4, v0\nv_lshlrev_b32 v9, 4, v8\nv_lshlrev_b32 v10, 3, v8")
    I(f"s_mul_i32 s50, s48, 288\ns_add_u32 s50, s50, {L_LN1}")
    I("v_add_u32 v9, s50, v9\nv_add_u32 v10, s50, v10")
    e.lg_all()
    for Ig in range(4): e.lg(f"ds_read_b128 {vr(108+4*Ig)}, v9 offset:{64*Ig}", ("pk", Ig))
    e.lg(f"ds_read_b64 v[124:125], v10 offset:256", ("pk", 4))
    stamp(2)
    ACC = 16
    for k in range(18):
        Ig, ii = (k >> 2, k & 3) if k < 16 else (4, k - 16)
        if ii == 0: e.lg_wait(("pk", Ig))
        a = 8 + 4*(k & 1) if False else (20 + 4*(k & 1))
        build_a(a, 108 + 4*Ig + ii)
        e.vm_wait(("wq", k))
        mfma(ACC, a, WB + 4*k, first=(k == 0))
    stamp(3)
    half_combine(ACC, 20)
    lds_spin(F_TAG, 1, 24, 25)
    I(f"v_mov_b32 v24, {L_TAG}")
    e.lg("ds_read_b32 v25, v24", "tag"); e.lg_wait("tag")
    I(f"v_mov_b32 v28, v{ACC}\nv_mov_b32 v29, v{ACC+1}\nv_mov_b32 v30, v25\nv_mov_b32 v31, v25")
    I(f"v_mov_b32 v20, v{ACC+2}\nv_mov_b32 v21, v{ACC+3}\nv_mov_b32 v22, v25\nv_mov_b32 v23, v25")
    I("v_and_b32 v24, 7, v0\nv_lshlrev_b32 v24, 1, v24\nv_lshrrev_b32 v25, 4, v0\nv_add_u32 v24, v24, v25\nv_lshlrev_b32 v24, 4, v24")
    I("s_lshl_b32 s49, s28, 13\ns_lshl_b32 s50, s48, 11\ns_add_u32 s49, s49, s50\ns_and_b32 s50, s29, 3\ns_lshl_b32 s50, s50, 8\ns_add_u32 s49, s49, s50")
    I(f"s_add_u32 s49, s49, {H1}")
    add64(44, sWS, "s49")
    I("s_mov_b32 exec_lo, 0x00ff00ff\ns_mov_b32 exec_hi, 0")
    e.vm(f"global_store_dwordx4 v24, v[28:31], s[44:45] sc1", "h1")
    e.vm(f"global_store_dwordx4 v24, v[20:23], s[44:45] offset:1024 sc1", "h1b")
    I("s_mov_b64 exec, -1")
    stamp(4)
    I("s_mov_b32 s3, 0")
    e.branch("s_branch L_Tail")

def half_combine(acc, t):
    for r in range(4): I(f"v_mov_b32 v{t+r}, v{acc+r}")
    for r in range(4): I(f"v_permlane32_swap_b32 v{acc+r}, v{t+r}")
    for r in range(4): I(f"v_add_f32_dpp v{acc+r}, v{t+r}, v{acc+r} row_ror:8 row_mask:0xf bank_mask:0xf")

def role_C():
    e.comment("===== wave 1: hand-off bookkeeping")
    e.label("L_C")
    I("s_setprio 3")
    I("v_lshlrev_b32 v1, 4, v0")
    for r in range(4): I(f"v_mov_b32 v{12+r}, -1")
    add64(34, sWS, EPOCH)
    I("s_load_dword s56, s[34:35], 0")
    lw, lz, lc = L("cwo"), L("cz"), L("cdone")
    I("s_cmp_ge_u32 s29, 13"); e.branch(f"s_cbranch_scc1 {lz}")
    I("s_cmp_ge_u32 s29, 9"); e.branch(f"s_cbranch_scc0 {lc}")
    I(f"s_lshl_b32 s48, s28, 2\ns_add_u32 s48, s48, s29\ns_sub_u32 s48, s48, 9\ns_lshl_b32 s48, s48, 12\ns_add_u32 s48, s48, {H2}")
    add64(32, sWS, "s48")
    for k in range(4): I(f"global_store_dwordx4 v1, v[12:15], s[32:33] offset:{1024*k} sc1")
    e.branch(f"s_branch {lc}")
    e.label(lz)
    I("s_mul_i32 s48, s28, 3\ns_add_u32 s48, s48, s29\ns_sub_u32 s48, s48, 13")
    I(f"s_mul_i32 s49, s48, 3072\ns_add_u32 s49, s49, {H3A}")
    add64(32, sWS, "s49")
    for k in range(3): I(f"global_store_dwordx4 v1, v[12:15], s[32:33] offset:{1024*k} sc1")
    I(f"s_mul_i32 s49, s48, 6912\ns_add_u32 s49, s49, {H4}")
    add64(32, sWS, "s49")
    for k in range(4): I(f"global_store_dwordx4 v1, v[12:15], s[32:33] offset:{1024*k} sc1")
    add64(32, 32, 4096)
    for k in range(2): I(f"global_store_dwordx4 v1, v[12:15], s[32:33] offset:{1024*k} sc1")
    I(f"s_mul_i32 s49, s48, 768\ns_add_u32 s49, s49, {H3B}")
    add64(36, sWS, "s49")
    I("s_mov_b32 exec_lo, -1\ns_mov_b32 exec_hi, 0xffff")
    I(f"global_store_dwordx4 v1, v[12:15], s[32:33] offset:2048 sc1")
    I(f"global_store_dwordx4 v1, v[12:15], s[36:37] sc1")
    I("s_mov_b64 exec, -1")
    e.label(lc)
    if O.prefetch:
        lp = L("pc")
        I("s_getpc_b64 s[32:33]")
        e.label(lp)
        I(f"s_sub_u32 s32, s32, {lp}-{NAME}\ns_subb_u32 s33, s33, 0")
        I("s_lshr_b32 s48, s2, 3\ns_and_b32 s48, s48, PF_MASK\ns_lshl_b32 s48, s48, 10")
        I("v_add_u32 v2, s48, v1\nv_min_u32 v2, CODE_BYTES-16, v2")
        I("global_load_dwordx4 v[16:19], v2, s[32:33]")
    stamp(1)
    I("s_waitcnt lgkmcnt(0)")
    I("s_add_u32 s56, s56, 1")
    I(f"v_mov_b32 v40, s56\nv_mov_b32 v41, s56\nv_mov_b32 v42, s56\nv_mov_b32 v43, s56")
    I(f"v_mov_b32 v3, {L_TAG}\nds_write_b32 v3, v40\ns_waitcnt lgkmcnt(0)")
    lds_set(F_TAG, 1, 2, 3)
    lf = L("noflag"); lfz = L("zflag")
    I("s_cmp_ge_u32 s29, 9"); e.branch(f"s_cbranch_scc0 {lf}")
    I("s_waitcnt vmcnt(0)")
    I("s_cmp_ge_u32 s29, 13"); e.branch(f"s_cbranch_scc1 {lfz}")
    I(f"s_lshl_b32 s48, s28, 10\ns_add_u32 s49, s29, 39\ns_lshl_b32 s49, s49, 4\ns_add_u32 s48, s48, s49\ns_add_u32 s48, s48, {FL}")
    add64(32, sWS, "s48")
    I("v_mov_b32 v2, 0\ns_mov_b64 exec, 1")
    I("global_store_dwordx4 v2, v[40:43], s[32:33] sc1")
    I("s_mov_b64 exec, -1")
    e.branch(f"s_branch {lf}")
    e.label(lfz)
    I(f"s_mul_i32 s48, s28, 3\ns_add_u32 s48, s48, s29\ns_sub_u32 s48, s48, 13\ns_lshl_b32 s48, s48, 4\ns_add_u32 s48, s48, {FL}")
    add64(32, sWS, "s48")
    I("v_lshlrev_b32 v2, 10, v0\ns_mov_b64 exec, 0xffff")
    I("global_store_dwordx4 v2, v[40:43], s[32:33] sc1")
    I("s_mov_b64 exec, -1")
    e.label(lf)
    stamp(2)
    I(f"s_lshl_b32 s48, s28, 13\ns_add_u32 s48, s48, {H1}"); add64(32, sWS, "s48")
    add64(34, 32, 4096)
    lp, dn = L("qp"), L("qpd")
    e.settle(); e.label(lp)
    for k in range(8):
        I(f"global_load_dwordx4 {vr(44+4*k)}, v1, s[{32+2*(k>>2)}:{33+2*(k>>2)}] offset:{1024*(k&3)} sc1")
    budget(dn)
    I("s_waitcnt vmcnt(0)")
    I("v_xor_b32 v8, v46, v40")
    for k in range(8):
        for x in ((47,) if k == 0 else (46+4*k, 47+4*k)): I(f"v_bitop3_b32 v8, v8, v{x}, v40 bitop3:0xf6")
    I("v_cmp_ne_u32 vcc, 0, v8"); e.raw(f"  s_cbranch_vccnz {lp}"); e._advance(1)
    e.label(dn)
    I("s_waitcnt vmcnt(0)")
    for half in range(2):
        for r in range(2):
            d = 16 + 2*half + r
            I(f"v_add_f32 v{d}, v{44+4*half+r}, v{52+4*half+r}")
            I(f"v_add_f32 v{20+2*half+r}, v{60+4*half+r}, v{68+4*half+r}")
    for r in range(4): I(f"v_add_f32 v{16+r}, v{16+r}, v{20+r}")
    I("v_cvt_pk_bf16_f32 v8, v16, v17\nv_cvt_pk_bf16_f32 v9, v18, v19")
    I("v_lshlrev_b32 v2, 3, v0")
    I(f"ds_write_b64 v2, v[8:9] offset:{L_Q}")
    I("s_waitcnt lgkmcnt(0)")
    lds_set(F_Q, 1, 2, 3)
    stamp(3)
    lp, dn = L("af"), L("afd")
    I(f"s_lshl_b32 s48, s28, 10\ns_add_u32 s48, s48, {FL}"); add64(32, sWS, "s48")
    e.settle(); e.label(lp)
    I("s_mov_b32 exec_lo, -1\ns_mov_b32 exec_hi, 0xfffff")
    I("global_load_dwordx4 v[16:19], v1, s[32:33] sc1")
    budget(dn)
    I("s_waitcnt vmcnt(0)")
    I("v_xor_b32 v8, v16, v40")
    for x in (17, 18, 19): I(f"v_bitop3_b32 v8, v8, v{x}, v40 bitop3:0xf6")
    I("v_cmp_ne_u32 vcc, 0, v8"); e.raw(f"  s_cbranch_vccnz {lp}"); e._advance(1)
    e.label(dn)
    I("s_mov_b64 exec, -1")
    I("s_waitcnt vmcnt(0)")
    stamp(8)
    I(f"s_lshl_b32 s48, s28, 10\ns_add_u32 s48, s48, {H15}"); add64(32, sWS, "s48")
    lp, dn = L("sp"), L("spd")
    e.settle(); e.label(lp)
    I("global_load_dwordx4 v[16:19], v1, s[32:33] sc1")
    budget(dn)
    I("s_waitcnt vmcnt(0)")
    I("v_xor_b32 v8, v16, v40")
    I("v_bitop3_b32 v8, v8, v18, v40 bitop3:0xf6")
    I("v_and_b32 v8, 0xffff, v8")
    I("v_cmp_ne_u32 vcc, 0, v8"); e.raw(f"  s_cbranch_vccnz {lp}"); e._advance(1)
    e.label(dn)
    I("s_waitcnt vmcnt(0)")
    I("v_and_b32 v16, 0xffff0000, v16\nv_and_b32 v18, 0xffff0000, v18")
    I("v_mov_b32 v20, v16\nv_mov_b32 v21, v18")
    allreduce("max", [20, 21], [22, 23])
    I("v_sub_f32 v16, v16, v20\nv_sub_f32 v18, v18, v21")
    I(f"v_mul_f32 v16, {LOG2E:#x}, v16\nv_mul_f32 v18, {LOG2E:#x}, v18")
    I("v_exp_f32 v16, v16\nv_exp_f32 v18, v18")
    I("v_mul_f32 v17, v17, v16\nv_mul_f32 v19, v19, v18")
    allreduce("add", [17, 19], [22, 23])
    I("v_rcp_f32 v17, v17\nv_rcp_f32 v19, v19")
    I("v_mul_f32 v16, v16, v17\nv_mul_f32 v17, v18, v19")
    I(f"v_and_b32 v2, 3, v0\nv_lshlrev_b32 v2, 3, v2")
    I("s_lshl_b32 s48, s29, 2\ns_lshl_b64 exec, 0xf, s48")
    I(f"ds_write_b64 v2, v[16:17] offset:{L_FAC}")
    I("s_mov_b64 exec, -1")
    I("s_waitcnt lgkmcnt(0)")
    lds_set(F_FAC, 1, 2, 3)
    stamp(4)
    I("s_cmp_ge_u32 s29, 9"); e.branch("s_cbranch_scc1 L_C_done")
    I("s_mov_b32 s3, 5")
    e.branch("s_branch L_FFN")
    e.label("L_C_done")
    if O.diag:
        I("s_mov_b32 s60, 1"); stamps_dyn(5)
    I("s_endpgm")

def role_T():
    e.comment("===== waves 6..9 (tail index 1..4) and wave 0 after its q slice")
    e.label("L_T")
    I("s_sub_u32 s3, s3, 5")
    make_sel(8)
    e.label("L_Tail")
    I("s_setprio 0")
    I("s_cmp_ge_u32 s29, 13"); e.branch("s_cbranch_scc1 L_RED")
    I("s_cmp_ge_u32 s29, 9"); e.branch("s_cbranch_scc1 L_WO")
    I("s_lshr_b32 s48, s28, 1\ns_mul_i32 s48, s48, 9\ns_add_u32 s48, s48, s29\ns_and_b32 s48, s48, 7")
    l1, l2 = L("goe"), L("go")
    I(f"s_cmp_eq_u32 s48, {O.slowres}"); e.branch(f"s_cbranch_scc1 {l1}")
    lds_spin(F_GOL, 1, 8, 9)
    e.branch(f"s_branch {l2}")
    e.label(l1)
    lds_spin(F_GOE, 1, 8, 9)
    e.label(l2)
    e.branch("s_branch L_FFN")

def colblock_voff(v, rowstride, t):
    I(f"v_lshrrev_b32 v{t}, 4, v0\nv_mul_u32_u24 v{t}, {rowstride}, v{t}")
    I(f"v_and_b32 v{t+1}, 15, v0\nv_lshl_add_u32 v{v}, v{t+1}, 4, v{t}")
    I(f"s_lshl_b32 s48, s3, 8\nv_add_u32 v{v}, s48, v{v}")
    I(f"s_cmp_eq_u32 s3, 4\ns_cselect_b32 s48, 8, 16")
    I(f"v_cmp_gt_u32 vcc, s48, v{t+1}\nv_mov_b32 v{t}, 0x7fffffff")
    I(f"v_cndmask_b32 v{v}, v{t}, v{v}, vcc")

def publish_cols(acc, region, stride, prod_sgpr, t):
    I(f"v_and_b32 v{t}, 15, v0\nv_lshlrev_b32 v{t}, 1, v{t}\nv_lshrrev_b32 v{t+1}, 4, v0\nv_add_u32 v{t}, v{t}, v{t+1}")
    I(f"s_lshl_b32 s48, s3, 5\nv_add_u32 v{t}, s48, v{t}")
    I(f"v_mul_u32_u24 v{t}, {stride}, v{t}")
    I(f"s_lshl_b32 s48, s{prod_sgpr}, 4\ns_add_u32 s48, s48, {region}")
    add64(44, sWS, "s48")
    I("s_cmp_eq_u32 s3, 4\ns_cselect_b32 s48, 0x00ff00ff, -1\ns_mov_b32 exec_lo, s48\ns_mov_b32 exec_hi, 0")

def role_WO():
    WB = 104
    e.label("L_WO")
    lds_spin(F_GOE, 1, 8, 9)
    stamp(5)
    colblock_voff(1, 1152, 8)
    I("s_lshl_b32 s48, s28, 2\ns_add_u32 s48, s48, s29\ns_sub_u32 s52, s48, 9")
    I("s_mul_i32 s48, s52, 73728")
    add64(32, sWO, "s48"); srd(32, 32, 64*1152)
    e.vmq = []
    for i in range(16):
        if i: I(f"s_mov_b32 s48, {4608*i}")
        if i >= O.wowin: e.vm_wait_n(O.wowin - 1)
        e.vm(f"buffer_load_dwordx4 {vr(WB+4*i)}, v1, s[32:35], {'s48' if i else '0'} offen {O.nt}", ("wo", i))
    I(f"s_lshl_b32 s48, s52, 12\ns_add_u32 s48, s48, {H2}")
    add64(36, sWS, "s48")
    I("v_lshlrev_b32 v2, 4, v0")
    publish_cols(0, H3A, 1024, 52, 8)
    I("s_mov_b64 s[54:55], exec\ns_mov_b64 exec, -1")
    lds_spin(F_FAC, 1, 10, 11)
    e.vm_all()
    stamp(6)
    I("s_setprio 3")
    poll([f"global_load_dwordx4 {vr(16+4*k)}, v2, s[36:37] offset:{1024*k} sc1" for k in range(4)], range(16, 32), 10)
    stamp(7)
    for r in range(4):
        I(f"v_add_f32 v{16+r}, v{16+r}, v{20+r}\nv_add_f32 v{24+r}, v{24+r}, v{28+r}")
    for r in range(4): I(f"v_add_f32 v{16+r}, v{16+r}, v{24+r}")
    rscatter4([16, 17, 18, 19])
    I("v_cvt_pk_bf16_f32 v16, v16, v16")
    ACC = 28
    for i in range(16):
        t, a = 18 + (i & 1), 20 + 4*(i & 1)
        I(f"v_mov_b32_dpp v{t}, v16 row_newbcast:{i} row_mask:0xf bank_mask:0xf")
        build_a(a, t)
        mfma(ACC, a, WB + 4*i, first=(i == 0))
    I("s_mov_b64 exec, s[54:55]")
    I(f"global_store_dwordx4 v8, {vr(ACC)}, s[44:45] sc1")
    I("s_mov_b64 exec, -1")
    if O.diag:
        tail_stamps(8)
    I("s_endpgm")

def tail_stamps(n):
    I("s_add_u32 s60, s3, 5\ns_cmp_eq_u32 s3, 0\ns_cselect_b32 s60, 0, s60\ns_cmp_eq_u32 s3, 5\ns_cselect_b32 s60, 1, s60")
    stamps_dyn(n)

def role_RED():
    e.comment("===== column reducers")
    e.label("L_RED")
    I("s_cmp_ge_u32 s3, 3"); e.branch("s_cbranch_scc1 L_RED_done")
    I("s_mul_i32 s48, s28, 3\ns_add_u32 s48, s48, s29\ns_sub_u32 s48, s48, 13\ns_mul_i32 s48, s48, 3\ns_add_u32 s52, s48, s3")
    I("v_lshrrev_b32 v8, 4, v0\nv_lshlrev_b32 v9, 1, v8\ns_lshl_b32 s48, s52, 3\nv_add_u32 v9, s48, v9")
    I(f"global_load_ushort v10, v9, {sp(sX)}")
    I(f"s_lshl_b32 s48, s52, 10\ns_add_u32 s48, s48, {H3A}"); add64(32, sWS, "s48")
    I(f"s_mul_i32 s48, s52, 2304\ns_add_u32 s48, s48, {H4}"); add64(36, sWS, "s48"); srd(36, 36, 2304)
    I("v_lshlrev_b32 v1, 4, v0")
    I(f"v_mul_u32_u24 v11, 2304, v0")
    I(f"s_lshl_b32 s48, s52, 4\ns_add_u32 s48, s48, {H3B}"); add64(40, sWS, "s48")
    lds_spin(F_FAC, 1, 12, 13)
    I("s_waitcnt vmcnt(0)"); e.vmq = []
    I("v_lshlrev_b32 v10, 16, v10")
    stamp(5)
    I("s_setprio 3")
    poll(["global_load_dwordx4 v[16:19], v1, s[32:33] sc1"], range(16, 20), 12)
    stamp(6)
    rscatter4([16, 17, 18, 19])
    rows_allreduce("add", [16])
    rne1(16, 12)
    I("v_add_f32 v10, v10, v16")
    rne1(10, 12)
    I("v_mov_b32 v20, v10\nv_mov_b32 v21, v10")
    I("v_permlane16_swap_b32 v20, v21")
    I("v_mov_b32 v22, v20\nv_mov_b32 v23, v21")
    I("v_permlane32_swap_b32 v20, v22\nv_permlane32_swap_b32 v21, v23")
    I("s_mov_b64 exec, 0xffff")
    I("global_store_dwordx4 v11, v[20:23], s[40:41] sc1")
    I("s_mov_b64 exec, -1")
    stamp(7)
    poll([f"buffer_load_dwordx4 {vr(16+4*k)}, v1, s[36:39], 0 offen offset:{1024*k} sc1" for k in range(3)], range(16, 28), 12)
    stamp(8)
    for r in range(4): I(f"v_add_f32 v{16+r}, v{16+r}, v{20+r}")
    for r in range(4): I(f"v_add_f32 v{16+r}, v{16+r}, v{24+r}")
    rscatter4([16, 17, 18, 19])
    rows_allreduce("add", [16])
    rne1(16, 12)
    I("v_add_f32 v10, v10, v16")
    I("v_cvt_pk_bf16_f32 v10, v10, v10")
    I("s_mov_b32 exec_lo, 0x00010001\ns_mov_b32 exec_hi, 0x00010001")
    I(f"global_store_short v9, v10, {sp(sOUT)}")
    le = L("noep")
    I("s_cmp_eq_u32 s52, 0"); e.branch(f"s_cbranch_scc0 {le}")
    I(f"v_mov_b32 v12, {L_TAG}\nds_read_b32 v13, v12\nv_mov_b32 v14, 0")
    add64(32, sWS, EPOCH)
    I("s_mov_b64 exec, 1\ns_waitcnt lgkmcnt(0)")
    I("global_store_dword v14, v13, s[32:33]")
    e.label(le)
    I("s_mov_b64 exec, -1")
    e.label("L_RED_done")
    if O.pad:
        lp = L("pad")
        e.label(lp)
        I("s_memrealtime s[92:93]\ns_waitcnt lgkmcnt(0)\ns_sub_u32 s92, s92, s90")
        I(f"s_cmp_lt_u32 s92, {O.pad}\ns_cbranch_scc1 {lp}")
    if O.diag:
        tail_stamps(8)
    I("s_endpgm")

def role_FFN():
    GB, DB = 88, 136
    e.label("L_FFN")
    stamp(5)
    I("s_lshr_b32 s48, s28, 1\ns_mul_i32 s48, s48, 9\ns_add_u32 s48, s48, s29\ns_lshl_b32 s48, s48, 6")
    I("s_and_b32 s49, s28, 1\ns_lshl_b32 s49, s49, 5\ns_add_u32 s52, s48, s49")
    I("s_mul_i32 s53, s28, 9\ns_add_u32 s53, s53, s29")
    I("v_lshrrev_b32 v8, 4, v0\nv_bfe_u32 v9, v0, 3, 1\nv_lshl_add_u32 v8, v8, 3, v9")
    I("s_mul_i32 s48, s3, 96\nv_add_u32 v8, s48, v8\nv_mul_u32_u24 v8, 9216, v8")
    I("v_and_b32 v9, 3, v0\nv_lshlrev_b32 v9, 4, v9\ns_lshl_b32 s48, s52, 1\nv_add3_u32 v8, v8, v9, s48")
    I("v_bfe_u32 v9, v0, 2, 1\nv_cmp_eq_u32 vcc, 1, v9")
    I(f"v_mov_b32 v10, s{sWG}\nv_mov_b32 v11, s{sWU}\nv_cndmask_b32 v10, v10, v11, vcc")
    I(f"v_mov_b32 v11, s{sWG+1}\nv_mov_b32 v12, s{sWU+1}\nv_cndmask_b32 v11, v11, v12, vcc")
    I("v_add_co_u32 v10, vcc, v10, v8\nv_addc_co_u32 v11, vcc, 0, v11, vcc")
    I(f"s_mov_b32 s48, {2*9216}\ns_mov_b32 s49, 0\ns_mov_b32 s50, {26*9216}\ns_mov_b32 s51, 0")
    e.vmq = []
    for k in range(12):
        e.vm(f"global_load_dwordx4 {vr(GB+4*k)}, v[10:11], off {O.nt}", ("gu", k))
        if k < 11: I(f"v_lshl_add_u64 v[10:11], v[10:11], 0, {'s[50:51]' if (k & 3) == 3 else 's[48:49]'}")
    lc, lj = L("ffc"), L("ffj")
    I("s_cmp_eq_u32 s3, 5"); e.branch(f"s_cbranch_scc1 {lc}")
    colblock_voff(1, 1152, 8)
    I("s_mul_i32 s48, s52, 1152"); add64(32, sWD, "s48"); srd(32, 32, 32*1152)
    for i in range(8):
        if i: I(f"s_mov_b32 s48, {4608*i}")
        I(f"buffer_load_dwordx4 {vr(DB+4*i)}, v1, s[32:35], {'s48' if i else '0'} offen {O.nt}")
    lds_spin(F_X, 1, 8, 9)
    stamp(6)
    I("s_waitcnt vmcnt(8)")
    e.branch(f"s_branch {lj}")
    e.label(lc)
    I(f"s_and_b32 s48, s53, 15\ns_mul_i32 s48, s48, 2304\ns_add_u32 s48, s48, {H3B}")
    add64(36, sWS, "s48"); srd(36, 36, 2304)
    I("v_lshlrev_b32 v1, 4, v0")
    make_sel(12)
    I("s_setprio 3")
    e.vmq = []
    poll([f"buffer_load_dwordx4 {vr(16+4*k)}, v1, s[36:39], 0 offen offset:{1024*k} sc1" for k in range(3)], range(16, 28), 8)
    stamp(6)
    f = list(range(16, 28))
    layernorm(f, 8, 4, "0xffff", 8, [28, 29, 30, 31, 32, 33])
    I("v_lshlrev_b32 v2, 3, v0")
    I(f"ds_write_b64 v2, v[28:29] offset:{L_XLN2}\nds_write_b64 v2, v[30:31] offset:{L_XLN2+512}")
    I("s_mov_b64 exec, 0xffff")
    I(f"ds_write_b64 v2, v[32:33] offset:{L_XLN2+1024}")
    I("s_mov_b64 exec, -1")
    I("s_waitcnt lgkmcnt(0)")
    lds_set(F_X, 1, 2, 3)
    e.settle()
    e.label(lj)
    e.vmq = []; e.lgq = []
    stamp(7)
    I("s_setprio 3")
    I(f"v_lshrrev_b32 v8, 4, v0\nv_lshlrev_b32 v8, 4, v8\ns_mul_i32 s48, s3, 192\ns_add_u32 s48, s48, {L_XLN2}\nv_add_u32 v8, s48, v8")
    for Ig in range(3): e.lg(f"ds_read_b128 {vr(12+4*Ig)}, v8 offset:{64*Ig}", ("pk", Ig))
    ACC = 24
    for k in range(12):
        Ig, ii = k >> 2, k & 3
        if ii == 0: e.lg_wait(("pk", Ig))
        a = 28 + 4*(k & 1)
        build_a(a, 12 + 4*Ig + ii)
        mfma(ACC, a, GB + 4*k, first=(k == 0))
    I("v_and_b32 v8, 7, v0\nv_lshlrev_b32 v8, 3, v8\nv_bfe_u32 v9, v0, 4, 1\nv_lshl_add_u32 v8, v9, 2, v8\nv_mul_u32_u24 v8, 48, v8")
    I(f"v_lshrrev_b32 v9, 5, v0\nv_lshl_add_u32 v8, v9, 2, v8\ns_lshl_b32 s48, s3, 3\ns_add_u32 s48, s48, {L_GUP}\nv_add_u32 v8, s48, v8")
    I("s_mov_b32 exec_lo, 0x00ff00ff\ns_mov_b32 exec_hi, 0xff00ff00")
    for r in range(4): I(f"ds_write_b32 v8, v{ACC+r} offset:{48*r}")
    I("s_mov_b64 exec, -1")
    I(f"v_mov_b32 v8, {CNT_GU}\nv_mov_b32 v9, 1")
    I("s_waitcnt lgkmcnt(0)")
    I("s_mov_b64 exec, 1\nds_add_u32 v8, v9\ns_mov_b64 exec, -1")
    I("s_cmp_eq_u32 s3, 5"); e.branch("s_cbranch_scc1 L_FFN_done")
    publish_cols(0, H4, 2304, 53, 40)
    I("s_mov_b64 s[54:55], exec\ns_mov_b64 exec, -1")
    I("v_bfe_u32 v8, v0, 3, 1\nv_lshlrev_b32 v8, 5, v8\nv_and_b32 v9, 7, v0\nv_lshl_add_u32 v8, v9, 2, v8\nv_lshrrev_b32 v9, 4, v0\nv_add_u32 v8, v8, v9")
    I(f"v_mul_u32_u24 v10, 48, v8")
    stamp(8)
    lds_spin(CNT_GU, 6, 8, 9)
    stamp(9)
    for k in range(3): e.lg(f"ds_read_b128 {vr(12+4*k)}, v10 offset:{L_GUP+16*k}", ("gp", k))
    e.lg_wait(("gp", 1))
    for r in range(4): I(f"v_add_f32 v{12+r}, v{12+r}, v{16+r}")
    e.lg_wait(("gp", 2))
    for r in range(4): I(f"v_add_f32 v{12+r}, v{12+r}, v{20+r}")
    I("v_add_f32 v12, v12, v13\nv_add_f32 v14, v14, v15\nv_add_f32 v12, v12, v14")
    rne1(12, 13)
    I("v_mov_b32_dpp v13, v12 row_ror:8 row_mask:0xf bank_mask:0xf")
    I("v_mul_f32 v14, v12, v12")
    I("v_mov_b32 v15, 0x3d372713\nv_fma_f32 v14, v14, v15, 1.0")
    I("v_mul_f32 v14, v14, v12")
    I("v_mul_f32 v14, 0xc0135761, v14")
    I("v_exp_f32 v14, v14")
    I("v_add_f32 v14, 1.0, v14")
    I("v_rcp_f32 v14, v14")
    I("v_mul_f32 v12, v12, v14")
    rne1(12, 14)
    I("v_mul_f32 v12, v12, v13")
    I("v_cvt_pk_bf16_f32 v16, v12, v12")
    I("s_waitcnt vmcnt(0)")
    stamp(10)
    ACC2 = 28
    for i in range(8):
        t, a = 18 + (i & 1), 20 + 4*(i & 1)
        I(f"v_mov_b32_dpp v{t}, v16 row_newbcast:{i} row_mask:0xf bank_mask:0xf")
        build_a(a, t)
        mfma(ACC2, a, DB + 4*i, first=(i == 0))
    I("s_mov_b64 exec, s[54:55]")
    I(f"global_store_dwordx4 v40, {vr(ACC2)}, s[44:45] sc1")
    I("s_mov_b64 exec, -1")
    e.label("L_FFN_done")
    if O.diag:
        tail_stamps(8)
    I("s_endpgm")

def build():
    O.wowin = getattr(O, "wowin", 16)
    prologue()
    role_A()
    role_T0_head()
    role_C()
    role_T()
    role_WO()
    role_RED()
    role_FFN()
    e.label("L_end")
    I("s_endpgm")
    e.raw("L_code_end:")
    head = []
    ref = open("sequential_preLN__sliding_block_cached__geglu_ffn__decode.s.ref").read().split("\n")
    for l in ref:
        if l.startswith("; @launch"): break
        if l.startswith("; Override") or l.startswith("; grid="): continue
        head.append(l)
    head.append(f"; @launch grid=(256,1,1) block=(640,1,1) lds={LDS_BYTES}")
    head.append('.amdgcn_target "amdgcn-amd-amdhsa--gfx950"')
    head.append(".text")
    head.append(f".set CODE_BYTES, L_code_end-{NAME}")
    head.append(".set PF_MASK, 15")
    tail = f""".section .rodata,"a"
.p2align 6
.amdhsa_kernel {NAME}
  .amdhsa_next_free_vgpr 168
  .amdhsa_next_free_sgpr 96
  .amdhsa_accum_offset 168
  .amdhsa_group_segment_fixed_size 0
  .amdhsa_kernarg_size 96
  .amdhsa_user_sgpr_count 2
  .amdhsa_user_sgpr_kernarg_segment_ptr 1
  .amdhsa_system_sgpr_workgroup_id_x 1
  .amdhsa_float_denorm_mode_32 3
.end_amdhsa_kernel
"""
    return "\n".join(head) + "\n" + e.text() + tail

if __name__ == "__main__":
    out = sys.argv[1]
    for a in sys.argv[2:]:
        k, v = a.split("=")
        cur = getattr(O, k, None)
        setattr(O, k, (v == "1") if isinstance(cur, bool) else (int(v) if isinstance(cur, int) or cur is None else v))
    txt = build()
    open(out, "w").write(txt)
    print(f"wrote {out}: {len(txt)} bytes, nops {e.nnop}")
```

```python
import sys, os
sys.path.insert(0, os.path.dirname(os.path.abspath(__file__)))
from emit import Emitter

NAME = "sequential_preLN__sliding_block_cached__geglu_ffn__decode_kernel"

class Opt:
    diag = False
    diag2 = False
    win = 8
    igo = 99
    iwo = 10
    ngo = 4
    nwo = 4
    iq = 16
    nq = 1
    nt = "nt"
    ntg = "nt"
    budget = 200000
    prefetch = True
    krot = 17
    npoll = 1
    gurot = True
    x_notail = False
    pfslow = True
    pfnt = ""
    pad = 0
O = Opt()

HML  = 0x10000
H3B  = 0x14000
H2   = 0x20000
H3A  = 0x60000
H4   = 0x84000
EPOCH = 0xE0000
H1   = 0xE8000
TAGM = 0x3ff
F_TAG, F_Q, CNT_O, F_GOE, F_GOL, F_X, CNT_GU, CNT_S, F_PUB, F_Y, F_K, F_HP = 0, 4, 8, 12, 16, 20, 24, 28, 32, 36, 40, 44
L_TAG = 48
L_Y = 0x80
L_STAT = 0x180
L_LN1, L_Q, L_OP, L_XLN2, L_GUP = 0x200, 0x700, 0xA00, 0x1A00, 0x1F00
GUS = 80
LDS_BYTES = L_GUP + 64*GUS

sX, sK, sV, sWQ, sWO, sBX, sWG, sWU, sWD, sOUT, sDBG, sWS = 4, 6, 8, 10, 12, 14, 16, 18, 20, 22, 24, 26
sJ, sS, sBUD, sTAGM = 28, 29, 30, 31
sT3 = 51
LOG2E = 0x3fb8aa3b
SEL = 4
e = Emitter()
I = e.I
uid = [0]
def L(p):
    uid[0] += 1
    return f"L_{p}_{uid[0]}"
def sp(r): return f"s[{r}:{r+1}]"
def vr(r, n=4): return f"v[{r}:{r+n-1}]"
def br(text):
    e.raw("  " + text); e._advance(1)

def add64(d, b, off):
    I(f"s_add_u32 s{d}, s{b}, {off}")
    I(f"s_addc_u32 s{d+1}, s{b+1}, 0")

def srd(d, base, nrec):
    if d != base: I(f"s_mov_b32 s{d}, s{base}")
    I(f"s_and_b32 s{d+1}, s{base+1}, 0xffff")
    I(f"s_mov_b32 s{d+2}, {nrec}")
    I(f"s_mov_b32 s{d+3}, 0x20000")

def stamp(k):
    if O.diag: I(f"s_memrealtime s[{64+2*k}:{65+2*k}]")

def stamps_dyn():
    I("s_memrealtime s[86:87]")
    I("s_waitcnt lgkmcnt(0)")
    I("s_mov_b64 exec, 1")
    add64(62, sWS, "0x20000000")
    I("s_lshl_b32 s61, s60, 8\ns_add_u32 s61, s61, s2\ns_lshl_b32 s61, s61, 7")
    add64(62, 62, "s61")
    I("v_mov_b32 v2, 0")
    for k in range(12):
        I(f"v_mov_b32 v4, s{64+2*k}\nv_mov_b32 v5, s{65+2*k}")
        I(f"global_store_dwordx2 v2, v[4:5], s[62:63] offset:{8*k}")
        I("s_nop 1")

def finish(role=None):
    if O.diag:
        I("s_mov_b32 s60, s59")
        stamps_dyn()
    I("s_endpgm")

def budget(done):
    I(f"s_cmp_eq_u32 s{sBUD}, 0")
    br(f"s_cbranch_scc1 {done}")
    I(f"s_sub_u32 s{sBUD}, s{sBUD}, 1")

def lds_spin(addr, val, vt=2, va=3):
    lp, done = L("spin"), L("spun")
    I(f"v_mov_b32 v{va}, {addr}")
    e.settle()
    e.label(lp)
    I(f"ds_read_b32 v{vt}, v{va}")
    budget(done)
    I("s_waitcnt lgkmcnt(0)")
    I(f"v_readfirstlane_b32 s{sT3}, v{vt}")
    I(f"s_cmp_ge_u32 s{sT3}, {val}")
    br(f"s_cbranch_scc0 {lp}")
    e.label(done)
    I("s_waitcnt lgkmcnt(0)")
    e.lgq = []

def lds_set(addr, val=1, vt=2, va=3):
    I(f"v_mov_b32 v{va}, {addr}\nv_mov_b32 v{vt}, {val}")
    I(f"ds_write_b32 v{va}, v{vt}")

def lds_inc(addr, va, vt):
    I(f"v_mov_b32 v{va}, {addr}\nv_mov_b32 v{vt}, 1\ns_mov_b64 exec, 1\nds_add_u32 v{va}, v{vt}\ns_mov_b64 exec, -1")

def check_set(src, dst, n, vt, vtag, mask=TAGM):
    for k in range(n): I(f"v_xor_b32 v{dst+k}, v{src+k}, v{vtag}")
    r = [dst+k for k in range(n)]
    I(f"v_or3_b32 v{vt}, v{r[0]}, v{r[1]}, v{r[2]}")
    q = r[3:]
    while len(q) >= 2:
        I(f"v_or3_b32 v{vt}, v{vt}, v{q[0]}, v{q[1]}"); q = q[2:]
    if q: I(f"v_or_b32 v{vt}, v{vt}, v{q[0]}")
    I(f"v_and_b32 v{vt}, {mask:#x}, v{vt}")
    I(f"v_cmp_ne_u32 vcc, 0, v{vt}")

def pollp(mk, nloads, n, setA, setB, dst, vt, vtag):
    lp, done = L("poll"), L("polled")
    if O.npoll == 1:
        e.settle(); e.label(lp)
        mk(setA)
        budget(done)
        I("s_waitcnt vmcnt(0)")
        check_set(setA, dst, n, vt, vtag)
        br(f"s_cbranch_vccnz {lp}")
        e.label(done)
    else:
        mk(setA)
        e.settle(); e.label(lp)
        mk(setB)
        I(f"s_waitcnt vmcnt({nloads})")
        check_set(setA, dst, n, vt, vtag)
        br(f"s_cbranch_vccz {done}")
        budget(done)
        mk(setA)
        I(f"s_waitcnt vmcnt({nloads})")
        check_set(setB, dst, n, vt, vtag)
        br(f"s_cbranch_vccnz {lp}")
        e.label(done)
    e.vmq = []

def get_tag(v, t):
    lds_spin(F_TAG, 1, t, t+1)
    I(f"v_mov_b32 v{t}, {L_TAG}")
    I(f"ds_read_b32 v{v}, v{t}")
    I(f"s_movk_i32 s{sTAGM}, {TAGM:#x}")
    I("s_waitcnt lgkmcnt(0)")
    I(f"v_and_b32 v{v}, {TAGM:#x}, v{v}")

def tag4(r, vtag):
    for k in range(4): I(f"v_bfi_b32 v{r+k}, s{sTAGM}, v{vtag}, v{r+k}")

def rows_allreduce(op, vs, steps=(8, 4, 2, 1)):
    for k in steps:
        for v in vs: I(f"v_{op}_f32_dpp v{v}, v{v}, v{v} row_ror:{k} row_mask:0xf bank_mask:0xf")

def cross_allreduce(op, vs, ts):
    for sw in ("v_permlane16_swap_b32", "v_permlane32_swap_b32"):
        for v, t in zip(vs, ts): I(f"v_mov_b32 v{t}, v{v}")
        for v, t in zip(vs, ts): I(f"{sw} v{v}, v{t}")
        for v, t in zip(vs, ts): I(f"v_{op}_f32 v{v}, v{v}, v{t}")

def allreduce(op, vs, ts):
    rows_allreduce(op, vs); cross_allreduce(op, vs, ts)

def rscatter4(r):
    I(f"v_permlane32_swap_b32 v{r}, v{r+2}")
    I(f"v_permlane32_swap_b32 v{r+1}, v{r+3}")
    I(f"v_pk_add_f32 v[{r}:{r+1}], v[{r}:{r+1}], v[{r+2}:{r+3}]")
    I(f"v_permlane16_swap_b32 v{r}, v{r+1}")
    I(f"v_add_f32 v{r}, v{r}, v{r+1}")

def gather_rows(src, dst):
    I(f"v_mov_b32 v{dst}, v{src}\nv_mov_b32 v{dst+1}, v{src}")
    I(f"v_permlane16_swap_b32 v{dst}, v{dst+1}")
    I(f"v_mov_b32 v{dst+2}, v{dst}\nv_mov_b32 v{dst+3}, v{dst+1}")
    I(f"v_permlane32_swap_b32 v{dst}, v{dst+2}\nv_permlane32_swap_b32 v{dst+1}, v{dst+3}")

def rne1(v, t):
    I(f"v_cvt_pk_bf16_f32 v{t}, v{v}, v{v}")
    I(f"v_lshlrev_b32 v{v}, 16, v{t}")

def rne2(a, b, t):
    I(f"v_cvt_pk_bf16_f32 v{t}, v{a}, v{b}")
    I(f"v_lshlrev_b32 v{a}, 16, v{t}")
    I(f"v_and_b32 v{b}, 0xffff0000, v{t}")

def pk(op, d, a, b, mods=""):
    I(f"v_pk_{op}_f32 v[{d}:{d+1}], v[{a}:{a+1}], v[{b}:{b+1}] {mods}".rstrip())

def make_sel(t):
    m, b, h, c = t, t+1, t+2, t+3
    I(f"v_and_b32 v{m}, 15, v0")
    I(f"v_lshrrev_b32 v{b}, 3, v{m}")
    I(f"v_mul_u32_u24 v{b}, 0x0202, v{b}")
    I(f"v_add_u32 v{b}, 0x0100, v{b}")
    I(f"v_lshlrev_b32 v{h}, 16, v{b}")
    I(f"v_or_b32 v{h}, 0x0c0c, v{h}")
    I(f"v_or_b32 v{b}, 0x0c0c0000, v{b}")
    I(f"v_and_b32 v{c}, 1, v{m}")
    I(f"v_cmp_eq_u32 vcc, 1, v{c}")
    I(f"v_cndmask_b32 v{b}, v{b}, v{h}, vcc")
    I(f"v_bfe_u32 v{m}, v{m}, 1, 2")
    I(f"v_mov_b32 v{c}, 0x0c0c0c0c")
    for d in range(4):
        I(f"v_cmp_eq_u32 vcc, {d}, v{m}")
        I(f"v_cndmask_b32 v{SEL+d}, v{c}, v{b}, vcc")

def build_a(a, src):
    for d in range(4): I(f"v_perm_b32 v{a+d}, v{src}, v{src}, v{SEL+d}")

def mfma(acc, a, b, first=False):
    c = "0" if first else vr(acc)
    I(f"v_mfma_f32_16x16x32_bf16 {vr(acc)}, {vr(a)}, {vr(b)}, {c}")

def gemv(n, acc, abuf, wreg, src, pre=None, wait=None):
    def build(i):
        if pre: pre(i)
        build_a(abuf + 4*(i & 1), src(i))
    build(0)
    if n > 1: build(1)
    for i in range(n):
        if wait: wait(i)
        mfma(acc, abuf + 4*(i & 1), wreg(i), first=(i == 0))
        if i + 2 < n: build(i + 2)

def layernorm(f, nA, maskB, t, out):
    n = len(f); f0 = f[0]
    s1, s2, u, w, mm, rr = t, t+1, t+2, t+3, t+4, t+6
    d = t + 8
    I(f"v_readlane_b32 s48, v{f0}, 0")
    I("s_mov_b32 s49, s48")
    for k in range(0, nA, 2): I(f"v_pk_add_f32 v[{d+k}:{d+k+1}], v[{f0+k}:{f0+k+1}], s[48:49] neg_lo:[0,1] neg_hi:[0,1]")
    for k in range(nA, n): I(f"v_mov_b32 v{d+k}, 0")
    I(f"s_mov_b64 exec, {maskB}")
    for k in range(nA, n, 2): I(f"v_pk_add_f32 v[{d+k}:{d+k+1}], v[{f0+k}:{f0+k+1}], s[48:49] neg_lo:[0,1] neg_hi:[0,1]")
    I("s_mov_b64 exec, -1")
    pk("mul", mm, d, d)
    pk("add", rr, d, d+2)
    for k in range(2, n, 2): I(f"v_pk_fma_f32 v[{mm}:{mm+1}], v[{d+k}:{d+k+1}], v[{d+k}:{d+k+1}], v[{mm}:{mm+1}]")
    for k in range(4, n, 2): pk("add", rr, rr, d+k)
    I(f"v_add_f32 v{s2}, v{mm}, v{mm+1}\nv_add_f32 v{s1}, v{rr}, v{rr+1}")
    allreduce("add", [s1, s2], [u, w])
    I(f"v_mul_f32 v{s1}, 0x3ae38e39, v{s1}\nv_mul_f32 v{s2}, 0x3ae38e39, v{s2}")
    I(f"v_fma_f32 v{s2}, -v{s1}, v{s1}, v{s2}")
    I(f"v_add_f32 v{s1}, s48, v{s1}")
    I(f"v_max_f32 v{s2}, 0, v{s2}")
    I(f"v_cvt_pk_bf16_f32 v{u}, v{s1}, v{s2}")
    I(f"v_and_b32 v{s2}, 0xffff0000, v{u}\nv_lshlrev_b32 v{mm}, 16, v{u}")
    I(f"v_add_f32 v{s2}, 0x3727c5ac, v{s2}")
    I(f"v_mov_b32 v{mm+1}, v{mm}")
    rne1(s2, u)
    I(f"v_sqrt_f32 v{s2}, v{s2}")
    for k in range(0, n, 2): I(f"v_pk_add_f32 v[{d+k}:{d+k+1}], v[{f0+k}:{f0+k+1}], v[{mm}:{mm+1}] neg_lo:[0,1] neg_hi:[0,1]")
    rne1(s2, u)
    I(f"v_rcp_f32 v{rr}, v{s2}")
    for k in range(0, n, 2): I(f"v_cvt_pk_bf16_f32 v{f0+k}, v{d+k}, v{d+k+1}")
    I(f"v_mov_b32 v{rr+1}, v{rr}")
    for k in range(0, n, 2):
        I(f"v_lshlrev_b32 v{d+k}, 16, v{f0+k}\nv_and_b32 v{d+k+1}, 0xffff0000, v{f0+k}")
    for k in range(0, n, 2): pk("mul", d+k, d+k, rr)
    for k in range(0, n, 2): I(f"v_cvt_pk_bf16_f32 v{out+k//2}, v{d+k}, v{d+k+1}")

def prologue():
    e.raw(f".globl {NAME}\n.p2align 8\n.type {NAME},@function\n{NAME}:")
    I("s_cmp_ge_u32 s2, 256")
    br("s_cbranch_scc1 L_end")
    I("s_load_dwordx16 s[4:19], s[0:1], 0")
    I("s_load_dwordx8 s[20:27], s[0:1], 64")
    if O.pad: I("s_memrealtime s[90:91]")
    if O.diag:
        for k in range(66, 88): I(f"s_mov_b32 s{k}, 0")
    stamp(0)
    I("v_lshrrev_b32 v1, 6, v0")
    I("v_and_b32 v0, 63, v0")
    I("v_readfirstlane_b32 s3, v1")
    I("v_lshlrev_b32 v2, 2, v0\nv_mov_b32 v3, 0")
    I("ds_write_b32 v2, v3")
    I("s_and_b32 s28, s2, 7\ns_lshl_b32 s28, s28, 1\ns_bfe_u32 s29, s2, 0x10003\ns_add_u32 s28, s28, s29")
    I("s_lshr_b32 s29, s2, 4")
    I(f"s_mov_b32 s{sBUD}, {O.budget}")
    if O.diag: I("s_mov_b32 s59, s3")
    I("s_waitcnt lgkmcnt(0)")
    I("s_cmp_eq_u32 s3, 0"); br("s_cbranch_scc1 L_T0")
    I("s_barrier")
    I("s_cmp_eq_u32 s3, 1"); br("s_cbranch_scc1 L_C")
    I("s_cmp_ge_u32 s3, 6"); br("s_cbranch_scc1 L_T")

def merge_tile(t, DA, S0):
    d0, d1 = DA + 8*(t & 1), DA + 8*(t & 1) + 4
    for h in range(2):
        I(f"v_cndmask_b32 v{d0+h}, v{d0+h}, v{d1+h}, s[56:57]")
        I(f"v_cndmask_b32 v{d0+2+h}, v{d1+2+h}, v{d0+2+h}, s[56:57]")
    for h in range(2):
        I(f"v_add_f32_dpp v{S0+h}, v{d0+2+h}, v{d0+h} quad_perm:[1,0,3,2] row_mask:{1<<t:#x} bank_mask:0xf")

def role_A():
    KB, VB = 40, 104
    def KR(t, ee, l): return KB + 4*(4*t + 2*ee + l)
    def VR(i): return VB + 4*i
    QA, DA, S0, S1, P = 8, 16, 32, 33, 34
    QADDR, OADDR, HOFF = 35, 36, 37
    I("s_setprio 2")
    I("s_sub_u32 s3, s3, 2")
    I("v_bfe_u32 v8, v0, 1, 3\nv_lshlrev_b32 v8, 8, v8")
    I("v_lshrrev_b32 v9, 4, v0")
    I("v_and_b32 v10, 1, v0")
    I("v_lshl_add_u32 v11, v9, 1, v10\nv_lshl_add_u32 v1, v11, 4, v8")
    I("s_lshl_b32 s49, s3, 4\ns_add_u32 s49, s49, s29")
    I(f"s_lshl_b32 s48, s28, 24\ns_add_u32 s48, s48, {61440*256}")
    add64(32, sK, "s48"); srd(32, 32, 0x100000)
    I("s_lshl_b32 s40, s49, 11")
    seq = [("K", k) for k in range(16)] + [("V", i) for i in range(16)]
    def issue(n):
        kind, k = seq[n]
        if kind == "K":
            t, ee, l = k >> 2, (k >> 1) & 1, k & 1
            e.vm(f"buffer_load_dwordx4 {vr(KR(t,ee,l))}, v{1+ee}, s[32:35], s{40+2*t+ee} offen offset:{l*128} {O.nt}", ("K", k))
        else:
            e.vm(f"buffer_load_dwordx4 {vr(VR(k))}, v{(3, 31)[k & 1]}, s[36:39], 0 offen offset:{256*(k>>1)} {O.nt}", ("V", k))
            for idx, flag in ((O.iwo, F_GOE), (O.igo, F_GOL)):
                if k == idx: lds_inc(flag, 38, 39)
        if n == O.iq: lds_inc(F_K, 38, 39)
    issue(0); issue(1)
    I("v_xor_b32 v10, 1, v10\nv_lshl_add_u32 v11, v9, 1, v10\nv_lshl_add_u32 v2, v11, 4, v8")
    def grp(k): I(f"s_add_u32 s50, s49, {O.krot*k}\ns_and_b32 s50, s50, 63\ns_add_u32 s50, s50, {64*k}\ns_lshl_b32 s{40+k}, s50, 11")
    done = 1
    for n in range(2, O.win):
        need = (2*(n >> 2) + ((n >> 1) & 1)) if n < 16 else 7
        while done <= need: grp(done); done += 1
        issue(n)
    while done < 8: grp(done); done += 1
    stamp(1)
    for p_, vd in ((0, 3), (1, 31)):
        I(f"v_mov_b32 v{vd}, s{40+p_}")
        for g in range(1, 4):
            I(f"v_cmp_eq_u32 vcc, {g}, v9\nv_mov_b32 v11, s{40+2*g+p_}\nv_cndmask_b32 v{vd}, v{vd}, v11, vcc")
        I(f"v_and_b32 v10, 15, v0\nv_lshl_add_u32 v{vd}, v10, 4, v{vd}")
    add64(36, sV, "s48"); srd(36, 36, 0x100000)
    make_sel(20)
    I(f"v_and_b32 v20, 1, v0\nv_lshlrev_b32 v20, 8, v20")
    I("v_bfe_u32 v21, v0, 1, 1\nv_lshl_add_u32 v21, v9, 1, v21")
    I(f"v_lshl_add_u32 v{QADDR}, v21, 4, v20")
    I("s_mov_b32 s56, 0xaaaaaaaa\ns_mov_b32 s57, 0xaaaaaaaa")
    I("v_and_b32 v20, 15, v0\nv_lshlrev_b32 v20, 1, v20\nv_and_b32 v21, 1, v9\nv_add_u32 v20, v20, v21")
    I("v_lshrrev_b32 v21, 1, v9\nv_lshl_add_u32 v20, v21, 5, v20")
    I(f"s_lshl_b32 s49, s3, 10\ns_add_u32 s49, s49, {L_OP}\nv_lshl_add_u32 v{OADDR}, v20, 4, s49")
    I(f"v_lshlrev_b32 v20, 12, v9\nv_and_b32 v21, 15, v0\nv_lshl_add_u32 v{HOFF}, v21, 4, v20")
    I(f"s_lshl_b32 s49, s28, 14\ns_lshl_b32 s50, s29, 8\ns_add_u32 s49, s49, s50\ns_add_u32 s49, s49, {H2}")
    add64(52, sWS, "s49")
    I(f"s_lshl_b32 s49, s28, 10\ns_lshl_b32 s50, s29, 4\ns_add_u32 s49, s49, s50\ns_add_u32 s49, s49, {HML}")
    add64(54, sWS, "s49")
    nxt = O.win
    while nxt < 32:
        e.vm_wait_n(O.win - 1); issue(nxt); nxt += 1
    stamp(2)
    lds_spin(F_Q, 1, 38, 39)
    stamp(3)
    I(f"v_mov_b32 v38, {L_TAG}\nds_read_b32 v39, v38\ns_movk_i32 s{sTAGM}, {TAGM:#x}")
    e.lg(f"ds_read_b128 {vr(QA)}, v{QADDR} offset:{L_Q}", "qa0")
    e.lg(f"ds_read_b128 {vr(QA+4)}, v{QADDR} offset:{L_Q+128}", "qa1")
    e.vm_wait(("K", 15))
    e.lg_all()
    I(f"v_and_b32 v39, {TAGM:#x}, v39")
    for t in range(4):
        d0, d1 = DA + 8*(t & 1), DA + 8*(t & 1) + 4
        for ee, d in ((0, d0), (1, d1)): mfma(d, QA, KR(t, ee, 0), first=True)
        for ee, d in ((0, d0), (1, d1)): mfma(d, QA+4, KR(t, ee, 1))
        if t == 0: I("v_readfirstlane_b32 s58, v39")
        if t >= 1: merge_tile(t-1, DA, S0)
    merge_tile(3, DA, S0)
    rne2(S0, S1, 20)
    I(f"v_mul_f32 v{S0}, 0x3db504f3, v{S0}\nv_mul_f32 v{S1}, 0x3db504f3, v{S1}")
    rne2(S0, S1, 20)
    M0, L0, M1, L1 = 24, 25, 26, 27
    I(f"v_mov_b32 v{M0}, v{S0}\nv_mov_b32 v{M1}, v{S1}")
    allreduce("max", [M0, M1], [20, 21])
    I(f"v_sub_f32 v{S0}, v{S0}, v{M0}\nv_sub_f32 v{S1}, v{S1}, v{M1}")
    I(f"v_mul_f32 v{S0}, {LOG2E:#x}, v{S0}\nv_mul_f32 v{S1}, {LOG2E:#x}, v{S1}")
    I(f"v_exp_f32 v{L0}, v{S0}\nv_exp_f32 v{L1}, v{S1}")
    I(f"v_cvt_pk_bf16_f32 v{P}, v{L0}, v{L1}")
    stamp(4)
    ACC = 16
    def bld(i):
        I(f"v_mov_b32_dpp v{20+(i&1)}, v{P} row_newbcast:{i} row_mask:0xf bank_mask:0xf")
        build_a(QA + 4*(i & 1), 20 + (i & 1))
    def pv(i):
        e.vm_wait(("V", i))
        mfma(ACC, QA + 4*(i & 1), VR(i), first=(i == 0))
        if i + 2 < 16: bld(i + 2)
    bld(0); bld(1)
    for i in range(4): pv(i)
    allreduce("add", [L0, L1], [22, 23])
    I(f"s_lshl_b32 s48, s3, 4\ns_add_u32 s48, s48, {L_STAT}\nv_mov_b32 v22, s48")
    I("s_mov_b64 exec, 1")
    e.lg(f"ds_write_b128 v22, {vr(M0)}", "st")
    I(f"v_mov_b32 v22, {CNT_S}\nv_mov_b32 v23, 1")
    e.lg_wait("st")
    I("ds_add_u32 v22, v23")
    I("s_mov_b64 exec, -1")
    for i in range(4, 8): pv(i)
    lds_spin(CNT_S, 4, 22, 23)
    I(f"v_mov_b32 v22, {L_STAT}")
    ST = 40
    for w in range(4): e.lg(f"ds_read_b128 {vr(ST+4*w)}, v22 offset:{16*w}", ("sw", w))
    e.lg_wait(("sw", 3))
    GM0, GM1, GL0, GL1, F = 56, 57, 58, 59, 60
    I(f"v_max3_f32 v{GM0}, v{ST}, v{ST+4}, v{ST+8}\nv_max3_f32 v{GM1}, v{ST+2}, v{ST+6}, v{ST+10}")
    I(f"v_max_f32 v{GM0}, v{GM0}, v{ST+12}\nv_max_f32 v{GM1}, v{GM1}, v{ST+14}")
    for w in range(4): I(f"v_sub_f32 v{ST+4*w}, v{ST+4*w}, v{GM0}\nv_sub_f32 v{ST+4*w+2}, v{ST+4*w+2}, v{GM1}")
    for w in range(4): I(f"v_mul_f32 v{ST+4*w}, {LOG2E:#x}, v{ST+4*w}\nv_mul_f32 v{ST+4*w+2}, {LOG2E:#x}, v{ST+4*w+2}")
    for w in range(4): I(f"v_exp_f32 v{ST+4*w}, v{ST+4*w}\nv_exp_f32 v{ST+4*w+2}, v{ST+4*w+2}")
    I(f"v_sub_f32 v{M0}, v{M0}, v{GM0}\nv_sub_f32 v{M1}, v{M1}, v{GM1}")
    I(f"v_mul_f32 v{GL0}, v{ST}, v{ST+1}\nv_mul_f32 v{GL1}, v{ST+2}, v{ST+3}")
    I(f"v_mul_f32 v{M0}, {LOG2E:#x}, v{M0}\nv_mul_f32 v{M1}, {LOG2E:#x}, v{M1}")
    for w in range(1, 4): I(f"v_fmac_f32 v{GL0}, v{ST+4*w}, v{ST+4*w+1}\nv_fmac_f32 v{GL1}, v{ST+4*w+2}, v{ST+4*w+3}")
    I(f"v_exp_f32 v{M0}, v{M0}\nv_exp_f32 v{M1}, v{M1}")
    I("s_mov_b32 s48, 0\ns_mov_b32 s49, -1\ns_mov_b32 s50, 0xc\ns_mov_b32 s51, 0")
    I(f"v_cndmask_b32 v{F}, v{M0}, v{M1}, s[48:49]")
    ML = 64
    I(f"v_cndmask_b32 v{ML}, v{GM0}, v{GM1}, s[50:51]\nv_cndmask_b32 v{ML+1}, v{GL0}, v{GL1}, s[50:51]")
    I(f"v_mov_b32 v{ML+8}, s58")
    I(f"v_mov_b32 v{ML+2}, 0\nv_mov_b32 v{ML+3}, 0\nv_lshlrev_b32 v{ML+4}, 8, v0")
    tag4(ML, ML+8)
    I(f"v_mov_b32 v{ML+5}, {CNT_O}\nv_mov_b32 v{ML+6}, 1\nv_lshlrev_b32 v{ML+7}, 4, v0")
    I(f"v_mov_b32 v{F+1}, v{F}")
    for i in range(8, 16): pv(i)
    stamp(5)
    pk("mul", ACC, ACC, F); pk("mul", ACC+2, ACC+2, F)
    e.lg(f"ds_write_b128 v{OADDR}, {vr(ACC)}", "op")
    I("s_mov_b64 exec, 1")
    e.lg_wait("op")
    e.lg(f"ds_add_rtn_u32 v{ML+6}, v{ML+5}, v{ML+6}", "cnt")
    e.lg_wait("cnt")
    I(f"v_readfirstlane_b32 s48, v{ML+6}")
    I("s_mov_b64 exec, -1")
    I("s_cmp_eq_u32 s48, 3")
    br("s_cbranch_scc0 L_A_done")
    for w in range(4): e.lg(f"ds_read_b128 {vr(40+4*w)}, v{ML+7} offset:{L_OP+1024*w}", ("o", w))
    e.lg_wait(("o", 1))
    pk("add", 40, 40, 44); pk("add", 42, 42, 46)
    e.lg_wait(("o", 3))
    pk("add", 48, 48, 52); pk("add", 50, 50, 54)
    pk("add", 40, 40, 48); pk("add", 42, 42, 50)
    tag4(40, ML+8)
    I(f"global_store_dwordx4 v{HOFF}, {vr(40)}, s[52:53] sc1")
    I("s_mov_b64 exec, 0xf")
    I(f"global_store_dwordx4 v{ML+4}, {vr(ML)}, s[54:55] sc1")
    I("s_mov_b64 exec, -1")
    lds_set(F_HP, 1, 38, 39)
    e.settle()
    e.label("L_A_done")
    stamp(6)
    if not O.x_notail:
        if O.pfslow:
            I("s_cmp_ge_u32 s29, 13"); br("s_cbranch_scc1 L_A_pf")
        I("s_cmp_lt_u32 s29, 9")
        br("s_cbranch_scc0 L_A_end")
        I("s_add_u32 s3, s3, 5")
        lds_spin(F_HP, 1, 38, 39)
        e.branch("s_branch L_FFN")
        if O.pfslow:
            e.label("L_A_pf")
            I("s_lshr_b32 s48, s28, 1")
            I("s_sub_u32 s49, 3, s48\ns_and_b32 s49, s49, 7")
            I("s_mul_i32 s50, s48, 9\ns_add_u32 s50, s50, s49\ns_lshl_b32 s50, s50, 7")
            I("s_and_b32 s51, s28, 1\ns_mul_i32 s51, s51, 3\ns_add_u32 s51, s51, s29\ns_sub_u32 s51, s51, 13\ns_lshl_b32 s51, s51, 2\ns_add_u32 s51, s51, s3")
            I("s_mul_i32 s51, s51, 24*9216\ns_add_u32 s50, s50, s51")
            I("v_lshrrev_b32 v8, 3, v0\nv_mul_u32_u24 v8, 9216, v8\nv_and_b32 v9, 7, v0\nv_lshl_add_u32 v8, v9, 4, v8")
            I(f"s_mov_b32 s32, s{sWG}"); srd(32, sWG, 576*9216)
            I(f"s_mov_b32 s36, s{sWU}"); srd(36, sWU, 576*9216)
            lds_spin(F_HP, 1, 38, 39)
            def six():
                for i in range(3):
                    I(f"s_add_u32 s51, s50, {8*9216*i}")
                    I(f"buffer_load_dwordx4 {vr(40+8*i)}, v8, s[32:35], s51 offen {O.pfnt}")
                    I(f"buffer_load_dwordx4 {vr(44+8*i)}, v8, s[36:39], s51 offen {O.pfnt}")
            six()
            I("s_cmp_eq_u32 s48, 3"); br("s_cbranch_scc0 L_A_end")
            I("s_add_u32 s50, s50, 8*128")
            six()
    e.label("L_A_end")
    finish()

def half_combine(acc, t):
    for r in range(4): I(f"v_mov_b32 v{t+r}, v{acc+r}")
    for r in range(4): I(f"v_permlane32_swap_b32 v{acc+r}, v{t+r}")
    for r in range(4): I(f"v_add_f32_dpp v{acc+r}, v{t+r}, v{acc+r} row_ror:8 row_mask:0xf bank_mask:0xf")

def role_T0_head():
    WB = 32
    e.label("L_T0")
    I("s_setprio 3")
    I("v_lshlrev_b32 v1, 4, v0")
    I(f"s_mov_b32 s32, s{sX}"); srd(32, sX, 1152)
    e.vm(f"buffer_load_dwordx4 {vr(8)}, v1, s[32:35], 0 offen", "xa")
    e.vm(f"buffer_load_dwordx4 {vr(12)}, v1, s[32:35], 0 offen offset:1024", "xb")
    I("v_lshrrev_b32 v16, 4, v0\nv_bfe_u32 v17, v0, 3, 1")
    I("v_and_b32 v18, 7, v0\nv_lshlrev_b32 v18, 4, v18")
    I("v_lshl_add_u32 v19, v16, 3, v17\nv_lshl_add_u32 v2, v19, 13, v18")
    I("v_lshl_add_u32 v19, v16, 2, v17\nv_lshl_add_u32 v3, v19, 13, v18")
    I("s_lshr_b32 s48, s29, 2\ns_mul_i32 s49, s48, 0x120000\ns_and_b32 s50, s29, 3\ns_lshl_b32 s50, s50, 7\ns_add_u32 s49, s49, s50")
    I("s_lshl_b32 s50, s28, 9\ns_add_u32 s49, s49, s50")
    add64(36, sWQ, "s49"); srd(36, 36, 144*8192)
    steps = [(2, (32*Ig + 2*ii)*8192) for Ig in range(4) for ii in range(4)] + [(3, 128*8192), (3, 130*8192)]
    for k, (vo, so) in enumerate(steps):
        if so: I(f"s_mov_b32 s50, {so}")
        e.vm(f"buffer_load_dwordx4 {vr(WB+4*k)}, v{vo}, s[36:39], {'s50' if so else '0'} offen {O.nt}", ("wq", k))
    I("s_barrier")
    stamp(1)
    make_sel(104)
    I("v_lshrrev_b32 v104, 4, v0\nv_lshlrev_b32 v105, 4, v104\nv_lshlrev_b32 v106, 3, v104")
    I(f"s_mul_i32 s50, s48, 288\ns_add_u32 s50, s50, {L_LN1}")
    I("v_add_u32 v150, s50, v105\nv_add_u32 v151, s50, v106")
    I("v_and_b32 v152, 7, v0\nv_lshlrev_b32 v152, 1, v152\nv_add_u32 v152, v152, v104\nv_lshlrev_b32 v152, 4, v152")
    I("s_lshl_b32 s49, s28, 13\ns_lshl_b32 s50, s48, 11\ns_add_u32 s49, s49, s50\ns_and_b32 s50, s29, 3\ns_lshl_b32 s50, s50, 8\ns_add_u32 s49, s49, s50")
    I(f"s_add_u32 s49, s49, {H1}")
    add64(44, sWS, "s49")
    e.vm_wait("xb")
    for half, base in ((0, 8), (1, 12)):
        for d in range(4):
            I(f"v_lshlrev_b32 v{16+8*half+2*d}, 16, v{base+d}")
            I(f"v_and_b32 v{17+8*half+2*d}, 0xffff0000, v{base+d}")
    layernorm(list(range(16, 32)), 8, "0xff", 104, 8)
    e.lg(f"ds_write_b128 v1, {vr(8)} offset:{L_LN1}", "ln")
    I("s_mov_b64 exec, 0xff")
    e.lg(f"ds_write_b128 v1, {vr(12)} offset:{L_LN1+1024}", "ln2")
    I("s_mov_b64 exec, -1")
    e.lg_all()
    for Ig in range(4): e.lg(f"ds_read_b128 {vr(108+4*Ig)}, v150 offset:{64*Ig}", ("pk", Ig))
    e.lg(f"ds_read_b64 v[124:125], v151 offset:256", ("pk", 4))
    stamp(2)
    ACC = 16
    gemv(18, ACC, 20, lambda k: WB + 4*k, lambda k: 108 + k,
         pre=lambda k: e.lg_wait(("pk", k >> 2)) if (k & 3) == 0 else None,
         wait=lambda k: e.vm_wait(("wq", k)))
    stamp(3)
    get_tag_full = True
    lds_spin(F_TAG, 1, 28, 29)
    I(f"v_mov_b32 v28, {L_TAG}\nds_read_b32 v30, v28")
    half_combine(ACC, 20)
    I("s_waitcnt lgkmcnt(0)")
    I(f"v_mov_b32 v28, v{ACC}\nv_mov_b32 v29, v{ACC+1}\nv_mov_b32 v31, v30")
    I(f"v_mov_b32 v20, v{ACC+2}\nv_mov_b32 v21, v{ACC+3}\nv_mov_b32 v22, v30\nv_mov_b32 v23, v30")
    I("s_mov_b32 exec_lo, 0x00ff00ff\ns_mov_b32 exec_hi, 0")
    I(f"global_store_dwordx4 v152, v[28:31], s[44:45] sc1")
    I(f"global_store_dwordx4 v152, v[20:23], s[44:45] offset:1024 sc1")
    I("s_mov_b64 exec, -1")
    lds_set(F_PUB, 1, 24, 25)
    stamp(4)
    I("s_mov_b32 s3, 0")
    e.branch("s_branch L_Tail")

def role_C():
    e.comment("===== wave 1: launch tag, gathers")
    e.label("L_C")
    I("s_setprio 3")
    add64(34, sWS, EPOCH)
    I("s_load_dword s56, s[34:35], 0")
    I("v_lshlrev_b32 v1, 4, v0")
    if O.prefetch:
        lp = L("pc")
        I("s_getpc_b64 s[32:33]")
        e.label(lp)
        I(f"s_sub_u32 s32, s32, {lp}-{NAME}\ns_subb_u32 s33, s33, 0")
        I("s_lshr_b32 s48, s2, 3\ns_and_b32 s48, s48, PF_MASK\ns_lshl_b32 s48, s48, 10")
        I("v_add_u32 v2, s48, v1\nv_min_u32 v2, CODE_BYTES-16, v2")
        I("global_load_dwordx4 v[16:19], v2, s[32:33]")
    stamp(1)
    I("s_waitcnt lgkmcnt(0)")
    I("s_add_u32 s56, s56, 1")
    I(f"v_mov_b32 v40, s56")
    I(f"v_mov_b32 v3, {L_TAG}\nds_write_b32 v3, v40\ns_waitcnt lgkmcnt(0)")
    lds_set(F_TAG, 1, 2, 3)
    stamp(2)
    I(f"s_lshl_b32 s48, s28, 13\ns_add_u32 s48, s48, {H1}"); add64(32, sWS, "s48")
    add64(34, 32, 4096)
    lds_spin(F_PUB, 1, 2, 3)
    lds_spin(F_K, O.nq, 2, 3)
    lp, dn = L("qp"), L("qpd")
    e.settle(); e.label(lp)
    for k in range(8):
        I(f"global_load_dwordx4 {vr(44+4*k)}, v1, s[{32+2*(k>>2)}:{33+2*(k>>2)}] offset:{1024*(k&3)} sc1")
    budget(dn)
    I("s_waitcnt vmcnt(0)")
    I("v_xor_b32 v8, v46, v40")
    for k in range(8):
        for x in ((47,) if k == 0 else (46+4*k, 47+4*k)): I(f"v_bitop3_b32 v8, v8, v{x}, v40 bitop3:0xf6")
    I("v_cmp_ne_u32 vcc, 0, v8"); br(f"s_cbranch_vccnz {lp}")
    e.label(dn)
    I("s_waitcnt vmcnt(0)")
    for half in range(2):
        pk("add", 16+2*half, 44+4*half, 52+4*half)
        pk("add", 20+2*half, 60+4*half, 68+4*half)
    pk("add", 16, 16, 20); pk("add", 18, 18, 22)
    I("v_cvt_pk_bf16_f32 v8, v16, v17\nv_cvt_pk_bf16_f32 v9, v18, v19")
    I("v_lshlrev_b32 v2, 3, v0")
    I(f"ds_write_b64 v2, v[8:9] offset:{L_Q}")
    I("s_waitcnt lgkmcnt(0)")
    lds_set(F_Q, 1, 2, 3)
    stamp(3)
    I(f"v_and_b32 v15, {TAGM:#x}, v40")
    if O.x_notail: e.branch("s_branch L_C_done")
    I("s_cmp_ge_u32 s29, 13"); br("s_cbranch_scc1 L_C_done")
    I("s_cmp_ge_u32 s29, 9"); br("s_cbranch_scc1 L_WO_C")
    e.branch("s_branch L_FFN_C")
    e.label("L_C_done")
    finish()

def role_T():
    e.comment("===== waves 6..9 (tail index 1..4) and wave 0 after its q slice")
    e.label("L_T")
    I("s_sub_u32 s3, s3, 5")
    make_sel(8)
    e.label("L_Tail")
    if O.x_notail: finish()
    I("s_setprio 0")
    I("s_cmp_ge_u32 s29, 13"); br("s_cbranch_scc1 L_RED")
    I("s_cmp_ge_u32 s29, 9"); br("s_cbranch_scc1 L_WO")
    if O.igo == 99: lds_spin(F_HP, 1, 8, 9)
    else: lds_spin(F_GOL, O.ngo, 8, 9)
    e.branch("s_branch L_FFN")

def colblock_voff(v, rowstride, t):
    I(f"v_lshrrev_b32 v{t}, 4, v0\nv_mul_u32_u24 v{t}, {rowstride}, v{t}")
    I(f"v_and_b32 v{t+1}, 15, v0\nv_lshl_add_u32 v{v}, v{t+1}, 4, v{t}")
    I(f"s_lshl_b32 s48, s3, 8\nv_add_u32 v{v}, s48, v{v}")
    I(f"s_cmp_eq_u32 s3, 4\ns_cselect_b32 s48, 8, 16")
    I(f"v_cmp_gt_u32 vcc, s48, v{t+1}\nv_mov_b32 v{t}, 0x7fffffff")
    I(f"v_cndmask_b32 v{v}, v{t}, v{v}, vcc")

def publish_addr(region, stride, prod_sgpr, t):
    I(f"v_and_b32 v{t}, 15, v0\ns_lshl_b32 s48, s3, 4\nv_add_u32 v{t}, s48, v{t}")
    I(f"v_mul_u32_u24 v{t}, {stride}, v{t}")
    I(f"v_lshrrev_b32 v{t+1}, 4, v0\nv_lshl_add_u32 v{t}, v{t+1}, 4, v{t}")
    I(f"s_lshl_b32 s48, s{prod_sgpr}, 5\ns_add_u32 s48, s48, {region}")
    add64(44, sWS, "s48")
    I("s_cmp_eq_u32 s3, 4\ns_cselect_b32 s54, 0x00ff00ff, -1\ns_mov_b32 s55, 0")

def role_WO():
    WB = 104
    e.label("L_WO")
    colblock_voff(1, 1152, 8)
    I("s_lshl_b32 s48, s28, 2\ns_add_u32 s48, s48, s29\ns_sub_u32 s52, s48, 9")
    I("s_mul_i32 s48, s52, 73728")
    add64(32, sWO, "s48"); srd(32, 32, 64*1152)
    publish_addr(H3A, 2048, 52, 8)
    get_tag(12, 10)
    I(f"v_lshrrev_b32 v9, 4, v0\nv_lshlrev_b32 v9, 6, v9")
    if O.iwo == 99: lds_spin(F_HP, 1, 10, 11)
    else: lds_spin(F_GOE, O.nwo, 10, 11)
    stamp(5)
    e.vmq = []
    for i in range(16):
        if i: I(f"s_mov_b32 s48, {4608*i}")
        e.vm(f"buffer_load_dwordx4 {vr(WB+4*i)}, v1, s[32:35], {'s48' if i else '0'} offen {O.nt}", ("wo", i))
    e.vm_all()
    stamp(6)
    I("s_setprio 3")
    lds_spin(F_Y, 1, 10, 11)
    stamp(7)
    Y = 32
    for q in range(4): e.lg(f"ds_read_b128 {vr(Y+4*q)}, v9 offset:{L_Y+16*q}", ("y", q))
    ACC = 28
    gemv(16, ACC, 16, lambda i: WB + 4*i, lambda i: Y + i, pre=lambda i: e.lg_wait(("y", i >> 2)) if (i & 3) == 0 else None)
    I("s_mov_b64 exec, s[54:55]")
    tag4(ACC, 12)
    I(f"global_store_dwordx4 v8, {vr(ACC)}, s[44:45] sc1")
    I("s_mov_b64 exec, -1")
    finish()

def role_WO_C():
    e.label("L_WO_C")
    I("s_lshl_b32 s48, s28, 2\ns_add_u32 s48, s48, s29\ns_sub_u32 s52, s48, 9")
    I(f"s_lshl_b32 s48, s52, 12\ns_add_u32 s48, s48, {H2}")
    add64(36, sWS, "s48")
    I("v_lshlrev_b32 v2, 4, v0")
    I(f"s_lshl_b32 s48, s52, 8\ns_add_u32 s48, s48, {HML}"); add64(38, sWS, "s48")
    I("v_and_b32 v3, 3, v0\nv_lshlrev_b32 v3, 2, v3\nv_lshrrev_b32 v9, 4, v0\nv_add_u32 v3, v3, v9\nv_lshlrev_b32 v3, 4, v3")
    I(f"v_lshlrev_b32 v12, 2, v0\nv_mov_b32 v13, {F_Y}\nv_mov_b32 v14, 1")
    lds_spin(F_HP, 1, 10, 11)
    stamp(5)
    def mk(b):
        for k in range(4): I(f"global_load_dwordx4 {vr(b+4*k)}, v2, s[36:37] offset:{1024*k} sc1")
        I(f"global_load_dwordx4 {vr(b+16)}, v3, s[38:39] sc1")
    pollp(mk, 5, 20, 44, 64, 16, 10, 15)
    stamp(6)
    I("v_max_f32_dpp v36, v32, v32 quad_perm:[1,0,3,2] row_mask:0xf bank_mask:0xf")
    I("v_max_f32_dpp v36, v36, v36 quad_perm:[2,3,0,1] row_mask:0xf bank_mask:0xf")
    cross_allreduce("max", [36], [37])
    I(f"v_sub_f32 v32, v32, v36\nv_mul_f32 v32, {LOG2E:#x}, v32\nv_exp_f32 v32, v32")
    I("v_mul_f32 v33, v33, v32")
    for r in range(4): I(f"v_mul_f32_dpp v{16+r}, v32, v{16+r} quad_perm:[0,0,0,0] row_mask:0xf bank_mask:0xf")
    I("v_add_f32_dpp v33, v33, v33 quad_perm:[1,0,3,2] row_mask:0xf bank_mask:0xf")
    for r in range(4): I(f"v_fmac_f32_dpp v{16+r}, v32, v{20+r} quad_perm:[1,1,1,1] row_mask:0xf bank_mask:0xf")
    I("v_add_f32_dpp v33, v33, v33 quad_perm:[2,3,0,1] row_mask:0xf bank_mask:0xf")
    for r in range(4): I(f"v_fmac_f32_dpp v{16+r}, v32, v{24+r} quad_perm:[2,2,2,2] row_mask:0xf bank_mask:0xf")
    I("v_mov_b32 v37, v33")
    for r in range(4): I(f"v_fmac_f32_dpp v{16+r}, v32, v{28+r} quad_perm:[3,3,3,3] row_mask:0xf bank_mask:0xf")
    I("v_permlane16_swap_b32 v33, v37")
    I("v_add_f32 v33, v33, v37")
    I("v_permlane32_swap_b32 v16, v18\nv_permlane32_swap_b32 v17, v19")
    I("v_mov_b32 v37, v33")
    pk("add", 16, 16, 18)
    I("v_permlane32_swap_b32 v33, v37")
    I("v_permlane16_swap_b32 v16, v17")
    I("v_add_f32 v33, v33, v37")
    I("v_add_f32 v16, v16, v17")
    I("v_rcp_f32 v33, v33")
    I("v_mul_f32 v16, v16, v33")
    I("v_cvt_pk_bf16_f32 v16, v16, v16")
    I(f"ds_write_b32 v12, v16 offset:{L_Y}")
    I("s_waitcnt lgkmcnt(0)")
    I("ds_write_b32 v13, v14")
    stamp(7)
    finish()

def role_RED():
    e.comment("===== column reducers: 8 columns per wave (block cb = z + 48 t)")
    e.label("L_RED")
    I("s_mul_i32 s48, s28, 3\ns_add_u32 s48, s48, s29\ns_sub_u32 s48, s48, 13")
    I("s_mul_i32 s52, s3, 48\ns_add_u32 s52, s52, s48")
    I("s_cmp_ge_u32 s52, 72"); br("s_cbranch_scc1 L_RED_done")
    I("v_lshrrev_b32 v8, 4, v0\nv_and_b32 v9, 1, v0\nv_lshl_add_u32 v9, v9, 2, v8\nv_lshlrev_b32 v9, 1, v9\ns_lshl_b32 s48, s52, 4\nv_add_u32 v9, s48, v9")
    I(f"global_load_ushort v10, v9, {sp(sX)}")
    I(f"s_lshl_b32 s48, s52, 11\ns_add_u32 s48, s48, {H3A}"); add64(32, sWS, "s48")
    I(f"s_mul_i32 s48, s52, 4608\ns_add_u32 s48, s48, {H4}"); add64(36, sWS, "s48")
    add64(38, 36, 4096)
    I("v_lshlrev_b32 v1, 4, v0")
    I(f"v_lshrrev_b32 v11, 1, v0\nv_mul_u32_u24 v11, 2304, v11\nv_and_b32 v12, 1, v0\nv_lshl_add_u32 v11, v12, 4, v11")
    I(f"s_lshl_b32 s48, s52, 5\ns_add_u32 s48, s48, {H3B}"); add64(40, sWS, "s48")
    get_tag(14, 12)
    for b in (80, 100):
        for r in range(4): I(f"v_mov_b32 v{b+16+r}, v14")
    lds_spin(F_HP, 1, 12, 13)
    I("s_waitcnt vmcnt(0)"); e.vmq = []
    I("v_lshlrev_b32 v10, 16, v10")
    stamp(5)
    I("s_setprio 3")
    def mk(b):
        for k in range(2): I(f"global_load_dwordx4 {vr(b+4*k)}, v1, s[32:33] offset:{1024*k} sc1")
    pollp(mk, 2, 8, 60, 68, 16, 12, 14)
    stamp(6)
    pk("add", 16, 16, 20); pk("add", 18, 18, 22)
    rscatter4(16)
    rows_allreduce("add", [16], (2, 4, 8))
    rne1(16, 12)
    I("v_add_f32 v10, v10, v16")
    rne1(10, 12)
    gather_rows(10, 20)
    I("s_mov_b32 exec_lo, -1\ns_mov_b32 exec_hi, 0")
    tag4(20, 14)
    I("global_store_dwordx4 v11, v[20:23], s[40:41] sc1")
    I("s_mov_b64 exec, -1")
    stamp(7)
    def mk4(b):
        for k in range(4): I(f"global_load_dwordx4 {vr(b+4*k)}, v1, s[36:37] offset:{1024*k} sc1")
        I("s_mov_b32 exec_hi, 0")
        I(f"global_load_dwordx4 {vr(b+16)}, v1, s[38:39] sc1")
        I("s_mov_b32 exec_hi, -1")
    pollp(mk4, 5, 20, 80, 100, 16, 12, 14)
    stamp(8)
    pk("add", 16, 16, 20); pk("add", 18, 18, 22); pk("add", 24, 24, 28); pk("add", 26, 26, 30)
    pk("add", 16, 16, 32); pk("add", 18, 18, 34)
    pk("add", 16, 16, 24); pk("add", 18, 18, 26)
    rscatter4(16)
    rows_allreduce("add", [16], (2, 4, 8))
    rne1(16, 12)
    I("v_add_f32 v10, v10, v16")
    I("v_cvt_pk_bf16_f32 v10, v10, v10")
    I("s_mov_b32 exec_lo, 0x00030003\ns_mov_b32 exec_hi, 0x00030003")
    I(f"global_store_short v9, v10, {sp(sOUT)}")
    le = L("noep")
    I("s_cmp_eq_u32 s52, 0"); e.branch(f"s_cbranch_scc0 {le}")
    I(f"v_mov_b32 v12, {L_TAG}\nds_read_b32 v13, v12\nv_mov_b32 v14, 0")
    add64(32, sWS, EPOCH)
    I("s_mov_b64 exec, 1\ns_waitcnt lgkmcnt(0)")
    I("global_store_dword v14, v13, s[32:33]")
    e.label(le)
    I("s_mov_b64 exec, -1")
    e.label("L_RED_done")
    if O.pad:
        lp = L("pad")
        e.label(lp)
        I("s_memrealtime s[92:93]\ns_waitcnt lgkmcnt(0)\ns_sub_u32 s92, s92, s90")
        I(f"s_cmp_lt_u32 s92, {O.pad}"); br(f"s_cbranch_scc1 {lp}")
    finish()

def ffn_ids():
    I("s_lshr_b32 s48, s28, 1\ns_mul_i32 s48, s48, 9\ns_add_u32 s48, s48, s29\ns_lshl_b32 s48, s48, 6")
    I("s_and_b32 s53, s28, 1\ns_lshl_b32 s49, s53, 5\ns_add_u32 s52, s48, s49")

def role_FFN():
    GB, DB = 88, 120
    e.label("L_FFN")
    stamp(7)
    ffn_ids()
    if not O.gurot: I("s_mov_b32 s53, 0")
    I("v_lshrrev_b32 v8, 4, v0\nv_bfe_u32 v9, v0, 3, 1\nv_lshl_add_u32 v8, v8, 3, v9")
    I("s_lshl_b32 s48, s3, 6\ns_lshl_b32 s49, s53, 5\ns_add_u32 s48, s48, s49\nv_add_u32 v8, s48, v8\nv_mul_u32_u24 v8, 9216, v8")
    I("v_and_b32 v9, 3, v0\nv_lshlrev_b32 v9, 4, v9\ns_lshl_b32 s48, s52, 1\nv_add3_u32 v8, v8, v9, s48")
    I("v_bfe_u32 v9, v0, 2, 1\nv_cmp_eq_u32 vcc, 1, v9")
    I(f"v_mov_b32 v10, s{sWG}\nv_mov_b32 v11, s{sWU}\nv_cndmask_b32 v10, v10, v11, vcc")
    I(f"v_mov_b32 v11, s{sWG+1}\nv_mov_b32 v12, s{sWU+1}\nv_cndmask_b32 v11, v11, v12, vcc")
    I("v_add_co_u32 v10, vcc, v10, v8\nv_addc_co_u32 v11, vcc, 0, v11, vcc")
    I(f"s_mov_b32 s48, {2*9216}\ns_mov_b32 s49, 0")
    I(f"s_mov_b32 s50, {26*9216}\ns_mov_b32 s51, {(-38*9216) & 0xffffffff:#x}")
    I(f"s_cmp_eq_u32 s53, 0\ns_cselect_b32 s50, s50, s51\ns_cselect_b32 s51, 0, -1")
    e.vmq = []
    for k in range(8):
        e.vm(f"global_load_dwordx4 {vr(GB+4*k)}, v[10:11], off {O.ntg}", ("gu", k))
        if k < 7: I(f"v_lshl_add_u64 v[10:11], v[10:11], 0, {'s[50:51]' if k == 3 else 's[48:49]'}")
    I(f"v_lshrrev_b32 v8, 4, v0\nv_lshlrev_b32 v8, 4, v8\ns_lshl_b32 s48, s3, 7\ns_add_u32 s48, s48, {L_XLN2}\nv_add_u32 v8, s48, v8")
    I("s_lshl_b32 s48, s53, 6\nv_add_u32 v13, s48, v8\ns_xor_b32 s48, s48, 64\nv_add_u32 v14, s48, v8")
    I(f"v_and_b32 v8, 7, v0\nv_lshlrev_b32 v8, 3, v8\nv_bfe_u32 v9, v0, 4, 1\nv_lshl_add_u32 v8, v9, 2, v8\nv_mul_u32_u24 v8, {GUS}, v8")
    I(f"v_lshrrev_b32 v9, 5, v0\nv_lshl_add_u32 v8, v9, 2, v8\ns_lshl_b32 s48, s3, 3\ns_add_u32 s48, s48, {L_GUP}\nv_add_u32 v15, s48, v8")
    ld = L("nodown")
    I("s_cmp_ge_u32 s3, 5"); br(f"s_cbranch_scc1 {ld}")
    colblock_voff(1, 1152, 8)
    I("s_mul_i32 s48, s52, 1152"); add64(32, sWD, "s48"); srd(32, 32, 32*1152)
    for i in range(8):
        if i: I(f"s_mov_b32 s48, {4608*i}")
        I(f"buffer_load_dwordx4 {vr(DB+4*i)}, v1, s[32:35], {'s48' if i else '0'} offen {O.nt}")
    I("s_mul_i32 s47, s28, 9\ns_add_u32 s47, s47, s29")
    publish_addr(H4, 4608, 47, 40)
    get_tag(42, 8)
    I("v_bfe_u32 v8, v0, 3, 1\nv_lshlrev_b32 v8, 5, v8\nv_and_b32 v9, 7, v0\nv_lshl_add_u32 v8, v9, 2, v8\nv_lshrrev_b32 v9, 4, v0\nv_add_u32 v8, v8, v9")
    I(f"v_mul_u32_u24 v43, {GUS}, v8")
    I("s_waitcnt vmcnt(8)")
    lj = L("ffj")
    e.branch(f"s_branch {lj}")
    e.label(ld)
    I(f"s_mov_b64 s[44:45], {sp(sWS)}\nv_mov_b32 v40, 0")
    I("s_waitcnt vmcnt(0)")
    e.label(lj)
    I(f"v_mov_b32 v44, {CNT_GU}\nv_mov_b32 v45, 1")
    stamp(8)
    I("s_setprio 3")
    lds_spin(F_X, 1, 8, 9)
    e.vmq = []; e.lgq = []
    for H in range(2): e.lg(f"ds_read_b128 {vr(16+4*H)}, v{13+H}", ("pk", H))
    ACC = 24
    gemv(8, ACC, 28, lambda k: GB + 4*k, lambda k: 16 + k, pre=lambda k: e.lg_wait(("pk", k >> 2)) if (k & 3) == 0 else None)
    I("s_mov_b32 exec_lo, 0x00ff00ff\ns_mov_b32 exec_hi, 0xff00ff00")
    for r in range(4): I(f"ds_write_b32 v15, v{ACC+r} offset:{GUS*r}")
    I("s_mov_b64 exec, 1")
    I("s_waitcnt lgkmcnt(0)")
    I("ds_add_u32 v44, v45\ns_mov_b64 exec, -1")
    I("s_cmp_ge_u32 s3, 5"); br("s_cbranch_scc1 L_FFN_done")
    lds_spin(CNT_GU, 9, 8, 9)
    stamp(9)
    for k in range(4): e.lg(f"ds_read_b128 {vr(12+4*k)}, v43 offset:{L_GUP+16*k}", ("gp", k))
    e.lg(f"ds_read_b64 v[28:29], v43 offset:{L_GUP+64}", ("gp", 4))
    e.lg_wait(("gp", 1))
    pk("add", 12, 12, 16); pk("add", 14, 14, 18)
    e.lg_wait(("gp", 3))
    pk("add", 20, 20, 24); pk("add", 22, 22, 26)
    e.lg_wait(("gp", 4))
    pk("add", 12, 12, 20); pk("add", 14, 14, 22)
    pk("add", 12, 12, 28)
    pk("add", 12, 12, 14)
    I("v_add_f32 v12, v12, v13")
    rne1(12, 13)
    I("v_mul_f32 v14, v12, v12")
    I("v_mov_b32 v15, 0x3d372713")
    I("v_mov_b32_dpp v13, v12 row_ror:8 row_mask:0xf bank_mask:0xf")
    I("v_fma_f32 v14, v14, v15, 1.0")
    I("v_mul_f32 v14, v14, v12")
    I("v_mul_f32 v14, 0xc0135761, v14")
    I("v_exp_f32 v14, v14")
    I("v_add_f32 v14, 1.0, v14")
    I("v_rcp_f32 v14, v14")
    I("v_mul_f32 v12, v12, v14")
    rne1(12, 14)
    I("v_mul_f32 v12, v12, v13")
    I("v_cvt_pk_bf16_f32 v16, v12, v12")
    I("s_waitcnt vmcnt(0)")
    stamp(10)
    ACC2 = 28
    gemv(8, ACC2, 20, lambda i: DB + 4*i, lambda i: 18 + (i & 1),
         pre=lambda i: I(f"v_mov_b32_dpp v{18+(i&1)}, v16 row_newbcast:{i} row_mask:0xf bank_mask:0xf"))
    I("s_mov_b64 exec, s[54:55]")
    tag4(ACC2, 42)
    I(f"global_store_dwordx4 v40, {vr(ACC2)}, s[44:45] sc1")
    I("s_mov_b64 exec, -1")
    e.label("L_FFN_done")
    finish()

def role_FFN_C():
    e.label("L_FFN_C")
    I("s_mul_i32 s47, s28, 9\ns_add_u32 s47, s47, s29")
    I(f"s_and_b32 s48, s47, 15\ns_mul_i32 s48, s48, 2304\ns_add_u32 s48, s48, {H3B}")
    add64(36, sWS, "s48")
    for b in (60, 72):
        for r in range(4): I(f"v_mov_b32 v{b+8+r}, v15")
    I(f"v_lshlrev_b32 v2, 3, v0\nv_mov_b32 v12, {F_X}\nv_mov_b32 v13, 1")
    lds_spin(F_HP, 1, 8, 9)
    stamp(5)
    def mk(b):
        I(f"global_load_dwordx4 {vr(b)}, v1, s[36:37] sc1")
        I(f"global_load_dwordx4 {vr(b+4)}, v1, s[36:37] offset:1024 sc1")
        I("s_mov_b64 exec, 0xffff")
        I(f"global_load_dwordx4 {vr(b+8)}, v1, s[36:37] offset:2048 sc1")
        I("s_mov_b64 exec, -1")
    pollp(mk, 3, 12, 60, 72, 16, 8, 15)
    stamp(6)
    layernorm(list(range(16, 28)), 8, "0xffff", 32, 52)
    I(f"ds_write_b64 v2, v[52:53] offset:{L_XLN2}\nds_write_b64 v2, v[54:55] offset:{L_XLN2+512}")
    I("s_mov_b64 exec, 0xffff")
    I(f"ds_write_b64 v2, v[56:57] offset:{L_XLN2+1024}")
    I("s_mov_b64 exec, -1")
    I("s_waitcnt lgkmcnt(0)")
    I("ds_write_b32 v12, v13")
    stamp(7)
    finish()

def build():
    prologue()
    role_A()
    role_T0_head()
    role_C()
    role_T()
    role_WO()
    role_WO_C()
    role_RED()
    role_FFN_C()
    role_FFN()
    e.label("L_end")
    I("s_endpgm")
    e.raw("L_code_end:")
    head = []
    ref = open("sequential_preLN__sliding_block_cached__geglu_ffn__decode.s.ref").read().split("\n")
    for l in ref:
        if l.startswith("; @launch"): break
        if l.startswith("; Override") or l.startswith("; grid="): continue
        head.append(l)
    head.append(f"; @launch grid=(256,1,1) block=(640,1,1) lds={LDS_BYTES}")
    head.append('.amdgcn_target "amdgcn-amd-amdhsa--gfx950"')
    head.append(".text")
    head.append(f".set CODE_BYTES, L_code_end-{NAME}")
    head.append(".set PF_MASK, 15")
    tail = f""".section .rodata,"a"
.p2align 6
.amdhsa_kernel {NAME}
  .amdhsa_next_free_vgpr 168
  .amdhsa_next_free_sgpr 96
  .amdhsa_accum_offset 168
  .amdhsa_group_segment_fixed_size 0
  .amdhsa_kernarg_size 96
  .amdhsa_user_sgpr_count 2
  .amdhsa_user_sgpr_kernarg_segment_ptr 1
  .amdhsa_system_sgpr_workgroup_id_x 1
  .amdhsa_float_denorm_mode_32 3
.end_amdhsa_kernel
"""
    return "\n".join(head) + "\n" + e.text() + tail

if __name__ == "__main__":
    out = sys.argv[1]
    for a in sys.argv[2:]:
        k, v = a.split("=")
        cur = getattr(O, k)
        setattr(O, k, (v == "1") if isinstance(cur, bool) else (int(v) if isinstance(cur, int) else v))
    txt = build()
    open(out, "w").write(txt)
    print(f"wrote {out}: {len(txt)} bytes, nops {e.nnop}, lds {LDS_BYTES}")
```

```python
import sys, os
sys.path.insert(0, os.path.dirname(os.path.abspath(__file__)))
from emit import Emitter

NAME = "sequential_preLN__sliding_block_cached__geglu_ffn__decode_kernel"

class Opt:
    diag = False
    diag2 = False
    win = 8
    igo = 99
    iwo = 10
    ngo = 4
    nwo = 4
    iq = 16
    nq = 1
    nt = "nt"
    ntg = "nt"
    budget = 200000
    prefetch = True
    krot = 17
    npoll = 1
    gurot = True
    x_notail = False
    pfslow = True
    pfnt = ""
    pad = 0
O = Opt()

HML  = 0x10000
H3B  = 0x14000
H2   = 0x20000
H3A  = 0x60000
H4   = 0x84000
EPOCH = 0xE0000
H1   = 0xE8000
TAGM = 0x3ff
F_TAG, F_Q, CNT_O, F_GOE, F_GOL, F_X, CNT_GU, CNT_S, F_PUB, F_Y, F_K, F_HP = 0, 4, 8, 12, 16, 20, 24, 28, 32, 36, 40, 44
L_TAG = 48
L_Y = 0x80
L_STAT = 0x180
L_LN1, L_Q, L_OP, L_XLN2, L_GUP = 0x200, 0x700, 0xA00, 0x1A00, 0x1F00
GUS = 80
LDS_BYTES = L_GUP + 64*GUS

sX, sK, sV, sWQ, sWO, sBX, sWG, sWU, sWD, sOUT, sDBG, sWS = 4, 6, 8, 10, 12, 14, 16, 18, 20, 22, 24, 26
sJ, sS, sBUD, sTAGM = 28, 29, 30, 31
sT3 = 51
LOG2E = 0x3fb8aa3b
SEL = 4
e = Emitter()
I = e.I
uid = [0]
def L(p):
    uid[0] += 1
    return f"L_{p}_{uid[0]}"
def sp(r): return f"s[{r}:{r+1}]"
def vr(r, n=4): return f"v[{r}:{r+n-1}]"
def br(text):
    e.raw("  " + text); e._advance(1)

def add64(d, b, off):
    I(f"s_add_u32 s{d}, s{b}, {off}")
    I(f"s_addc_u32 s{d+1}, s{b+1}, 0")

def srd(d, base, nrec):
    if d != base: I(f"s_mov_b32 s{d}, s{base}")
    I(f"s_and_b32 s{d+1}, s{base+1}, 0xffff")
    I(f"s_mov_b32 s{d+2}, {nrec}")
    I(f"s_mov_b32 s{d+3}, 0x20000")

def stamp(k):
    if O.diag: I(f"s_memrealtime s[{64+2*k}:{65+2*k}]")

def stamps_dyn():
    I("s_memrealtime s[86:87]")
    I("s_waitcnt lgkmcnt(0)")
    I("s_mov_b64 exec, 1")
    add64(62, sWS, "0x20000000")
    I("s_lshl_b32 s61, s60, 8\ns_add_u32 s61, s61, s2\ns_lshl_b32 s61, s61, 7")
    add64(62, 62, "s61")
    I("v_mov_b32 v2, 0")
    for k in range(12):
        I(f"v_mov_b32 v4, s{64+2*k}\nv_mov_b32 v5, s{65+2*k}")
        I(f"global_store_dwordx2 v2, v[4:5], s[62:63] offset:{8*k}")
        I("s_nop 1")

def finish(role=None):
    if O.diag:
        I("s_mov_b32 s60, s59")
        stamps_dyn()
    I("s_endpgm")

def budget(done):
    I(f"s_cmp_eq_u32 s{sBUD}, 0")
    br(f"s_cbranch_scc1 {done}")
    I(f"s_sub_u32 s{sBUD}, s{sBUD}, 1")

def lds_spin(addr, val, vt=2, va=3):
    lp, done = L("spin"), L("spun")
    I(f"v_mov_b32 v{va}, {addr}")
    e.settle()
    e.label(lp)
    I(f"ds_read_b32 v{vt}, v{va}")
    budget(done)
    I("s_waitcnt lgkmcnt(0)")
    I(f"v_readfirstlane_b32 s{sT3}, v{vt}")
    I(f"s_cmp_ge_u32 s{sT3}, {val}")
    br(f"s_cbranch_scc0 {lp}")
    e.label(done)
    I("s_waitcnt lgkmcnt(0)")
    e.lgq = []

def lds_set(addr, val=1, vt=2, va=3):
    I(f"v_mov_b32 v{va}, {addr}\nv_mov_b32 v{vt}, {val}")
    I(f"ds_write_b32 v{va}, v{vt}")

def lds_inc(addr, va, vt):
    I(f"v_mov_b32 v{va}, {addr}\nv_mov_b32 v{vt}, 1\ns_mov_b64 exec, 1\nds_add_u32 v{va}, v{vt}\ns_mov_b64 exec, -1")

def check_set(src, dst, n, vt, vtag, mask=TAGM):
    for k in range(n): I(f"v_xor_b32 v{dst+k}, v{src+k}, v{vtag}")
    r = [dst+k for k in range(n)]
    I(f"v_or3_b32 v{vt}, v{r[0]}, v{r[1]}, v{r[2]}")
    q = r[3:]
    while len(q) >= 2:
        I(f"v_or3_b32 v{vt}, v{vt}, v{q[0]}, v{q[1]}"); q = q[2:]
    if q: I(f"v_or_b32 v{vt}, v{vt}, v{q[0]}")
    I(f"v_and_b32 v{vt}, {mask:#x}, v{vt}")
    I(f"v_cmp_ne_u32 vcc, 0, v{vt}")

def pollp(mk, nloads, n, setA, setB, dst, vt, vtag):
    lp, done = L("poll"), L("polled")
    if O.npoll == 1:
        e.settle(); e.label(lp)
        mk(setA)
        budget(done)
        I("s_waitcnt vmcnt(0)")
        check_set(setA, dst, n, vt, vtag)
        br(f"s_cbranch_vccnz {lp}")
        e.label(done)
    else:
        mk(setA)
        e.settle(); e.label(lp)
        mk(setB)
        I(f"s_waitcnt vmcnt({nloads})")
        check_set(setA, dst, n, vt, vtag)
        br(f"s_cbranch_vccz {done}")
        budget(done)
        mk(setA)
        I(f"s_waitcnt vmcnt({nloads})")
        check_set(setB, dst, n, vt, vtag)
        br(f"s_cbranch_vccnz {lp}")
        e.label(done)
    e.vmq = []

def get_tag(v, t):
    lds_spin(F_TAG, 1, t, t+1)
    I(f"v_mov_b32 v{t}, {L_TAG}")
    I(f"ds_read_b32 v{v}, v{t}")
    I(f"s_movk_i32 s{sTAGM}, {TAGM:#x}")
    I("s_waitcnt lgkmcnt(0)")
    I(f"v_and_b32 v{v}, {TAGM:#x}, v{v}")

def tag4(r, vtag):
    for k in range(4): I(f"v_bfi_b32 v{r+k}, s{sTAGM}, v{vtag}, v{r+k}")

def rows_allreduce(op, vs, steps=(8, 4, 2, 1)):
    for k in steps:
        for v in vs: I(f"v_{op}_f32_dpp v{v}, v{v}, v{v} row_ror:{k} row_mask:0xf bank_mask:0xf")

def cross_allreduce(op, vs, ts):
    for sw in ("v_permlane16_swap_b32", "v_permlane32_swap_b32"):
        for v, t in zip(vs, ts): I(f"v_mov_b32 v{t}, v{v}")
        for v, t in zip(vs, ts): I(f"{sw} v{v}, v{t}")
        for v, t in zip(vs, ts): I(f"v_{op}_f32 v{v}, v{v}, v{t}")

def allreduce(op, vs, ts):
    rows_allreduce(op, vs); cross_allreduce(op, vs, ts)

def rscatter4(r):
    I(f"v_permlane32_swap_b32 v{r}, v{r+2}")
    I(f"v_permlane32_swap_b32 v{r+1}, v{r+3}")
    I(f"v_pk_add_f32 v[{r}:{r+1}], v[{r}:{r+1}], v[{r+2}:{r+3}]")
    I(f"v_permlane16_swap_b32 v{r}, v{r+1}")
    I(f"v_add_f32 v{r}, v{r}, v{r+1}")

def gather_rows(src, dst):
    I(f"v_mov_b32 v{dst}, v{src}\nv_mov_b32 v{dst+1}, v{src}")
    I(f"v_permlane16_swap_b32 v{dst}, v{dst+1}")
    I(f"v_mov_b32 v{dst+2}, v{dst}\nv_mov_b32 v{dst+3}, v{dst+1}")
    I(f"v_permlane32_swap_b32 v{dst}, v{dst+2}\nv_permlane32_swap_b32 v{dst+1}, v{dst+3}")

def rne1(v, t):
    I(f"v_cvt_pk_bf16_f32 v{t}, v{v}, v{v}")
    I(f"v_lshlrev_b32 v{v}, 16, v{t}")

def rne2(a, b, t):
    I(f"v_cvt_pk_bf16_f32 v{t}, v{a}, v{b}")
    I(f"v_lshlrev_b32 v{a}, 16, v{t}")
    I(f"v_and_b32 v{b}, 0xffff0000, v{t}")

def pk(op, d, a, b, mods=""):
    I(f"v_pk_{op}_f32 v[{d}:{d+1}], v[{a}:{a+1}], v[{b}:{b+1}] {mods}".rstrip())

def make_sel(t):
    m, b, h, c = t, t+1, t+2, t+3
    I(f"v_and_b32 v{m}, 15, v0")
    I(f"v_lshrrev_b32 v{b}, 3, v{m}")
    I(f"v_mul_u32_u24 v{b}, 0x0202, v{b}")
    I(f"v_add_u32 v{b}, 0x0100, v{b}")
    I(f"v_lshlrev_b32 v{h}, 16, v{b}")
    I(f"v_or_b32 v{h}, 0x0c0c, v{h}")
    I(f"v_or_b32 v{b}, 0x0c0c0000, v{b}")
    I(f"v_and_b32 v{c}, 1, v{m}")
    I(f"v_cmp_eq_u32 vcc, 1, v{c}")
    I(f"v_cndmask_b32 v{b}, v{b}, v{h}, vcc")
    I(f"v_bfe_u32 v{m}, v{m}, 1, 2")
    I(f"v_mov_b32 v{c}, 0x0c0c0c0c")
    for d in range(4):
        I(f"v_cmp_eq_u32 vcc, {d}, v{m}")
        I(f"v_cndmask_b32 v{SEL+d}, v{c}, v{b}, vcc")

def build_a(a, src):
    for d in range(4): I(f"v_perm_b32 v{a+d}, v{src}, v{src}, v{SEL+d}")

def mfma(acc, a, b, first=False):
    c = "0" if first else vr(acc)
    I(f"v_mfma_f32_16x16x32_bf16 {vr(acc)}, {vr(a)}, {vr(b)}, {c}")

def gemv(n, acc, abuf, wreg, src, pre=None, wait=None):
    def build(i):
        if pre: pre(i)
        build_a(abuf + 4*(i & 1), src(i))
    build(0)
    if n > 1: build(1)
    for i in range(n):
        if wait: wait(i)
        mfma(acc, abuf + 4*(i & 1), wreg(i), first=(i == 0))
        if i + 2 < n: build(i + 2)

def layernorm(f, nA, maskB, t, out):
    n = len(f); f0 = f[0]
    s1, s2, u, w, mm, rr = t, t+1, t+2, t+3, t+4, t+6
    d = t + 8
    I(f"v_readlane_b32 s48, v{f0}, 0")
    I("s_mov_b32 s49, s48")
    for k in range(0, nA, 2): I(f"v_pk_add_f32 v[{d+k}:{d+k+1}], v[{f0+k}:{f0+k+1}], s[48:49] neg_lo:[0,1] neg_hi:[0,1]")
    for k in range(nA, n): I(f"v_mov_b32 v{d+k}, 0")
    I(f"s_mov_b64 exec, {maskB}")
    for k in range(nA, n, 2): I(f"v_pk_add_f32 v[{d+k}:{d+k+1}], v[{f0+k}:{f0+k+1}], s[48:49] neg_lo:[0,1] neg_hi:[0,1]")
    I("s_mov_b64 exec, -1")
    pk("mul", mm, d, d)
    pk("add", rr, d, d+2)
    for k in range(2, n, 2): I(f"v_pk_fma_f32 v[{mm}:{mm+1}], v[{d+k}:{d+k+1}], v[{d+k}:{d+k+1}], v[{mm}:{mm+1}]")
    for k in range(4, n, 2): pk("add", rr, rr, d+k)
    I(f"v_add_f32 v{s2}, v{mm}, v{mm+1}\nv_add_f32 v{s1}, v{rr}, v{rr+1}")
    allreduce("add", [s1, s2], [u, w])
    I(f"v_mul_f32 v{s1}, 0x3ae38e39, v{s1}\nv_mul_f32 v{s2}, 0x3ae38e39, v{s2}")
    I(f"v_fma_f32 v{s2}, -v{s1}, v{s1}, v{s2}")
    I(f"v_add_f32 v{s1}, s48, v{s1}")
    I(f"v_max_f32 v{s2}, 0, v{s2}")
    I(f"v_cvt_pk_bf16_f32 v{u}, v{s1}, v{s2}")
    I(f"v_and_b32 v{s2}, 0xffff0000, v{u}\nv_lshlrev_b32 v{mm}, 16, v{u}")
    I(f"v_add_f32 v{s2}, 0x3727c5ac, v{s2}")
    I(f"v_mov_b32 v{mm+1}, v{mm}")
    rne1(s2, u)
    I(f"v_sqrt_f32 v{s2}, v{s2}")
    for k in range(0, n, 2): I(f"v_pk_add_f32 v[{d+k}:{d+k+1}], v[{f0+k}:{f0+k+1}], v[{mm}:{mm+1}] neg_lo:[0,1] neg_hi:[0,1]")
    rne1(s2, u)
    I(f"v_rcp_f32 v{rr}, v{s2}")
    for k in range(0, n, 2): I(f"v_cvt_pk_bf16_f32 v{f0+k}, v{d+k}, v{d+k+1}")
    I(f"v_mov_b32 v{rr+1}, v{rr}")
    for k in range(0, n, 2):
        I(f"v_lshlrev_b32 v{d+k}, 16, v{f0+k}\nv_and_b32 v{d+k+1}, 0xffff0000, v{f0+k}")
    for k in range(0, n, 2): pk("mul", d+k, d+k, rr)
    for k in range(0, n, 2): I(f"v_cvt_pk_bf16_f32 v{out+k//2}, v{d+k}, v{d+k+1}")

def ids():
    I("s_and_b32 s28, s2, 7\ns_lshl_b32 s28, s28, 1\ns_bfe_u32 s29, s2, 0x10003\ns_add_u32 s28, s28, s29")
    I("s_lshr_b32 s29, s2, 4")
    I(f"s_mov_b32 s{sBUD}, {O.budget}")

def prologue():
    e.raw(f".globl {NAME}\n.p2align 8\n.type {NAME},@function\n{NAME}:")
    I("s_cmp_ge_u32 s2, 256")
    br("s_cbranch_scc1 L_end")
    I("s_load_dwordx16 s[4:19], s[0:1], 0")
    I("s_load_dwordx8 s[20:27], s[0:1], 64")
    I("v_lshrrev_b32 v1, 6, v0")
    I("v_and_b32 v0, 63, v0")
    I("v_readfirstlane_b32 s3, v1")
    if O.pad: I("s_memrealtime s[90:91]")
    if O.diag:
        for k in range(66, 88): I(f"s_mov_b32 s{k}, 0")
        I("s_mov_b32 s59, s3")
    stamp(0)
    I("s_cmp_eq_u32 s3, 1"); br("s_cbranch_scc1 L_C")
    I("s_cmp_ge_u32 s3, 6"); br("s_cbranch_scc1 L_T")
    I("s_cmp_ge_u32 s3, 2"); br("s_cbranch_scc1 L_A")

def merge_tile(t, DA, S0):
    d0, d1 = DA + 8*(t & 1), DA + 8*(t & 1) + 4
    for h in range(2):
        I(f"v_cndmask_b32 v{d0+h}, v{d0+h}, v{d1+h}, s[56:57]")
        I(f"v_cndmask_b32 v{d0+2+h}, v{d1+2+h}, v{d0+2+h}, s[56:57]")
    for h in range(2):
        I(f"v_add_f32_dpp v{S0+h}, v{d0+2+h}, v{d0+h} quad_perm:[1,0,3,2] row_mask:{1<<t:#x} bank_mask:0xf")

def role_A():
    KB, VB = 40, 104
    def KR(t, ee, l): return KB + 4*(4*t + 2*ee + l)
    def VR(i): return VB + 4*i
    QA, DA, S0, S1, P = 8, 16, 32, 33, 34
    QADDR, OADDR, HOFF = 35, 36, 37
    e.label("L_A")
    I("s_setprio 2")
    ids()
    I("s_sub_u32 s3, s3, 2")
    I("v_bfe_u32 v8, v0, 1, 3\nv_lshlrev_b32 v8, 8, v8")
    I("v_lshrrev_b32 v9, 4, v0")
    I("v_and_b32 v10, 1, v0")
    I("v_lshl_add_u32 v11, v9, 1, v10\nv_lshl_add_u32 v1, v11, 4, v8")
    I("s_lshl_b32 s49, s3, 4\ns_add_u32 s49, s49, s29")
    I(f"s_lshl_b32 s48, s28, 24\ns_add_u32 s48, s48, {61440*256}")
    I("v_xor_b32 v10, 1, v10\nv_lshl_add_u32 v11, v9, 1, v10\nv_lshl_add_u32 v2, v11, 4, v8")
    I("s_lshl_b32 s40, s49, 11")
    def grp(k): I(f"s_add_u32 s50, s49, {O.krot*k}\ns_and_b32 s50, s50, 63\ns_add_u32 s50, s50, {64*k}\ns_lshl_b32 s{40+k}, s50, 11")
    for k in range(1, 8): grp(k)
    I("s_waitcnt lgkmcnt(0)")
    add64(32, sK, "s48"); srd(32, 32, 0x100000)
    I("s_barrier")
    seq = [("K", k) for k in range(16)] + [("V", i) for i in range(16)]
    def issue(n):
        kind, k = seq[n]
        if kind == "K":
            t, ee, l = k >> 2, (k >> 1) & 1, k & 1
            e.vm(f"buffer_load_dwordx4 {vr(KR(t,ee,l))}, v{1+ee}, s[32:35], s{40+2*t+ee} offen offset:{l*128} {O.nt}", ("K", k))
        else:
            e.vm(f"buffer_load_dwordx4 {vr(VR(k))}, v{(3, 31)[k & 1]}, s[36:39], 0 offen offset:{256*(k>>1)} {O.nt}", ("V", k))
            for idx, flag in ((O.iwo, F_GOE), (O.igo, F_GOL)):
                if k == idx: lds_inc(flag, 38, 39)
        if n == O.iq: lds_inc(F_K, 38, 39)
    for n in range(O.win): issue(n)
    stamp(1)
    for p_, vd in ((0, 3), (1, 31)):
        I(f"v_mov_b32 v{vd}, s{40+p_}")
        for g in range(1, 4):
            I(f"v_cmp_eq_u32 vcc, {g}, v9\nv_mov_b32 v11, s{40+2*g+p_}\nv_cndmask_b32 v{vd}, v{vd}, v11, vcc")
        I(f"v_and_b32 v10, 15, v0\nv_lshl_add_u32 v{vd}, v10, 4, v{vd}")
    add64(36, sV, "s48"); srd(36, 36, 0x100000)
    make_sel(20)
    I(f"v_and_b32 v20, 1, v0\nv_lshlrev_b32 v20, 8, v20")
    I("v_bfe_u32 v21, v0, 1, 1\nv_lshl_add_u32 v21, v9, 1, v21")
    I(f"v_lshl_add_u32 v{QADDR}, v21, 4, v20")
    I("s_mov_b32 s56, 0xaaaaaaaa\ns_mov_b32 s57, 0xaaaaaaaa")
    I("v_and_b32 v20, 15, v0\nv_lshlrev_b32 v20, 1, v20\nv_and_b32 v21, 1, v9\nv_add_u32 v20, v20, v21")
    I("v_lshrrev_b32 v21, 1, v9\nv_lshl_add_u32 v20, v21, 5, v20")
    I(f"s_lshl_b32 s49, s3, 10\ns_add_u32 s49, s49, {L_OP}\nv_lshl_add_u32 v{OADDR}, v20, 4, s49")
    I(f"v_lshlrev_b32 v20, 12, v9\nv_and_b32 v21, 15, v0\nv_lshl_add_u32 v{HOFF}, v21, 4, v20")
    I(f"s_lshl_b32 s49, s28, 14\ns_lshl_b32 s50, s29, 8\ns_add_u32 s49, s49, s50\ns_add_u32 s49, s49, {H2}")
    add64(52, sWS, "s49")
    I(f"s_lshl_b32 s49, s28, 10\ns_lshl_b32 s50, s29, 4\ns_add_u32 s49, s49, s50\ns_add_u32 s49, s49, {HML}")
    add64(54, sWS, "s49")
    nxt = O.win
    while nxt < 32:
        e.vm_wait_n(O.win - 1); issue(nxt); nxt += 1
    stamp(2)
    lds_spin(F_Q, 1, 38, 39)
    stamp(3)
    I(f"v_mov_b32 v38, {L_TAG}\nds_read_b32 v39, v38\ns_movk_i32 s{sTAGM}, {TAGM:#x}")
    e.lg(f"ds_read_b128 {vr(QA)}, v{QADDR} offset:{L_Q}", "qa0")
    e.lg(f"ds_read_b128 {vr(QA+4)}, v{QADDR} offset:{L_Q+128}", "qa1")
    e.vm_wait(("K", 15))
    e.lg_all()
    I(f"v_and_b32 v39, {TAGM:#x}, v39")
    for t in range(4):
        d0, d1 = DA + 8*(t & 1), DA + 8*(t & 1) + 4
        for ee, d in ((0, d0), (1, d1)): mfma(d, QA, KR(t, ee, 0), first=True)
        for ee, d in ((0, d0), (1, d1)): mfma(d, QA+4, KR(t, ee, 1))
        if t == 0: I("v_readfirstlane_b32 s58, v39")
        if t >= 1: merge_tile(t-1, DA, S0)
    merge_tile(3, DA, S0)
    rne2(S0, S1, 20)
    I(f"v_mul_f32 v{S0}, 0x3db504f3, v{S0}\nv_mul_f32 v{S1}, 0x3db504f3, v{S1}")
    rne2(S0, S1, 20)
    M0, L0, M1, L1 = 24, 25, 26, 27
    I(f"v_mov_b32 v{M0}, v{S0}\nv_mov_b32 v{M1}, v{S1}")
    allreduce("max", [M0, M1], [20, 21])
    I(f"v_sub_f32 v{S0}, v{S0}, v{M0}\nv_sub_f32 v{S1}, v{S1}, v{M1}")
    I(f"v_mul_f32 v{S0}, {LOG2E:#x}, v{S0}\nv_mul_f32 v{S1}, {LOG2E:#x}, v{S1}")
    I(f"v_exp_f32 v{L0}, v{S0}\nv_exp_f32 v{L1}, v{S1}")
    I(f"v_cvt_pk_bf16_f32 v{P}, v{L0}, v{L1}")
    stamp(4)
    ACC = 16
    def bld(i):
        I(f"v_mov_b32_dpp v{20+(i&1)}, v{P} row_newbcast:{i} row_mask:0xf bank_mask:0xf")
        build_a(QA + 4*(i & 1), 20 + (i & 1))
    def pv(i):
        e.vm_wait(("V", i))
        mfma(ACC, QA + 4*(i & 1), VR(i), first=(i == 0))
        if i + 2 < 16: bld(i + 2)
    bld(0); bld(1)
    for i in range(4): pv(i)
    allreduce("add", [L0, L1], [22, 23])
    I(f"s_lshl_b32 s48, s3, 4\ns_add_u32 s48, s48, {L_STAT}\nv_mov_b32 v22, s48")
    I("s_mov_b64 exec, 1")
    e.lg(f"ds_write_b128 v22, {vr(M0)}", "st")
    I(f"v_mov_b32 v22, {CNT_S}\nv_mov_b32 v23, 1")
    e.lg_wait("st")
    I("ds_add_u32 v22, v23")
    I("s_mov_b64 exec, -1")
    for i in range(4, 8): pv(i)
    lds_spin(CNT_S, 4, 22, 23)
    I(f"v_mov_b32 v22, {L_STAT}")
    ST = 40
    for w in range(4): e.lg(f"ds_read_b128 {vr(ST+4*w)}, v22 offset:{16*w}", ("sw", w))
    e.lg_wait(("sw", 3))
    GM0, GM1, GL0, GL1, F = 56, 57, 58, 59, 60
    I(f"v_max3_f32 v{GM0}, v{ST}, v{ST+4}, v{ST+8}\nv_max3_f32 v{GM1}, v{ST+2}, v{ST+6}, v{ST+10}")
    I(f"v_max_f32 v{GM0}, v{GM0}, v{ST+12}\nv_max_f32 v{GM1}, v{GM1}, v{ST+14}")
    for w in range(4): I(f"v_sub_f32 v{ST+4*w}, v{ST+4*w}, v{GM0}\nv_sub_f32 v{ST+4*w+2}, v{ST+4*w+2}, v{GM1}")
    for w in range(4): I(f"v_mul_f32 v{ST+4*w}, {LOG2E:#x}, v{ST+4*w}\nv_mul_f32 v{ST+4*w+2}, {LOG2E:#x}, v{ST+4*w+2}")
    for w in range(4): I(f"v_exp_f32 v{ST+4*w}, v{ST+4*w}\nv_exp_f32 v{ST+4*w+2}, v{ST+4*w+2}")
    I(f"v_sub_f32 v{M0}, v{M0}, v{GM0}\nv_sub_f32 v{M1}, v{M1}, v{GM1}")
    I(f"v_mul_f32 v{GL0}, v{ST}, v{ST+1}\nv_mul_f32 v{GL1}, v{ST+2}, v{ST+3}")
    I(f"v_mul_f32 v{M0}, {LOG2E:#x}, v{M0}\nv_mul_f32 v{M1}, {LOG2E:#x}, v{M1}")
    for w in range(1, 4): I(f"v_fmac_f32 v{GL0}, v{ST+4*w}, v{ST+4*w+1}\nv_fmac_f32 v{GL1}, v{ST+4*w+2}, v{ST+4*w+3}")
    I(f"v_exp_f32 v{M0}, v{M0}\nv_exp_f32 v{M1}, v{M1}")
    I("s_mov_b32 s48, 0\ns_mov_b32 s49, -1\ns_mov_b32 s50, 0xc\ns_mov_b32 s51, 0")
    I(f"v_cndmask_b32 v{F}, v{M0}, v{M1}, s[48:49]")
    ML = 64
    I(f"v_cndmask_b32 v{ML}, v{GM0}, v{GM1}, s[50:51]\nv_cndmask_b32 v{ML+1}, v{GL0}, v{GL1}, s[50:51]")
    I(f"v_mov_b32 v{ML+8}, s58")
    I(f"v_mov_b32 v{ML+2}, 0\nv_mov_b32 v{ML+3}, 0\nv_lshlrev_b32 v{ML+4}, 8, v0")
    tag4(ML, ML+8)
    I(f"v_mov_b32 v{ML+5}, {CNT_O}\nv_mov_b32 v{ML+6}, 1\nv_lshlrev_b32 v{ML+7}, 4, v0")
    I(f"v_mov_b32 v{F+1}, v{F}")
    for i in range(8, 16): pv(i)
    stamp(5)
    pk("mul", ACC, ACC, F); pk("mul", ACC+2, ACC+2, F)
    e.lg(f"ds_write_b128 v{OADDR}, {vr(ACC)}", "op")
    I("s_mov_b64 exec, 1")
    e.lg_wait("op")
    e.lg(f"ds_add_rtn_u32 v{ML+6}, v{ML+5}, v{ML+6}", "cnt")
    e.lg_wait("cnt")
    I(f"v_readfirstlane_b32 s48, v{ML+6}")
    I("s_mov_b64 exec, -1")
    I("s_cmp_eq_u32 s48, 3")
    br("s_cbranch_scc0 L_A_done")
    for w in range(4): e.lg(f"ds_read_b128 {vr(40+4*w)}, v{ML+7} offset:{L_OP+1024*w}", ("o", w))
    e.lg_wait(("o", 1))
    pk("add", 40, 40, 44); pk("add", 42, 42, 46)
    e.lg_wait(("o", 3))
    pk("add", 48, 48, 52); pk("add", 50, 50, 54)
    pk("add", 40, 40, 48); pk("add", 42, 42, 50)
    tag4(40, ML+8)
    I(f"global_store_dwordx4 v{HOFF}, {vr(40)}, s[52:53] sc1")
    I("s_mov_b64 exec, 0xf")
    I(f"global_store_dwordx4 v{ML+4}, {vr(ML)}, s[54:55] sc1")
    I("s_mov_b64 exec, -1")
    lds_set(F_HP, 1, 38, 39)
    e.settle()
    e.label("L_A_done")
    stamp(6)
    if not O.x_notail:
        if O.pfslow:
            I("s_cmp_ge_u32 s29, 13"); br("s_cbranch_scc1 L_A_pf")
        I("s_cmp_lt_u32 s29, 9")
        br("s_cbranch_scc0 L_A_end")
        I("s_add_u32 s3, s3, 5")
        lds_spin(F_HP, 1, 38, 39)
        e.branch("s_branch L_FFN")
        if O.pfslow:
            e.label("L_A_pf")
            I("s_lshr_b32 s48, s28, 1")
            I("s_sub_u32 s49, 3, s48\ns_and_b32 s49, s49, 7")
            I("s_mul_i32 s50, s48, 9\ns_add_u32 s50, s50, s49\ns_lshl_b32 s50, s50, 7")
            I("s_and_b32 s51, s28, 1\ns_mul_i32 s51, s51, 3\ns_add_u32 s51, s51, s29\ns_sub_u32 s51, s51, 13\ns_lshl_b32 s51, s51, 2\ns_add_u32 s51, s51, s3")
            I("s_mul_i32 s51, s51, 24*9216\ns_add_u32 s50, s50, s51")
            I("v_lshrrev_b32 v8, 3, v0\nv_mul_u32_u24 v8, 9216, v8\nv_and_b32 v9, 7, v0\nv_lshl_add_u32 v8, v9, 4, v8")
            I(f"s_mov_b32 s32, s{sWG}"); srd(32, sWG, 576*9216)
            I(f"s_mov_b32 s36, s{sWU}"); srd(36, sWU, 576*9216)
            lds_spin(F_HP, 1, 38, 39)
            def six():
                for i in range(3):
                    I(f"s_add_u32 s51, s50, {8*9216*i}")
                    I(f"buffer_load_dwordx4 {vr(40+8*i)}, v8, s[32:35], s51 offen {O.pfnt}")
                    I(f"buffer_load_dwordx4 {vr(44+8*i)}, v8, s[36:39], s51 offen {O.pfnt}")
            six()
            I("s_cmp_eq_u32 s48, 3"); br("s_cbranch_scc0 L_A_end")
            I("s_add_u32 s50, s50, 8*128")
            six()
    e.label("L_A_end")
    finish()

def half_combine(acc, t):
    for r in range(4): I(f"v_mov_b32 v{t+r}, v{acc+r}")
    for r in range(4): I(f"v_permlane32_swap_b32 v{acc+r}, v{t+r}")
    for r in range(4): I(f"v_add_f32_dpp v{acc+r}, v{t+r}, v{acc+r} row_ror:8 row_mask:0xf bank_mask:0xf")

def role_T0_head():
    WB = 32
    I("s_setprio 3")
    ids()
    I("v_lshlrev_b32 v1, 4, v0")
    I("v_lshrrev_b32 v16, 4, v0\nv_bfe_u32 v17, v0, 3, 1")
    I("v_and_b32 v18, 7, v0\nv_lshlrev_b32 v18, 4, v18")
    I("v_lshl_add_u32 v19, v16, 3, v17\nv_lshl_add_u32 v2, v19, 13, v18")
    I("v_lshl_add_u32 v19, v16, 2, v17\nv_lshl_add_u32 v3, v19, 13, v18")
    I("s_lshr_b32 s48, s29, 2\ns_mul_i32 s49, s48, 0x120000\ns_and_b32 s50, s29, 3\ns_lshl_b32 s50, s50, 7\ns_add_u32 s49, s49, s50")
    I("s_lshl_b32 s50, s28, 9\ns_add_u32 s49, s49, s50")
    I("s_waitcnt lgkmcnt(0)")
    srd(32, sX, 1152)
    e.vm(f"buffer_load_dwordx4 {vr(8)}, v1, s[32:35], 0 offen", "xa")
    e.vm(f"buffer_load_dwordx4 {vr(12)}, v1, s[32:35], 0 offen offset:1024", "xb")
    add64(36, sWQ, "s49"); srd(36, 36, 144*8192)
    steps = [(2, (32*Ig + 2*ii)*8192) for Ig in range(4) for ii in range(4)] + [(3, 128*8192), (3, 130*8192)]
    for k, (vo, so) in enumerate(steps):
        if so: I(f"s_mov_b32 s50, {so}")
        e.vm(f"buffer_load_dwordx4 {vr(WB+4*k)}, v{vo}, s[36:39], {'s50' if so else '0'} offen {O.nt}", ("wq", k))
    I("s_barrier")
    stamp(1)
    make_sel(104)
    I("v_lshrrev_b32 v104, 4, v0\nv_lshlrev_b32 v105, 4, v104\nv_lshlrev_b32 v106, 3, v104")
    I(f"s_mul_i32 s50, s48, 288\ns_add_u32 s50, s50, {L_LN1}")
    I("v_add_u32 v150, s50, v105\nv_add_u32 v151, s50, v106")
    I("v_and_b32 v152, 7, v0\nv_lshlrev_b32 v152, 1, v152\nv_add_u32 v152, v152, v104\nv_lshlrev_b32 v152, 4, v152")
    I("s_lshl_b32 s49, s28, 13\ns_lshl_b32 s50, s48, 11\ns_add_u32 s49, s49, s50\ns_and_b32 s50, s29, 3\ns_lshl_b32 s50, s50, 8\ns_add_u32 s49, s49, s50")
    I(f"s_add_u32 s49, s49, {H1}")
    add64(44, sWS, "s49")
    e.vm_wait("xb")
    for half, base in ((0, 8), (1, 12)):
        for d in range(4):
            I(f"v_lshlrev_b32 v{16+8*half+2*d}, 16, v{base+d}")
            I(f"v_and_b32 v{17+8*half+2*d}, 0xffff0000, v{base+d}")
    layernorm(list(range(16, 32)), 8, "0xff", 104, 8)
    e.lg(f"ds_write_b128 v1, {vr(8)} offset:{L_LN1}", "ln")
    I("s_mov_b64 exec, 0xff")
    e.lg(f"ds_write_b128 v1, {vr(12)} offset:{L_LN1+1024}", "ln2")
    I("s_mov_b64 exec, -1")
    e.lg_all()
    for Ig in range(4): e.lg(f"ds_read_b128 {vr(108+4*Ig)}, v150 offset:{64*Ig}", ("pk", Ig))
    e.lg(f"ds_read_b64 v[124:125], v151 offset:256", ("pk", 4))
    stamp(2)
    ACC = 16
    gemv(18, ACC, 20, lambda k: WB + 4*k, lambda k: 108 + k,
         pre=lambda k: e.lg_wait(("pk", k >> 2)) if (k & 3) == 0 else None,
         wait=lambda k: e.vm_wait(("wq", k)))
    stamp(3)
    get_tag_full = True
    lds_spin(F_TAG, 1, 28, 29)
    I(f"v_mov_b32 v28, {L_TAG}\nds_read_b32 v30, v28")
    half_combine(ACC, 20)
    I("s_waitcnt lgkmcnt(0)")
    I(f"v_mov_b32 v28, v{ACC}\nv_mov_b32 v29, v{ACC+1}\nv_mov_b32 v31, v30")
    I(f"v_mov_b32 v20, v{ACC+2}\nv_mov_b32 v21, v{ACC+3}\nv_mov_b32 v22, v30\nv_mov_b32 v23, v30")
    I("s_mov_b32 exec_lo, 0x00ff00ff\ns_mov_b32 exec_hi, 0")
    I(f"global_store_dwordx4 v152, v[28:31], s[44:45] sc1")
    I(f"global_store_dwordx4 v152, v[20:23], s[44:45] offset:1024 sc1")
    I("s_mov_b64 exec, -1")
    lds_set(F_PUB, 1, 24, 25)
    stamp(4)
    I("s_mov_b32 s3, 0")
    e.branch("s_branch L_Tail")

def role_C():
    e.comment("===== wave 1: launch tag, gathers")
    e.label("L_C")
    I("s_setprio 3")
    I("v_lshlrev_b32 v2, 2, v0\nv_mov_b32 v3, 0")
    I("ds_write_b32 v2, v3")
    ids()
    I("s_waitcnt lgkmcnt(0)")
    I("s_barrier")
    add64(34, sWS, EPOCH)
    I("s_load_dword s56, s[34:35], 0")
    I("v_lshlrev_b32 v1, 4, v0")
    if O.prefetch:
        lp = L("pc")
        I("s_getpc_b64 s[32:33]")
        e.label(lp)
        I(f"s_sub_u32 s32, s32, {lp}-{NAME}\ns_subb_u32 s33, s33, 0")
        I("s_lshr_b32 s48, s2, 3\ns_and_b32 s48, s48, PF_MASK\ns_lshl_b32 s48, s48, 10")
        I("v_add_u32 v2, s48, v1\nv_min_u32 v2, CODE_BYTES-16, v2")
        I("global_load_dwordx4 v[16:19], v2, s[32:33]")
    stamp(1)
    I("s_waitcnt lgkmcnt(0)")
    I("s_add_u32 s56, s56, 1")
    I(f"v_mov_b32 v40, s56")
    I(f"v_mov_b32 v3, {L_TAG}\nds_write_b32 v3, v40\ns_waitcnt lgkmcnt(0)")
    lds_set(F_TAG, 1, 2, 3)
    stamp(2)
    I(f"s_lshl_b32 s48, s28, 13\ns_add_u32 s48, s48, {H1}"); add64(32, sWS, "s48")
    add64(34, 32, 4096)
    lds_spin(F_PUB, 1, 2, 3)
    lds_spin(F_K, O.nq, 2, 3)
    lp, dn = L("qp"), L("qpd")
    e.settle(); e.label(lp)
    for k in range(8):
        I(f"global_load_dwordx4 {vr(44+4*k)}, v1, s[{32+2*(k>>2)}:{33+2*(k>>2)}] offset:{1024*(k&3)} sc1")
    budget(dn)
    I("s_waitcnt vmcnt(0)")
    I("v_xor_b32 v8, v46, v40")
    for k in range(8):
        for x in ((47,) if k == 0 else (46+4*k, 47+4*k)): I(f"v_bitop3_b32 v8, v8, v{x}, v40 bitop3:0xf6")
    I("v_cmp_ne_u32 vcc, 0, v8"); br(f"s_cbranch_vccnz {lp}")
    e.label(dn)
    I("s_waitcnt vmcnt(0)")
    for half in range(2):
        pk("add", 16+2*half, 44+4*half, 52+4*half)
        pk("add", 20+2*half, 60+4*half, 68+4*half)
    pk("add", 16, 16, 20); pk("add", 18, 18, 22)
    I("v_cvt_pk_bf16_f32 v8, v16, v17\nv_cvt_pk_bf16_f32 v9, v18, v19")
    I("v_lshlrev_b32 v2, 3, v0")
    I(f"ds_write_b64 v2, v[8:9] offset:{L_Q}")
    I("s_waitcnt lgkmcnt(0)")
    lds_set(F_Q, 1, 2, 3)
    stamp(3)
    I(f"v_and_b32 v15, {TAGM:#x}, v40")
    if O.x_notail: e.branch("s_branch L_C_done")
    I("s_cmp_ge_u32 s29, 13"); br("s_cbranch_scc1 L_C_done")
    I("s_cmp_ge_u32 s29, 9"); br("s_cbranch_scc1 L_WO_C")
    e.branch("s_branch L_FFN_C")
    e.label("L_C_done")
    finish()

def role_T():
    e.comment("===== waves 6..9 (tail index 1..4) and wave 0 after its q slice")
    e.label("L_T")
    ids()
    I("s_sub_u32 s3, s3, 5")
    I("s_waitcnt lgkmcnt(0)")
    I("s_barrier")
    make_sel(8)
    e.label("L_Tail")
    if O.x_notail: finish()
    I("s_setprio 0")
    I("s_cmp_ge_u32 s29, 13"); br("s_cbranch_scc1 L_RED")
    I("s_cmp_ge_u32 s29, 9"); br("s_cbranch_scc1 L_WO")
    if O.igo == 99: lds_spin(F_HP, 1, 8, 9)
    else: lds_spin(F_GOL, O.ngo, 8, 9)
    e.branch("s_branch L_FFN")

def colblock_voff(v, rowstride, t):
    I(f"v_lshrrev_b32 v{t}, 4, v0\nv_mul_u32_u24 v{t}, {rowstride}, v{t}")
    I(f"v_and_b32 v{t+1}, 15, v0\nv_lshl_add_u32 v{v}, v{t+1}, 4, v{t}")
    I(f"s_lshl_b32 s48, s3, 8\nv_add_u32 v{v}, s48, v{v}")
    I(f"s_cmp_eq_u32 s3, 4\ns_cselect_b32 s48, 8, 16")
    I(f"v_cmp_gt_u32 vcc, s48, v{t+1}\nv_mov_b32 v{t}, 0x7fffffff")
    I(f"v_cndmask_b32 v{v}, v{t}, v{v}, vcc")

def publish_addr(region, stride, prod_sgpr, t):
    I(f"v_and_b32 v{t}, 15, v0\ns_lshl_b32 s48, s3, 4\nv_add_u32 v{t}, s48, v{t}")
    I(f"v_mul_u32_u24 v{t}, {stride}, v{t}")
    I(f"v_lshrrev_b32 v{t+1}, 4, v0\nv_lshl_add_u32 v{t}, v{t+1}, 4, v{t}")
    I(f"s_lshl_b32 s48, s{prod_sgpr}, 5\ns_add_u32 s48, s48, {region}")
    add64(44, sWS, "s48")
    I("s_cmp_eq_u32 s3, 4\ns_cselect_b32 s54, 0x00ff00ff, -1\ns_mov_b32 s55, 0")

def role_WO():
    WB = 104
    e.label("L_WO")
    colblock_voff(1, 1152, 8)
    I("s_lshl_b32 s48, s28, 2\ns_add_u32 s48, s48, s29\ns_sub_u32 s52, s48, 9")
    I("s_mul_i32 s48, s52, 73728")
    add64(32, sWO, "s48"); srd(32, 32, 64*1152)
    publish_addr(H3A, 2048, 52, 8)
    get_tag(12, 10)
    I(f"v_lshrrev_b32 v9, 4, v0\nv_lshlrev_b32 v9, 6, v9")
    if O.iwo == 99: lds_spin(F_HP, 1, 10, 11)
    else: lds_spin(F_GOE, O.nwo, 10, 11)
    stamp(5)
    e.vmq = []
    for i in range(16):
        if i: I(f"s_mov_b32 s48, {4608*i}")
        e.vm(f"buffer_load_dwordx4 {vr(WB+4*i)}, v1, s[32:35], {'s48' if i else '0'} offen {O.nt}", ("wo", i))
    e.vm_all()
    stamp(6)
    I("s_setprio 3")
    lds_spin(F_Y, 1, 10, 11)
    stamp(7)
    Y = 32
    for q in range(4): e.lg(f"ds_read_b128 {vr(Y+4*q)}, v9 offset:{L_Y+16*q}", ("y", q))
    ACC = 28
    gemv(16, ACC, 16, lambda i: WB + 4*i, lambda i: Y + i, pre=lambda i: e.lg_wait(("y", i >> 2)) if (i & 3) == 0 else None)
    I("s_mov_b64 exec, s[54:55]")
    tag4(ACC, 12)
    I(f"global_store_dwordx4 v8, {vr(ACC)}, s[44:45] sc1")
    I("s_mov_b64 exec, -1")
    finish()

def role_WO_C():
    e.label("L_WO_C")
    I("s_lshl_b32 s48, s28, 2\ns_add_u32 s48, s48, s29\ns_sub_u32 s52, s48, 9")
    I(f"s_lshl_b32 s48, s52, 12\ns_add_u32 s48, s48, {H2}")
    add64(36, sWS, "s48")
    I("v_lshlrev_b32 v2, 4, v0")
    I(f"s_lshl_b32 s48, s52, 8\ns_add_u32 s48, s48, {HML}"); add64(38, sWS, "s48")
    I("v_and_b32 v3, 3, v0\nv_lshlrev_b32 v3, 2, v3\nv_lshrrev_b32 v9, 4, v0\nv_add_u32 v3, v3, v9\nv_lshlrev_b32 v3, 4, v3")
    I(f"v_lshlrev_b32 v12, 2, v0\nv_mov_b32 v13, {F_Y}\nv_mov_b32 v14, 1")
    lds_spin(F_HP, 1, 10, 11)
    stamp(5)
    def mk(b):
        for k in range(4): I(f"global_load_dwordx4 {vr(b+4*k)}, v2, s[36:37] offset:{1024*k} sc1")
        I(f"global_load_dwordx4 {vr(b+16)}, v3, s[38:39] sc1")
    pollp(mk, 5, 20, 44, 64, 16, 10, 15)
    stamp(6)
    I("v_max_f32_dpp v36, v32, v32 quad_perm:[1,0,3,2] row_mask:0xf bank_mask:0xf")
    I("v_max_f32_dpp v36, v36, v36 quad_perm:[2,3,0,1] row_mask:0xf bank_mask:0xf")
    cross_allreduce("max", [36], [37])
    I(f"v_sub_f32 v32, v32, v36\nv_mul_f32 v32, {LOG2E:#x}, v32\nv_exp_f32 v32, v32")
    I("v_mul_f32 v33, v33, v32")
    for r in range(4): I(f"v_mul_f32_dpp v{16+r}, v32, v{16+r} quad_perm:[0,0,0,0] row_mask:0xf bank_mask:0xf")
    I("v_add_f32_dpp v33, v33, v33 quad_perm:[1,0,3,2] row_mask:0xf bank_mask:0xf")
    for r in range(4): I(f"v_fmac_f32_dpp v{16+r}, v32, v{20+r} quad_perm:[1,1,1,1] row_mask:0xf bank_mask:0xf")
    I("v_add_f32_dpp v33, v33, v33 quad_perm:[2,3,0,1] row_mask:0xf bank_mask:0xf")
    for r in range(4): I(f"v_fmac_f32_dpp v{16+r}, v32, v{24+r} quad_perm:[2,2,2,2] row_mask:0xf bank_mask:0xf")
    I("v_mov_b32 v37, v33")
    for r in range(4): I(f"v_fmac_f32_dpp v{16+r}, v32, v{28+r} quad_perm:[3,3,3,3] row_mask:0xf bank_mask:0xf")
    I("v_permlane16_swap_b32 v33, v37")
    I("v_add_f32 v33, v33, v37")
    I("v_permlane32_swap_b32 v16, v18\nv_permlane32_swap_b32 v17, v19")
    I("v_mov_b32 v37, v33")
    pk("add", 16, 16, 18)
    I("v_permlane32_swap_b32 v33, v37")
    I("v_permlane16_swap_b32 v16, v17")
    I("v_add_f32 v33, v33, v37")
    I("v_add_f32 v16, v16, v17")
    I("v_rcp_f32 v33, v33")
    I("v_mul_f32 v16, v16, v33")
    I("v_cvt_pk_bf16_f32 v16, v16, v16")
    I(f"ds_write_b32 v12, v16 offset:{L_Y}")
    I("s_waitcnt lgkmcnt(0)")
    I("ds_write_b32 v13, v14")
    stamp(7)
    finish()

def role_RED():
    e.comment("===== column reducers: 8 columns per wave (block cb = z + 48 t)")
    e.label("L_RED")
    I("s_mul_i32 s48, s28, 3\ns_add_u32 s48, s48, s29\ns_sub_u32 s48, s48, 13")
    I("s_mul_i32 s52, s3, 48\ns_add_u32 s52, s52, s48")
    I("s_cmp_ge_u32 s52, 72"); br("s_cbranch_scc1 L_RED_done")
    I("v_lshrrev_b32 v8, 4, v0\nv_and_b32 v9, 1, v0\nv_lshl_add_u32 v9, v9, 2, v8\nv_lshlrev_b32 v9, 1, v9\ns_lshl_b32 s48, s52, 4\nv_add_u32 v9, s48, v9")
    I(f"global_load_ushort v10, v9, {sp(sX)}")
    I(f"s_lshl_b32 s48, s52, 11\ns_add_u32 s48, s48, {H3A}"); add64(32, sWS, "s48")
    I(f"s_mul_i32 s48, s52, 4608\ns_add_u32 s48, s48, {H4}"); add64(36, sWS, "s48")
    add64(38, 36, 4096)
    I("v_lshlrev_b32 v1, 4, v0")
    I(f"v_lshrrev_b32 v11, 1, v0\nv_mul_u32_u24 v11, 2304, v11\nv_and_b32 v12, 1, v0\nv_lshl_add_u32 v11, v12, 4, v11")
    I(f"s_lshl_b32 s48, s52, 5\ns_add_u32 s48, s48, {H3B}"); add64(40, sWS, "s48")
    get_tag(14, 12)
    for b in (80, 100):
        for r in range(4): I(f"v_mov_b32 v{b+16+r}, v14")
    lds_spin(F_HP, 1, 12, 13)
    I("s_waitcnt vmcnt(0)"); e.vmq = []
    I("v_lshlrev_b32 v10, 16, v10")
    stamp(5)
    I("s_setprio 3")
    def mk(b):
        for k in range(2): I(f"global_load_dwordx4 {vr(b+4*k)}, v1, s[32:33] offset:{1024*k} sc1")
    pollp(mk, 2, 8, 60, 68, 16, 12, 14)
    stamp(6)
    pk("add", 16, 16, 20); pk("add", 18, 18, 22)
    rscatter4(16)
    rows_allreduce("add", [16], (2, 4, 8))
    rne1(16, 12)
    I("v_add_f32 v10, v10, v16")
    rne1(10, 12)
    gather_rows(10, 20)
    I("s_mov_b32 exec_lo, -1\ns_mov_b32 exec_hi, 0")
    tag4(20, 14)
    I("global_store_dwordx4 v11, v[20:23], s[40:41] sc1")
    I("s_mov_b64 exec, -1")
    stamp(7)
    def mk4(b):
        for k in range(4): I(f"global_load_dwordx4 {vr(b+4*k)}, v1, s[36:37] offset:{1024*k} sc1")
        I("s_mov_b32 exec_hi, 0")
        I(f"global_load_dwordx4 {vr(b+16)}, v1, s[38:39] sc1")
        I("s_mov_b32 exec_hi, -1")
    pollp(mk4, 5, 20, 80, 100, 16, 12, 14)
    stamp(8)
    pk("add", 16, 16, 20); pk("add", 18, 18, 22); pk("add", 24, 24, 28); pk("add", 26, 26, 30)
    pk("add", 16, 16, 32); pk("add", 18, 18, 34)
    pk("add", 16, 16, 24); pk("add", 18, 18, 26)
    rscatter4(16)
    rows_allreduce("add", [16], (2, 4, 8))
    rne1(16, 12)
    I("v_add_f32 v10, v10, v16")
    I("v_cvt_pk_bf16_f32 v10, v10, v10")
    I("s_mov_b32 exec_lo, 0x00030003\ns_mov_b32 exec_hi, 0x00030003")
    I(f"global_store_short v9, v10, {sp(sOUT)}")
    le = L("noep")
    I("s_cmp_eq_u32 s52, 0"); e.branch(f"s_cbranch_scc0 {le}")
    I(f"v_mov_b32 v12, {L_TAG}\nds_read_b32 v13, v12\nv_mov_b32 v14, 0")
    add64(32, sWS, EPOCH)
    I("s_mov_b64 exec, 1\ns_waitcnt lgkmcnt(0)")
    I("global_store_dword v14, v13, s[32:33]")
    e.label(le)
    I("s_mov_b64 exec, -1")
    e.label("L_RED_done")
    if O.pad:
        lp = L("pad")
        e.label(lp)
        I("s_memrealtime s[92:93]\ns_waitcnt lgkmcnt(0)\ns_sub_u32 s92, s92, s90")
        I(f"s_cmp_lt_u32 s92, {O.pad}"); br(f"s_cbranch_scc1 {lp}")
    finish()

def ffn_ids():
    I("s_lshr_b32 s48, s28, 1\ns_mul_i32 s48, s48, 9\ns_add_u32 s48, s48, s29\ns_lshl_b32 s48, s48, 6")
    I("s_and_b32 s53, s28, 1\ns_lshl_b32 s49, s53, 5\ns_add_u32 s52, s48, s49")

def role_FFN():
    GB, DB = 88, 120
    e.label("L_FFN")
    stamp(7)
    ffn_ids()
    if not O.gurot: I("s_mov_b32 s53, 0")
    I("v_lshrrev_b32 v8, 4, v0\nv_bfe_u32 v9, v0, 3, 1\nv_lshl_add_u32 v8, v8, 3, v9")
    I("s_lshl_b32 s48, s3, 6\ns_lshl_b32 s49, s53, 5\ns_add_u32 s48, s48, s49\nv_add_u32 v8, s48, v8\nv_mul_u32_u24 v8, 9216, v8")
    I("v_and_b32 v9, 3, v0\nv_lshlrev_b32 v9, 4, v9\ns_lshl_b32 s48, s52, 1\nv_add3_u32 v8, v8, v9, s48")
    I("v_bfe_u32 v9, v0, 2, 1\nv_cmp_eq_u32 vcc, 1, v9")
    I(f"v_mov_b32 v10, s{sWG}\nv_mov_b32 v11, s{sWU}\nv_cndmask_b32 v10, v10, v11, vcc")
    I(f"v_mov_b32 v11, s{sWG+1}\nv_mov_b32 v12, s{sWU+1}\nv_cndmask_b32 v11, v11, v12, vcc")
    I("v_add_co_u32 v10, vcc, v10, v8\nv_addc_co_u32 v11, vcc, 0, v11, vcc")
    I(f"s_mov_b32 s48, {2*9216}\ns_mov_b32 s49, 0")
    I(f"s_mov_b32 s50, {26*9216}\ns_mov_b32 s51, {(-38*9216) & 0xffffffff:#x}")
    I(f"s_cmp_eq_u32 s53, 0\ns_cselect_b32 s50, s50, s51\ns_cselect_b32 s51, 0, -1")
    e.vmq = []
    for k in range(8):
        e.vm(f"global_load_dwordx4 {vr(GB+4*k)}, v[10:11], off {O.ntg}", ("gu", k))
        if k < 7: I(f"v_lshl_add_u64 v[10:11], v[10:11], 0, {'s[50:51]' if k == 3 else 's[48:49]'}")
    I(f"v_lshrrev_b32 v8, 4, v0\nv_lshlrev_b32 v8, 4, v8\ns_lshl_b32 s48, s3, 7\ns_add_u32 s48, s48, {L_XLN2}\nv_add_u32 v8, s48, v8")
    I("s_lshl_b32 s48, s53, 6\nv_add_u32 v13, s48, v8\ns_xor_b32 s48, s48, 64\nv_add_u32 v14, s48, v8")
    I(f"v_and_b32 v8, 7, v0\nv_lshlrev_b32 v8, 3, v8\nv_bfe_u32 v9, v0, 4, 1\nv_lshl_add_u32 v8, v9, 2, v8\nv_mul_u32_u24 v8, {GUS}, v8")
    I(f"v_lshrrev_b32 v9, 5, v0\nv_lshl_add_u32 v8, v9, 2, v8\ns_lshl_b32 s48, s3, 3\ns_add_u32 s48, s48, {L_GUP}\nv_add_u32 v15, s48, v8")
    ld = L("nodown")
    I("s_cmp_ge_u32 s3, 5"); br(f"s_cbranch_scc1 {ld}")
    colblock_voff(1, 1152, 8)
    I("s_mul_i32 s48, s52, 1152"); add64(32, sWD, "s48"); srd(32, 32, 32*1152)
    for i in range(8):
        if i: I(f"s_mov_b32 s48, {4608*i}")
        I(f"buffer_load_dwordx4 {vr(DB+4*i)}, v1, s[32:35], {'s48' if i else '0'} offen {O.nt}")
    I("s_mul_i32 s47, s28, 9\ns_add_u32 s47, s47, s29")
    publish_addr(H4, 4608, 47, 40)
    get_tag(42, 8)
    I("v_bfe_u32 v8, v0, 3, 1\nv_lshlrev_b32 v8, 5, v8\nv_and_b32 v9, 7, v0\nv_lshl_add_u32 v8, v9, 2, v8\nv_lshrrev_b32 v9, 4, v0\nv_add_u32 v8, v8, v9")
    I(f"v_mul_u32_u24 v43, {GUS}, v8")
    I("s_waitcnt vmcnt(8)")
    lj = L("ffj")
    e.branch(f"s_branch {lj}")
    e.label(ld)
    I(f"s_mov_b64 s[44:45], {sp(sWS)}\nv_mov_b32 v40, 0")
    I("s_waitcnt vmcnt(0)")
    e.label(lj)
    I(f"v_mov_b32 v44, {CNT_GU}\nv_mov_b32 v45, 1")
    stamp(8)
    I("s_setprio 3")
    lds_spin(F_X, 1, 8, 9)
    e.vmq = []; e.lgq = []
    for H in range(2): e.lg(f"ds_read_b128 {vr(16+4*H)}, v{13+H}", ("pk", H))
    ACC = 24
    gemv(8, ACC, 28, lambda k: GB + 4*k, lambda k: 16 + k, pre=lambda k: e.lg_wait(("pk", k >> 2)) if (k & 3) == 0 else None)
    I("s_mov_b32 exec_lo, 0x00ff00ff\ns_mov_b32 exec_hi, 0xff00ff00")
    for r in range(4): I(f"ds_write_b32 v15, v{ACC+r} offset:{GUS*r}")
    I("s_mov_b64 exec, 1")
    I("s_waitcnt lgkmcnt(0)")
    I("ds_add_u32 v44, v45\ns_mov_b64 exec, -1")
    I("s_cmp_ge_u32 s3, 5"); br("s_cbranch_scc1 L_FFN_done")
    lds_spin(CNT_GU, 9, 8, 9)
    stamp(9)
    for k in range(4): e.lg(f"ds_read_b128 {vr(12+4*k)}, v43 offset:{L_GUP+16*k}", ("gp", k))
    e.lg(f"ds_read_b64 v[28:29], v43 offset:{L_GUP+64}", ("gp", 4))
    e.lg_wait(("gp", 1))
    pk("add", 12, 12, 16); pk("add", 14, 14, 18)
    e.lg_wait(("gp", 3))
    pk("add", 20, 20, 24); pk("add", 22, 22, 26)
    e.lg_wait(("gp", 4))
    pk("add", 12, 12, 20); pk("add", 14, 14, 22)
    pk("add", 12, 12, 28)
    pk("add", 12, 12, 14)
    I("v_add_f32 v12, v12, v13")
    rne1(12, 13)
    I("v_mul_f32 v14, v12, v12")
    I("v_mov_b32 v15, 0x3d372713")
    I("v_mov_b32_dpp v13, v12 row_ror:8 row_mask:0xf bank_mask:0xf")
    I("v_fma_f32 v14, v14, v15, 1.0")
    I("v_mul_f32 v14, v14, v12")
    I("v_mul_f32 v14, 0xc0135761, v14")
    I("v_exp_f32 v14, v14")
    I("v_add_f32 v14, 1.0, v14")
    I("v_rcp_f32 v14, v14")
    I("v_mul_f32 v12, v12, v14")
    rne1(12, 14)
    I("v_mul_f32 v12, v12, v13")
    I("v_cvt_pk_bf16_f32 v16, v12, v12")
    I("s_waitcnt vmcnt(0)")
    stamp(10)
    ACC2 = 28
    gemv(8, ACC2, 20, lambda i: DB + 4*i, lambda i: 18 + (i & 1),
         pre=lambda i: I(f"v_mov_b32_dpp v{18+(i&1)}, v16 row_newbcast:{i} row_mask:0xf bank_mask:0xf"))
    I("s_mov_b64 exec, s[54:55]")
    tag4(ACC2, 42)
    I(f"global_store_dwordx4 v40, {vr(ACC2)}, s[44:45] sc1")
    I("s_mov_b64 exec, -1")
    e.label("L_FFN_done")
    finish()

def role_FFN_C():
    e.label("L_FFN_C")
    I("s_mul_i32 s47, s28, 9\ns_add_u32 s47, s47, s29")
    I(f"s_and_b32 s48, s47, 15\ns_mul_i32 s48, s48, 2304\ns_add_u32 s48, s48, {H3B}")
    add64(36, sWS, "s48")
    for b in (60, 72):
        for r in range(4): I(f"v_mov_b32 v{b+8+r}, v15")
    I(f"v_lshlrev_b32 v2, 3, v0\nv_mov_b32 v12, {F_X}\nv_mov_b32 v13, 1")
    lds_spin(F_HP, 1, 8, 9)
    stamp(5)
    def mk(b):
        I(f"global_load_dwordx4 {vr(b)}, v1, s[36:37] sc1")
        I(f"global_load_dwordx4 {vr(b+4)}, v1, s[36:37] offset:1024 sc1")
        I("s_mov_b64 exec, 0xffff")
        I(f"global_load_dwordx4 {vr(b+8)}, v1, s[36:37] offset:2048 sc1")
        I("s_mov_b64 exec, -1")
    pollp(mk, 3, 12, 60, 72, 16, 8, 15)
    stamp(6)
    layernorm(list(range(16, 28)), 8, "0xffff", 32, 52)
    I(f"ds_write_b64 v2, v[52:53] offset:{L_XLN2}\nds_write_b64 v2, v[54:55] offset:{L_XLN2+512}")
    I("s_mov_b64 exec, 0xffff")
    I(f"ds_write_b64 v2, v[56:57] offset:{L_XLN2+1024}")
    I("s_mov_b64 exec, -1")
    I("s_waitcnt lgkmcnt(0)")
    I("ds_write_b32 v12, v13")
    stamp(7)
    finish()

def build():
    prologue()
    role_T0_head()
    role_A()
    role_C()
    role_T()
    role_WO()
    role_WO_C()
    role_RED()
    role_FFN_C()
    role_FFN()
    e.label("L_end")
    I("s_endpgm")
    e.raw("L_code_end:")
    head = []
    ref = open("sequential_preLN__sliding_block_cached__geglu_ffn__decode.s.ref").read().split("\n")
    for l in ref:
        if l.startswith("; @launch"): break
        if l.startswith("; Override") or l.startswith("; grid="): continue
        head.append(l)
    head.append(f"; @launch grid=(256,1,1) block=(640,1,1) lds={LDS_BYTES}")
    head.append('.amdgcn_target "amdgcn-amd-amdhsa--gfx950"')
    head.append(".text")
    head.append(f".set CODE_BYTES, L_code_end-{NAME}")
    head.append(".set PF_MASK, 15")
    tail = f""".section .rodata,"a"
.p2align 6
.amdhsa_kernel {NAME}
  .amdhsa_next_free_vgpr 168
  .amdhsa_next_free_sgpr 96
  .amdhsa_accum_offset 168
  .amdhsa_group_segment_fixed_size 0
  .amdhsa_kernarg_size 96
  .amdhsa_user_sgpr_count 2
  .amdhsa_user_sgpr_kernarg_segment_ptr 1
  .amdhsa_system_sgpr_workgroup_id_x 1
  .amdhsa_float_denorm_mode_32 3
.end_amdhsa_kernel
"""
    return "\n".join(head) + "\n" + e.text() + tail

if __name__ == "__main__":
    out = sys.argv[1]
    for a in sys.argv[2:]:
        k, v = a.split("=")
        cur = getattr(O, k)
        setattr(O, k, (v == "1") if isinstance(cur, bool) else (int(v) if isinstance(cur, int) else v))
    txt = build()
    open(out, "w").write(txt)
    print(f"wrote {out}: {len(txt)} bytes, nops {e.nnop}, lds {LDS_BYTES}")
```

```python
import sys, os
sys.path.insert(0, os.path.dirname(os.path.abspath(__file__)))
from emit import Emitter

NAME = "sequential_preLN__sliding_block_cached__geglu_ffn__decode_kernel"

class Opt:
    diag = False
    diag2 = False
    diag3 = False
    win = 8
    igo = 99
    iwo = 7
    ngo = 4
    nwo = 4
    iq = 16
    nq = 1
    wowin = 16
    nt = "nt"
    ntg = "nt"
    budget = 200000
    prefetch = True
    krot = 17
    tries = 6
    local = True
    npoll = 1
    x_notail = False
    x_noffn = False
    x_h2plain = False
    dwait = 9
    pfall = 0
    pfslow = True
    pfnt = ""
    pad = 0
O = Opt()

HML  = 0x10000
H3B  = 0x14000
H2   = 0x20000
H3A  = 0x60000
H4   = 0x84000
EPOCH = 0xE0000
H1   = 0xE8000
H1G, H2G, HMLG = 0x110000, 0x140000, 0x180000
TAGM = 0x3ff
F_TAG, F_Q, CNT_O, F_GOE, F_GOL, F_X, CNT_GU, CNT_S, F_PUB, F_Y, F_K, F_HP = 0, 4, 8, 12, 16, 20, 24, 28, 32, 36, 40, 44
L_TAG = 48
L_Y = 0x80
L_STAT = 0x180
L_LN1, L_Q, L_OP, L_XLN2, L_GUP = 0x200, 0x700, 0xA00, 0x1A00, 0x1F00
GUS = 80
LDS_BYTES = L_GUP + 64*GUS

sX, sK, sV, sWQ, sWO, sBX, sWG, sWU, sWD, sOUT, sDBG, sWS = 4, 6, 8, 10, 12, 14, 16, 18, 20, 22, 24, 26
sJ, sS, sBUD, sTAGM = 28, 29, 30, 31
sT3 = 51
LOG2E = 0x3fb8aa3b
SEL = 4
e = Emitter()
I = e.I
uid = [0]
def L(p):
    uid[0] += 1
    return f"L_{p}_{uid[0]}"
def sp(r): return f"s[{r}:{r+1}]"
def vr(r, n=4): return f"v[{r}:{r+n-1}]"
def br(text):
    e.raw("  " + text); e._advance(1)

def add64(d, b, off):
    I(f"s_add_u32 s{d}, s{b}, {off}")
    I(f"s_addc_u32 s{d+1}, s{b+1}, 0")

def srd(d, base, nrec):
    if d != base: I(f"s_mov_b32 s{d}, s{base}")
    I(f"s_and_b32 s{d+1}, s{base+1}, 0xffff")
    I(f"s_mov_b32 s{d+2}, {nrec}")
    I(f"s_mov_b32 s{d+3}, 0x20000")

def stamp(k):
    if O.diag: I(f"s_memrealtime s[{64+2*k}:{65+2*k}]")

def stamps_dyn():
    I("s_memrealtime s[86:87]")
    I("s_waitcnt lgkmcnt(0)")
    I("s_mov_b64 exec, 1")
    add64(62, sWS, "0x20000000")
    I("s_lshl_b32 s61, s60, 8\ns_add_u32 s61, s61, s2\ns_lshl_b32 s61, s61, 7")
    add64(62, 62, "s61")
    I("v_mov_b32 v2, 0")
    for k in range(12):
        I(f"v_mov_b32 v4, s{64+2*k}\nv_mov_b32 v5, s{65+2*k}")
        I(f"global_store_dwordx2 v2, v[4:5], s[62:63] offset:{8*k}")
        I("s_nop 1")

def finish(role=None):
    if O.diag:
        I("s_mov_b32 s60, s59")
        stamps_dyn()
    I("s_endpgm")

def budget(done):
    I(f"s_cmp_eq_u32 s{sBUD}, 0")
    br(f"s_cbranch_scc1 {done}")
    I(f"s_sub_u32 s{sBUD}, s{sBUD}, 1")

def lds_spin(addr, val, vt=2, va=3):
    lp, done = L("spin"), L("spun")
    I(f"v_mov_b32 v{va}, {addr}")
    e.settle()
    e.label(lp)
    I(f"ds_read_b32 v{vt}, v{va}")
    budget(done)
    I("s_waitcnt lgkmcnt(0)")
    I(f"v_readfirstlane_b32 s{sT3}, v{vt}")
    I(f"s_cmp_ge_u32 s{sT3}, {val}")
    br(f"s_cbranch_scc0 {lp}")
    e.label(done)
    I("s_waitcnt lgkmcnt(0)")
    e.lgq = []

def lds_set(addr, val=1, vt=2, va=3):
    I(f"v_mov_b32 v{va}, {addr}\nv_mov_b32 v{vt}, {val}")
    I(f"ds_write_b32 v{va}, v{vt}")

def lds_inc(addr, va, vt):
    I(f"v_mov_b32 v{va}, {addr}\nv_mov_b32 v{vt}, 1\ns_mov_b64 exec, 1\nds_add_u32 v{va}, v{vt}\ns_mov_b64 exec, -1")

def check_set(src, dst, n, vt, vtag, mask=TAGM):
    for k in range(n): I(f"v_xor_b32 v{dst+k}, v{src+k}, v{vtag}")
    r = [dst+k for k in range(n)]
    I(f"v_or3_b32 v{vt}, v{r[0]}, v{r[1]}, v{r[2]}")
    q = r[3:]
    while len(q) >= 2:
        I(f"v_or3_b32 v{vt}, v{vt}, v{q[0]}, v{q[1]}"); q = q[2:]
    if q: I(f"v_or_b32 v{vt}, v{vt}, v{q[0]}")
    I(f"v_and_b32 v{vt}, {mask:#x}, v{vt}")
    I(f"v_cmp_ne_u32 vcc, 0, v{vt}")

def pollp(mk, nloads, n, setA, dst, vt, vtag, switch=None, check=None):
    lp, done = L("poll"), L("polled")
    if switch: I(f"s_mov_b32 s57, {O.tries}")
    e.settle(); e.label(lp)
    if switch:
        lk = L("keep")
        I("s_sub_u32 s57, s57, 1"); br(f"s_cbranch_scc0 {lk}")
        switch()
        I("s_mov_b32 s57, 0x7fffffff")
        e.label(lk)
    mk(setA)
    budget(done)
    I("s_waitcnt vmcnt(0)")
    if check: check()
    else: check_set(setA, dst, n, vt, vtag)
    br(f"s_cbranch_vccnz {lp}")
    e.label(done)
    e.vmq = []

def get_tag(v, t):
    lds_spin(F_TAG, 1, t, t+1)
    I(f"v_mov_b32 v{t}, {L_TAG}")
    I(f"ds_read_b32 v{v}, v{t}")
    I(f"s_movk_i32 s{sTAGM}, {TAGM:#x}")
    I("s_waitcnt lgkmcnt(0)")
    I(f"v_and_b32 v{v}, {TAGM:#x}, v{v}")

def tag4(r, vtag):
    for k in range(4): I(f"v_bfi_b32 v{r+k}, s{sTAGM}, v{vtag}, v{r+k}")

def rows_allreduce(op, vs, steps=(8, 4, 2, 1)):
    for k in steps:
        for v in vs: I(f"v_{op}_f32_dpp v{v}, v{v}, v{v} row_ror:{k} row_mask:0xf bank_mask:0xf")

def cross_allreduce(op, vs, ts):
    for sw in ("v_permlane16_swap_b32", "v_permlane32_swap_b32"):
        for v, t in zip(vs, ts): I(f"v_mov_b32 v{t}, v{v}")
        for v, t in zip(vs, ts): I(f"{sw} v{v}, v{t}")
        for v, t in zip(vs, ts): I(f"v_{op}_f32 v{v}, v{v}, v{t}")

def allreduce(op, vs, ts):
    rows_allreduce(op, vs); cross_allreduce(op, vs, ts)

def rscatter4(r):
    I(f"v_permlane32_swap_b32 v{r}, v{r+2}")
    I(f"v_permlane32_swap_b32 v{r+1}, v{r+3}")
    I(f"v_pk_add_f32 v[{r}:{r+1}], v[{r}:{r+1}], v[{r+2}:{r+3}]")
    I(f"v_permlane16_swap_b32 v{r}, v{r+1}")
    I(f"v_add_f32 v{r}, v{r}, v{r+1}")

def gather_rows(src, dst):
    I(f"v_mov_b32 v{dst}, v{src}\nv_mov_b32 v{dst+1}, v{src}")
    I(f"v_permlane16_swap_b32 v{dst}, v{dst+1}")
    I(f"v_mov_b32 v{dst+2}, v{dst}\nv_mov_b32 v{dst+3}, v{dst+1}")
    I(f"v_permlane32_swap_b32 v{dst}, v{dst+2}\nv_permlane32_swap_b32 v{dst+1}, v{dst+3}")

def rne1(v, t):
    I(f"v_cvt_pk_bf16_f32 v{t}, v{v}, v{v}")
    I(f"v_lshlrev_b32 v{v}, 16, v{t}")

def rne2(a, b, t):
    I(f"v_cvt_pk_bf16_f32 v{t}, v{a}, v{b}")
    I(f"v_lshlrev_b32 v{a}, 16, v{t}")
    I(f"v_and_b32 v{b}, 0xffff0000, v{t}")

def pk(op, d, a, b, mods=""):
    I(f"v_pk_{op}_f32 v[{d}:{d+1}], v[{a}:{a+1}], v[{b}:{b+1}] {mods}".rstrip())

def make_sel(t):
    m, b, h, c = t, t+1, t+2, t+3
    I(f"v_and_b32 v{m}, 15, v0")
    I(f"v_lshrrev_b32 v{b}, 3, v{m}")
    I(f"v_mul_u32_u24 v{b}, 0x0202, v{b}")
    I(f"v_add_u32 v{b}, 0x0100, v{b}")
    I(f"v_lshlrev_b32 v{h}, 16, v{b}")
    I(f"v_or_b32 v{h}, 0x0c0c, v{h}")
    I(f"v_or_b32 v{b}, 0x0c0c0000, v{b}")
    I(f"v_and_b32 v{c}, 1, v{m}")
    I(f"v_cmp_eq_u32 vcc, 1, v{c}")
    I(f"v_cndmask_b32 v{b}, v{b}, v{h}, vcc")
    I(f"v_bfe_u32 v{m}, v{m}, 1, 2")
    I(f"v_mov_b32 v{c}, 0x0c0c0c0c")
    for d in range(4):
        I(f"v_cmp_eq_u32 vcc, {d}, v{m}")
        I(f"v_cndmask_b32 v{SEL+d}, v{c}, v{b}, vcc")

MSK = 156
def make_msk():
    I(f"v_mov_b32 v{MSK}, -1")
    for d in (1, 2, 3): I(f"v_perm_b32 v{MSK+d}, v{MSK}, v{MSK}, v{SEL+d}")
    I(f"v_perm_b32 v{MSK}, v{MSK}, v{MSK}, v{SEL}")

def build_m(a, src):
    for d in range(4): I(f"v_and_b32 v{a+d}, v{src}, v{MSK+d}")

def build_a(a, src):
    for d in range(4): I(f"v_perm_b32 v{a+d}, v{src}, v{src}, v{SEL+d}")

def mfma(acc, a, b, first=False):
    c = "0" if first else vr(acc)
    I(f"v_mfma_f32_16x16x32_bf16 {vr(acc)}, {vr(a)}, {vr(b)}, {c}")

def gemv(n, acc, abuf, wreg, src, pre=None, wait=None, bld=None):
    def build(i):
        if pre: pre(i)
        (bld or build_a)(abuf + 4*(i & 1), src(i))
    build(0)
    if n > 1: build(1)
    for i in range(n):
        if wait: wait(i)
        mfma(acc, abuf + 4*(i & 1), wreg(i), first=(i == 0))
        if i + 2 < n: build(i + 2)

def layernorm(f, nA, maskB, t, out):
    n = len(f); f0 = f[0]
    s1, s2, u, w, mm, rr = t, t+1, t+2, t+3, t+4, t+6
    d = t + 8
    I(f"v_readlane_b32 s48, v{f0}, 0")
    I("s_mov_b32 s49, s48")
    for k in range(0, nA, 2): I(f"v_pk_add_f32 v[{d+k}:{d+k+1}], v[{f0+k}:{f0+k+1}], s[48:49] neg_lo:[0,1] neg_hi:[0,1]")
    for k in range(nA, n): I(f"v_mov_b32 v{d+k}, 0")
    I(f"s_mov_b64 exec, {maskB}")
    for k in range(nA, n, 2): I(f"v_pk_add_f32 v[{d+k}:{d+k+1}], v[{f0+k}:{f0+k+1}], s[48:49] neg_lo:[0,1] neg_hi:[0,1]")
    I("s_mov_b64 exec, -1")
    pk("mul", mm, d, d)
    pk("add", rr, d, d+2)
    for k in range(2, n, 2): I(f"v_pk_fma_f32 v[{mm}:{mm+1}], v[{d+k}:{d+k+1}], v[{d+k}:{d+k+1}], v[{mm}:{mm+1}]")
    for k in range(4, n, 2): pk("add", rr, rr, d+k)
    I(f"v_add_f32 v{s2}, v{mm}, v{mm+1}\nv_add_f32 v{s1}, v{rr}, v{rr+1}")
    allreduce("add", [s1, s2], [u, w])
    I(f"v_mul_f32 v{s1}, 0x3ae38e39, v{s1}\nv_mul_f32 v{s2}, 0x3ae38e39, v{s2}")
    I(f"v_fma_f32 v{s2}, -v{s1}, v{s1}, v{s2}")
    I(f"v_add_f32 v{s1}, s48, v{s1}")
    I(f"v_max_f32 v{s2}, 0, v{s2}")
    I(f"v_cvt_pk_bf16_f32 v{u}, v{s1}, v{s2}")
    I(f"v_and_b32 v{s2}, 0xffff0000, v{u}\nv_lshlrev_b32 v{mm}, 16, v{u}")
    I(f"v_add_f32 v{s2}, 0x3727c5ac, v{s2}")
    I(f"v_mov_b32 v{mm+1}, v{mm}")
    rne1(s2, u)
    I(f"v_sqrt_f32 v{s2}, v{s2}")
    for k in range(0, n, 2): I(f"v_pk_add_f32 v[{d+k}:{d+k+1}], v[{f0+k}:{f0+k+1}], v[{mm}:{mm+1}] neg_lo:[0,1] neg_hi:[0,1]")
    rne1(s2, u)
    I(f"v_rcp_f32 v{rr}, v{s2}")
    for k in range(0, n, 2): I(f"v_cvt_pk_bf16_f32 v{f0+k}, v{d+k}, v{d+k+1}")
    I(f"v_mov_b32 v{rr+1}, v{rr}")
    for k in range(0, n, 2):
        I(f"v_lshlrev_b32 v{d+k}, 16, v{f0+k}\nv_and_b32 v{d+k+1}, 0xffff0000, v{f0+k}")
    for k in range(0, n, 2): pk("mul", d+k, d+k, rr)
    for k in range(0, n, 2): I(f"v_cvt_pk_bf16_f32 v{out+k//2}, v{d+k}, v{d+k+1}")

def ids():
    I("s_and_b32 s28, s2, 7\ns_lshl_b32 s28, s28, 1\ns_bfe_u32 s29, s2, 0x10003\ns_add_u32 s28, s28, s29")
    I("s_lshr_b32 s29, s2, 4")
    I(f"s_mov_b32 s{sBUD}, {O.budget}")

def prologue():
    e.raw(f".globl {NAME}\n.p2align 8\n.type {NAME},@function\n{NAME}:")
    I("s_cmp_ge_u32 s2, 256")
    br("s_cbranch_scc1 L_end")
    I("s_load_dwordx16 s[4:19], s[0:1], 0")
    I("s_load_dwordx8 s[20:27], s[0:1], 64")
    I("v_lshrrev_b32 v1, 6, v0")
    I("v_and_b32 v0, 63, v0")
    I("v_readfirstlane_b32 s3, v1")
    if O.pad: I("s_memrealtime s[90:91]")
    if O.diag:
        for k in range(66, 88): I(f"s_mov_b32 s{k}, 0")
        I("s_mov_b32 s59, s3")
    stamp(0)
    I("s_cmp_eq_u32 s3, 8"); br("s_cbranch_scc1 L_C")
    I("s_cmp_ge_u32 s3, 6"); br("s_cbranch_scc1 L_T")
    I("s_cmp_eq_u32 s3, 1"); br("s_cbranch_scc1 L_T")
    I("s_cmp_ge_u32 s3, 2"); br("s_cbranch_scc1 L_A")

def merge_tile(t, DA, S0):
    d0, d1 = DA + 8*(t & 1), DA + 8*(t & 1) + 4
    for h in range(2):
        I(f"v_cndmask_b32 v{d0+h}, v{d0+h}, v{d1+h}, s[56:57]")
        I(f"v_cndmask_b32 v{d0+2+h}, v{d1+2+h}, v{d0+2+h}, s[56:57]")
    for h in range(2):
        I(f"v_add_f32_dpp v{S0+h}, v{d0+2+h}, v{d0+h} quad_perm:[1,0,3,2] row_mask:{1<<t:#x} bank_mask:0xf")

def role_A():
    KB, VB = 40, 104
    def KR(t, ee, l): return KB + 4*(4*t + 2*ee + l)
    def VR(i): return VB + 4*i
    QA, DA, S0, S1, P = 8, 16, 32, 33, 34
    QADDR, OADDR, HOFF = 35, 36, 37
    e.label("L_A")
    I("s_setprio 2")
    ids()
    I("s_sub_u32 s3, s3, 2")
    I("v_bfe_u32 v8, v0, 1, 3\nv_lshlrev_b32 v8, 8, v8")
    I("v_lshrrev_b32 v9, 4, v0")
    I("v_and_b32 v10, 1, v0")
    I("v_lshl_add_u32 v11, v9, 1, v10\nv_lshl_add_u32 v1, v11, 4, v8")
    I("s_lshl_b32 s49, s3, 4\ns_add_u32 s49, s49, s29")
    I(f"s_lshl_b32 s48, s28, 24\ns_add_u32 s48, s48, {61440*256}")
    I("v_xor_b32 v10, 1, v10\nv_lshl_add_u32 v11, v9, 1, v10\nv_lshl_add_u32 v2, v11, 4, v8")
    I("s_lshl_b32 s40, s49, 11")
    def grp(k): I(f"s_add_u32 s50, s49, {O.krot*k}\ns_and_b32 s50, s50, 63\ns_add_u32 s50, s50, {64*k}\ns_lshl_b32 s{40+k}, s50, 11")
    for k in range(1, 8): grp(k)
    I("s_waitcnt lgkmcnt(0)")
    if O.diag3: stamp(9)
    add64(32, sK, "s48"); srd(32, 32, 0x100000)
    I("s_barrier")
    if O.diag3: stamp(10)
    seq = [("K", k) for k in range(16)] + [("V", i) for i in range(16)]
    def issue(n):
        kind, k = seq[n]
        if kind == "K":
            t, ee, l = k >> 2, (k >> 1) & 1, k & 1
            e.vm(f"buffer_load_dwordx4 {vr(KR(t,ee,l))}, v{1+ee}, s[32:35], s{40+2*t+ee} offen offset:{l*128} {O.nt}", ("K", k))
        else:
            e.vm(f"buffer_load_dwordx4 {vr(VR(k))}, v{(3, 31)[k & 1]}, s[36:39], 0 offen offset:{256*(k>>1)} {O.nt}", ("V", k))
            for idx, flag in ((O.iwo, F_GOE), (O.igo, F_GOL)):
                if k == idx: lds_inc(flag, 38, 39)
        if n == O.iq: lds_inc(F_K, 38, 39)
    for n in range(O.win): issue(n)
    stamp(1)
    for p_, vd in ((0, 3), (1, 31)):
        I(f"v_mov_b32 v{vd}, s{40+p_}")
        for g in range(1, 4):
            I(f"v_cmp_eq_u32 vcc, {g}, v9\nv_mov_b32 v11, s{40+2*g+p_}\nv_cndmask_b32 v{vd}, v{vd}, v11, vcc")
        I(f"v_and_b32 v10, 15, v0\nv_lshl_add_u32 v{vd}, v10, 4, v{vd}")
    add64(36, sV, "s48"); srd(36, 36, 0x100000)
    make_sel(20)
    I(f"v_and_b32 v20, 1, v0\nv_lshlrev_b32 v20, 8, v20")
    I("v_bfe_u32 v21, v0, 1, 1\nv_lshl_add_u32 v21, v9, 1, v21")
    I(f"v_lshl_add_u32 v{QADDR}, v21, 4, v20")
    I("s_mov_b32 s56, 0xaaaaaaaa\ns_mov_b32 s57, 0xaaaaaaaa")
    I("v_and_b32 v20, 15, v0\nv_lshlrev_b32 v20, 1, v20\nv_and_b32 v21, 1, v9\nv_add_u32 v20, v20, v21")
    I("v_lshrrev_b32 v21, 1, v9\nv_lshl_add_u32 v20, v21, 5, v20")
    I(f"s_lshl_b32 s49, s3, 10\ns_add_u32 s49, s49, {L_OP}\nv_lshl_add_u32 v{OADDR}, v20, 4, s49")
    I(f"v_lshlrev_b32 v20, 12, v9\nv_and_b32 v21, 15, v0\nv_lshl_add_u32 v{HOFF}, v21, 4, v20")
    I(f"s_lshl_b32 s49, s28, 14\ns_lshl_b32 s50, s29, 8\ns_add_u32 s49, s49, s50\ns_add_u32 s49, s49, {H2 if O.local else H2G}")
    add64(52, sWS, "s49")
    I(f"s_lshl_b32 s49, s28, 10\ns_lshl_b32 s50, s29, 4\ns_add_u32 s49, s49, s50\ns_add_u32 s49, s49, {HML if O.local else HMLG}")
    add64(54, sWS, "s49")
    nxt = O.win
    while nxt < 32:
        e.vm_wait_n(O.win - 1); issue(nxt); nxt += 1
    stamp(2)
    lds_spin(F_Q, 1, 38, 39)
    stamp(3)
    I(f"v_mov_b32 v38, {L_TAG}\nds_read_b32 v39, v38\ns_movk_i32 s{sTAGM}, {TAGM:#x}")
    e.lg(f"ds_read_b128 {vr(QA)}, v{QADDR} offset:{L_Q}", "qa0")
    e.lg(f"ds_read_b128 {vr(QA+4)}, v{QADDR} offset:{L_Q+128}", "qa1")
    e.vm_wait(("K", 15))
    e.lg_all()
    I(f"v_and_b32 v39, {TAGM:#x}, v39")
    for t in range(4):
        d0, d1 = DA + 8*(t & 1), DA + 8*(t & 1) + 4
        for ee, d in ((0, d0), (1, d1)): mfma(d, QA, KR(t, ee, 0), first=True)
        for ee, d in ((0, d0), (1, d1)): mfma(d, QA+4, KR(t, ee, 1))
        if t == 0: I("v_readfirstlane_b32 s58, v39")
        if t >= 1: merge_tile(t-1, DA, S0)
    merge_tile(3, DA, S0)
    rne2(S0, S1, 20)
    I(f"v_mul_f32 v{S0}, 0x3db504f3, v{S0}\nv_mul_f32 v{S1}, 0x3db504f3, v{S1}")
    rne2(S0, S1, 20)
    M0, L0, M1, L1 = 24, 25, 26, 27
    I(f"v_mov_b32 v{M0}, v{S0}\nv_mov_b32 v{M1}, v{S1}")
    allreduce("max", [M0, M1], [20, 21])
    I(f"v_sub_f32 v{S0}, v{S0}, v{M0}\nv_sub_f32 v{S1}, v{S1}, v{M1}")
    I(f"v_mul_f32 v{S0}, {LOG2E:#x}, v{S0}\nv_mul_f32 v{S1}, {LOG2E:#x}, v{S1}")
    I(f"v_exp_f32 v{L0}, v{S0}\nv_exp_f32 v{L1}, v{S1}")
    I(f"v_cvt_pk_bf16_f32 v{P}, v{L0}, v{L1}")
    stamp(4)
    ACC = 16
    def bld(i):
        I(f"v_mov_b32_dpp v{20+(i&1)}, v{P} row_newbcast:{i} row_mask:0xf bank_mask:0xf")
        build_a(QA + 4*(i & 1), 20 + (i & 1))
    def pv(i):
        e.vm_wait(("V", i))
        mfma(ACC, QA + 4*(i & 1), VR(i), first=(i == 0))
        if i + 2 < 16: bld(i + 2)
    bld(0); bld(1)
    for i in range(4): pv(i)
    allreduce("add", [L0, L1], [22, 23])
    I(f"s_lshl_b32 s48, s3, 4\ns_add_u32 s48, s48, {L_STAT}\nv_mov_b32 v22, s48")
    I("s_mov_b64 exec, 1")
    e.lg(f"ds_write_b128 v22, {vr(M0)}", "st")
    I(f"v_mov_b32 v22, {CNT_S}\nv_mov_b32 v23, 1")
    e.lg_wait("st")
    I("ds_add_u32 v22, v23")
    I("s_mov_b64 exec, -1")
    for i in range(4, 8): pv(i)
    lds_spin(CNT_S, 4, 22, 23)
    I(f"v_mov_b32 v22, {L_STAT}")
    ST = 40
    for w in range(4): e.lg(f"ds_read_b128 {vr(ST+4*w)}, v22 offset:{16*w}", ("sw", w))
    e.lg_wait(("sw", 3))
    GM0, GM1, GL0, GL1, F = 56, 57, 58, 59, 60
    I(f"v_max3_f32 v{GM0}, v{ST}, v{ST+4}, v{ST+8}\nv_max3_f32 v{GM1}, v{ST+2}, v{ST+6}, v{ST+10}")
    I(f"v_max_f32 v{GM0}, v{GM0}, v{ST+12}\nv_max_f32 v{GM1}, v{GM1}, v{ST+14}")
    for w in range(4): I(f"v_sub_f32 v{ST+4*w}, v{ST+4*w}, v{GM0}\nv_sub_f32 v{ST+4*w+2}, v{ST+4*w+2}, v{GM1}")
    for w in range(4): I(f"v_mul_f32 v{ST+4*w}, {LOG2E:#x}, v{ST+4*w}\nv_mul_f32 v{ST+4*w+2}, {LOG2E:#x}, v{ST+4*w+2}")
    for w in range(4): I(f"v_exp_f32 v{ST+4*w}, v{ST+4*w}\nv_exp_f32 v{ST+4*w+2}, v{ST+4*w+2}")
    I(f"v_sub_f32 v{M0}, v{M0}, v{GM0}\nv_sub_f32 v{M1}, v{M1}, v{GM1}")
    I(f"v_mul_f32 v{GL0}, v{ST}, v{ST+1}\nv_mul_f32 v{GL1}, v{ST+2}, v{ST+3}")
    I(f"v_mul_f32 v{M0}, {LOG2E:#x}, v{M0}\nv_mul_f32 v{M1}, {LOG2E:#x}, v{M1}")
    for w in range(1, 4): I(f"v_fmac_f32 v{GL0}, v{ST+4*w}, v{ST+4*w+1}\nv_fmac_f32 v{GL1}, v{ST+4*w+2}, v{ST+4*w+3}")
    I(f"v_exp_f32 v{M0}, v{M0}\nv_exp_f32 v{M1}, v{M1}")
    I("s_mov_b32 s48, 0\ns_mov_b32 s49, -1\ns_mov_b32 s50, 0xc\ns_mov_b32 s51, 0")
    I(f"v_cndmask_b32 v{F}, v{M0}, v{M1}, s[48:49]")
    ML = 64
    I(f"v_cndmask_b32 v{ML}, v{GM0}, v{GM1}, s[50:51]\nv_cndmask_b32 v{ML+1}, v{GL0}, v{GL1}, s[50:51]")
    I(f"v_mov_b32 v{ML+8}, s58")
    I(f"v_mov_b32 v{ML+2}, 0\nv_mov_b32 v{ML+3}, 0\nv_lshlrev_b32 v{ML+4}, 8, v0")
    tag4(ML, ML+8)
    I(f"v_mov_b32 v{ML+5}, {CNT_O}\nv_mov_b32 v{ML+6}, 1\nv_lshlrev_b32 v{ML+7}, 4, v0")
    I(f"v_mov_b32 v{F+1}, v{F}")
    for i in range(8, 16): pv(i)
    stamp(5)
    pk("mul", ACC, ACC, F); pk("mul", ACC+2, ACC+2, F)
    e.lg(f"ds_write_b128 v{OADDR}, {vr(ACC)}", "op")
    I("s_mov_b64 exec, 1")
    e.lg_wait("op")
    e.lg(f"ds_add_rtn_u32 v{ML+6}, v{ML+5}, v{ML+6}", "cnt")
    e.lg_wait("cnt")
    I(f"v_readfirstlane_b32 s48, v{ML+6}")
    I("s_mov_b64 exec, -1")
    I("s_cmp_eq_u32 s48, 3")
    br("s_cbranch_scc0 L_A_done")
    for w in range(4): e.lg(f"ds_read_b128 {vr(40+4*w)}, v{ML+7} offset:{L_OP+1024*w}", ("o", w))
    e.lg_wait(("o", 1))
    pk("add", 40, 40, 44); pk("add", 42, 42, 46)
    e.lg_wait(("o", 3))
    pk("add", 48, 48, 52); pk("add", 50, 50, 54)
    pk("add", 40, 40, 48); pk("add", 42, 42, 50)
    tag4(40, ML+8)
    if O.local:
        I(f"global_store_dwordx4 v{HOFF}, {vr(40)}, s[52:53]")
        I("s_mov_b64 exec, 0xf")
        I(f"global_store_dwordx4 v{ML+4}, {vr(ML)}, s[54:55]")
        I("s_mov_b64 exec, -1")
        add64(52, 52, H2G - H2); add64(54, 54, HMLG - HML)
    I(f"global_store_dwordx4 v{HOFF}, {vr(40)}, s[52:53] sc1")
    I("s_mov_b64 exec, 0xf")
    I(f"global_store_dwordx4 v{ML+4}, {vr(ML)}, s[54:55] sc1")
    I("s_mov_b64 exec, -1")
    lds_set(F_HP, 1, 38, 39)
    e.settle()
    e.label("L_A_done")
    stamp(6)
    if not O.x_notail:
        if O.pfslow:
            I("s_cmp_ge_u32 s29, 13"); br("s_cbranch_scc1 L_A_pf")
        I("s_cmp_lt_u32 s29, 9")
        br("s_cbranch_scc0 L_A_end")
        I("s_add_u32 s3, s3, 4")
        lds_spin(F_HP, 1, 38, 39)
        e.branch("s_branch L_FFN")
        if O.pfslow:
            e.label("L_A_pf")
            I("s_lshr_b32 s48, s28, 1")
            I("s_sub_u32 s49, 3, s48\ns_and_b32 s49, s49, 7")
            I("s_mul_i32 s50, s48, 9\ns_add_u32 s50, s50, s49\ns_lshl_b32 s50, s50, 7")
            I("s_and_b32 s51, s28, 1\ns_mul_i32 s51, s51, 3\ns_add_u32 s51, s51, s29\ns_sub_u32 s51, s51, 13\ns_lshl_b32 s51, s51, 2\ns_add_u32 s51, s51, s3")
            I("s_mul_i32 s51, s51, 24*9216\ns_add_u32 s50, s50, s51")
            I("v_lshrrev_b32 v8, 3, v0\nv_mul_u32_u24 v8, 9216, v8\nv_and_b32 v9, 7, v0\nv_lshl_add_u32 v8, v9, 4, v8")
            I(f"s_mov_b32 s32, s{sWG}"); srd(32, sWG, 576*9216)
            I(f"s_mov_b32 s36, s{sWU}"); srd(36, sWU, 576*9216)
            lds_spin(F_HP, 1, 38, 39)
            def six():
                for i in range(3):
                    I(f"s_add_u32 s51, s50, {8*9216*i}")
                    I(f"buffer_load_dwordx4 {vr(40+8*i)}, v8, s[32:35], s51 offen {O.pfnt}")
                    I(f"buffer_load_dwordx4 {vr(44+8*i)}, v8, s[36:39], s51 offen {O.pfnt}")
            six()
            lp2 = L("pf2")
            I("s_cmp_eq_u32 s48, 3"); br(f"s_cbranch_scc0 {lp2}")
            I("s_add_u32 s50, s50, 8*128")
            six()
            e.label(lp2)
            if O.pfall:
                nr = 8*O.pfall
                I("s_and_b32 s51, s28, 1\ns_mul_i32 s51, s51, 3\ns_add_u32 s51, s51, s29\ns_sub_u32 s51, s51, 13\ns_lshl_b32 s51, s51, 2\ns_add_u32 s51, s51, s3")
                I(f"s_and_b32 s50, s51, 7\ns_mul_i32 s50, s50, 72\ns_add_u32 s50, s50, {72-nr}")
                I(f"s_lshr_b32 s51, s51, 3\ns_mul_i32 s51, s51, {nr//3 if nr % 3 == 0 else (nr+2)//3}\ns_add_u32 s50, s50, s51")
                I("s_mul_i32 s50, s50, 9216\ns_mul_i32 s51, s48, 1152\ns_add_u32 s50, s50, s51")
                I("v_lshlrev_b32 v9, 4, v0")
                n3 = nr//3 if nr % 3 == 0 else (nr+2)//3
                for r in range(n3):
                    I(f"s_add_u32 s51, s50, {9216*r}")
                    I(f"buffer_load_dwordx4 {vr(40+8*(r&3))}, v9, s[32:35], s51 offen {O.pfnt}")
                    I(f"buffer_load_dwordx4 {vr(44+8*(r&3))}, v9, s[36:39], s51 offen {O.pfnt}")
                for r in range(0, n3, 8):
                    I(f"s_add_u32 s51, s50, {9216*r + 1024}")
                    I(f"buffer_load_dwordx4 {vr(72)}, v8, s[32:35], s51 offen {O.pfnt}")
                    I(f"buffer_load_dwordx4 {vr(76)}, v8, s[36:39], s51 offen {O.pfnt}")
    e.label("L_A_end")
    finish()

def half_combine(acc, t):
    for r in range(4): I(f"v_mov_b32 v{t+r}, v{acc+r}")
    for r in range(4): I(f"v_permlane32_swap_b32 v{acc+r}, v{t+r}")
    for r in range(4): I(f"v_add_f32_dpp v{acc+r}, v{t+r}, v{acc+r} row_ror:8 row_mask:0xf bank_mask:0xf")

def role_T0_head():
    WB = 32
    I("s_setprio 3")
    ids()
    I("v_lshlrev_b32 v1, 4, v0")
    I("v_lshrrev_b32 v16, 4, v0\nv_bfe_u32 v17, v0, 3, 1")
    I("v_and_b32 v18, 7, v0\nv_lshlrev_b32 v18, 4, v18")
    I("v_lshl_add_u32 v19, v16, 3, v17\nv_lshl_add_u32 v2, v19, 13, v18")
    I("v_lshl_add_u32 v19, v16, 2, v17\nv_lshl_add_u32 v3, v19, 13, v18")
    I("s_lshr_b32 s48, s29, 2\ns_mul_i32 s49, s48, 0x120000\ns_and_b32 s50, s29, 3\ns_lshl_b32 s50, s50, 7\ns_add_u32 s49, s49, s50")
    I("s_lshl_b32 s50, s28, 9\ns_add_u32 s49, s49, s50")
    if O.diag3: stamp(5)
    I("s_waitcnt lgkmcnt(0)")
    if O.diag3: stamp(6)
    srd(32, sX, 1152)
    e.vm(f"buffer_load_dwordx4 {vr(8)}, v1, s[32:35], 0 offen", "xa")
    e.vm(f"buffer_load_dwordx4 {vr(12)}, v1, s[32:35], 0 offen offset:1024", "xb")
    add64(36, sWQ, "s49"); srd(36, 36, 144*8192)
    steps = [(2, (32*Ig + 2*ii)*8192) for Ig in range(4) for ii in range(4)] + [(3, 128*8192), (3, 130*8192)]
    for k, (vo, so) in enumerate(steps):
        if so: I(f"s_mov_b32 s50, {so}")
        e.vm(f"buffer_load_dwordx4 {vr(WB+4*k)}, v{vo}, s[36:39], {'s50' if so else '0'} offen {O.nt}", ("wq", k))
    I("s_barrier")
    stamp(1)
    make_sel(104)
    I("v_lshrrev_b32 v104, 4, v0\nv_lshlrev_b32 v105, 4, v104\nv_lshlrev_b32 v106, 3, v104")
    I(f"s_mul_i32 s50, s48, 288\ns_add_u32 s50, s50, {L_LN1}")
    I("v_add_u32 v150, s50, v105\nv_add_u32 v151, s50, v106")
    I("v_and_b32 v152, 7, v0\nv_lshlrev_b32 v152, 1, v152\nv_add_u32 v152, v152, v104\nv_lshlrev_b32 v152, 4, v152")
    I("s_lshl_b32 s49, s28, 13\ns_lshl_b32 s50, s48, 11\ns_add_u32 s49, s49, s50\ns_and_b32 s50, s29, 3\ns_lshl_b32 s50, s50, 8\ns_add_u32 s49, s49, s50")
    I(f"s_add_u32 s49, s49, {H1 if O.local else H1G}")
    add64(44, sWS, "s49")
    e.vm_wait("xb")
    for half, base in ((0, 8), (1, 12)):
        for d in range(4):
            I(f"v_lshlrev_b32 v{16+8*half+2*d}, 16, v{base+d}")
            I(f"v_and_b32 v{17+8*half+2*d}, 0xffff0000, v{base+d}")
    layernorm(list(range(16, 32)), 8, "0xff", 104, 8)
    e.lg(f"ds_write_b128 v1, {vr(8)} offset:{L_LN1}", "ln")
    I("s_mov_b64 exec, 0xff")
    e.lg(f"ds_write_b128 v1, {vr(12)} offset:{L_LN1+1024}", "ln2")
    I("s_mov_b64 exec, -1")
    e.lg_all()
    for Ig in range(4): e.lg(f"ds_read_b128 {vr(108+4*Ig)}, v150 offset:{64*Ig}", ("pk", Ig))
    e.lg(f"ds_read_b64 v[124:125], v151 offset:256", ("pk", 4))
    stamp(2)
    ACC = 16
    gemv(18, ACC, 20, lambda k: WB + 4*k, lambda k: 108 + k,
         pre=lambda k: e.lg_wait(("pk", k >> 2)) if (k & 3) == 0 else None,
         wait=lambda k: e.vm_wait(("wq", k)))
    stamp(3)
    get_tag_full = True
    lds_spin(F_TAG, 1, 28, 29)
    I(f"v_mov_b32 v28, {L_TAG}\nds_read_b32 v30, v28")
    half_combine(ACC, 20)
    I("s_waitcnt lgkmcnt(0)")
    I(f"v_mov_b32 v28, v{ACC}\nv_mov_b32 v29, v{ACC+1}\nv_mov_b32 v31, v30")
    I(f"v_mov_b32 v20, v{ACC+2}\nv_mov_b32 v21, v{ACC+3}\nv_mov_b32 v22, v30\nv_mov_b32 v23, v30")
    I("s_mov_b32 exec_lo, 0x00ff00ff\ns_mov_b32 exec_hi, 0")
    if O.local:
        I(f"global_store_dwordx4 v152, v[28:31], s[44:45]")
        I(f"global_store_dwordx4 v152, v[20:23], s[44:45] offset:1024")
        add64(44, 44, H1G - H1)
    I(f"global_store_dwordx4 v152, v[28:31], s[44:45] sc1")
    I(f"global_store_dwordx4 v152, v[20:23], s[44:45] offset:1024 sc1")
    I("s_mov_b64 exec, -1")
    lds_set(F_PUB, 1, 24, 25)
    stamp(4)
    I("s_mov_b32 s3, 0")
    e.branch("s_branch L_Tail")

def role_C():
    e.comment("===== wave 1: launch tag, gathers")
    e.label("L_C")
    I("s_setprio 3")
    I("v_lshlrev_b32 v2, 2, v0\nv_mov_b32 v3, 0")
    I("ds_write_b32 v2, v3")
    ids()
    I("s_waitcnt lgkmcnt(0)")
    I("s_barrier")
    add64(34, sWS, EPOCH)
    I("s_load_dword s56, s[34:35], 0")
    I("v_lshlrev_b32 v1, 4, v0")
    if O.prefetch:
        lp = L("pc")
        I("s_getpc_b64 s[32:33]")
        e.label(lp)
        I(f"s_sub_u32 s32, s32, {lp}-{NAME}\ns_subb_u32 s33, s33, 0")
        I("s_lshr_b32 s48, s2, 3\ns_and_b32 s48, s48, PF_MASK\ns_lshl_b32 s48, s48, 10")
        I("v_add_u32 v2, s48, v1\nv_min_u32 v2, CODE_BYTES-16, v2")
        I("global_load_dwordx4 v[16:19], v2, s[32:33]")
    stamp(1)
    I("s_waitcnt lgkmcnt(0)")
    I("s_add_u32 s56, s56, 1")
    I(f"v_mov_b32 v40, s56")
    I(f"v_mov_b32 v3, {L_TAG}\nds_write_b32 v3, v40\ns_waitcnt lgkmcnt(0)")
    lds_set(F_TAG, 1, 2, 3)
    stamp(2)
    def qbase(off):
        I(f"s_lshl_b32 s48, s28, 13\ns_add_u32 s48, s48, {off}"); add64(32, sWS, "s48")
        add64(34, 32, 4096)
    qbase(H1 if O.local else H1G)
    lds_spin(F_PUB, 1, 2, 3)
    lds_spin(F_K, O.nq, 2, 3)
    def mk(b):
        for k in range(8): I(f"global_load_dwordx4 {vr(b+4*k)}, v1, s[{32+2*(k>>2)}:{33+2*(k>>2)}] offset:{1024*(k&3)} sc1")
    def chk():
        I("v_xor_b32 v8, v46, v40")
        for k in range(8):
            for x in ((47,) if k == 0 else (46+4*k, 47+4*k)): I(f"v_bitop3_b32 v8, v8, v{x}, v40 bitop3:0xf6")
        I("v_cmp_ne_u32 vcc, 0, v8")
    pollp(mk, 8, 32, 44, 0, 8, 40, switch=(lambda: qbase(H1G)) if O.local else None, check=chk)
    I("s_waitcnt vmcnt(0)")
    for half in range(2):
        pk("add", 16+2*half, 44+4*half, 52+4*half)
        pk("add", 20+2*half, 60+4*half, 68+4*half)
    pk("add", 16, 16, 20); pk("add", 18, 18, 22)
    I("v_cvt_pk_bf16_f32 v8, v16, v17\nv_cvt_pk_bf16_f32 v9, v18, v19")
    I("v_lshlrev_b32 v2, 3, v0")
    I(f"ds_write_b64 v2, v[8:9] offset:{L_Q}")
    I("s_waitcnt lgkmcnt(0)")
    lds_set(F_Q, 1, 2, 3)
    stamp(3)
    I(f"v_and_b32 v15, {TAGM:#x}, v40")
    if O.x_notail: e.branch("s_branch L_C_done")
    I("s_cmp_ge_u32 s29, 13"); br("s_cbranch_scc1 L_C_done")
    I("s_cmp_ge_u32 s29, 9"); br("s_cbranch_scc1 L_WO_C")
    e.branch("s_branch L_FFN_C")
    e.label("L_C_done")
    finish()

def role_T():
    e.comment("===== waves 6..9 (tail index 1..4) and wave 0 after its q slice")
    e.label("L_T")
    ids()
    I("s_cmp_eq_u32 s3, 1\ns_cselect_b32 s3, 8, s3\ns_sub_u32 s3, s3, 5")
    I("s_waitcnt lgkmcnt(0)")
    I("s_barrier")
    make_sel(8)
    e.label("L_Tail")
    if O.x_notail: finish()
    I("s_setprio 0")
    I("s_cmp_ge_u32 s29, 13"); br("s_cbranch_scc1 L_RED")
    I("s_cmp_ge_u32 s29, 9"); br("s_cbranch_scc1 L_WO")
    if O.igo == 99: lds_spin(F_HP, 1, 8, 9)
    else: lds_spin(F_GOL, O.ngo, 8, 9)
    e.branch("s_branch L_FFN")

def main_voff(v, rowstride, t):
    I(f"v_lshrrev_b32 v{t}, 4, v0\nv_mul_u32_u24 v{t}, {rowstride}, v{t}\nv_and_b32 v{t+1}, 15, v0\nv_lshl_add_u32 v{v}, v{t+1}, 4, v{t}")
    I(f"s_lshl_b32 s48, s3, 8\nv_add_u32 v{v}, s48, v{v}")

def extra_voff(v, rowstride, t):
    I(f"v_lshrrev_b32 v{t}, 4, v0\nv_bfe_u32 v{t+1}, v0, 3, 1\nv_lshl_add_u32 v{t}, v{t+1}, 2, v{t}\nv_mul_u32_u24 v{t}, {rowstride}, v{t}")
    I(f"v_and_b32 v{t+1}, 7, v0\nv_lshl_add_u32 v{v}, v{t+1}, 4, v{t}\nv_add_u32 v{v}, 1024, v{v}")

def publish_addr(region, stride, prod_sgpr, t):
    I(f"v_and_b32 v{t}, 15, v0\ns_lshl_b32 s48, s3, 4\nv_add_u32 v{t}, s48, v{t}")
    I(f"v_mul_u32_u24 v{t}, {stride}, v{t}")
    I(f"v_lshrrev_b32 v{t+1}, 4, v0\nv_lshl_add_u32 v{t}, v{t+1}, 4, v{t}")
    I(f"s_lshl_b32 s48, s{prod_sgpr}, 5\ns_add_u32 s48, s48, {region}")
    add64(44, sWS, "s48")

def publish_main(acc, vaddr, vtag):
    I("s_mov_b32 exec_hi, 0")
    tag4(acc, vtag)
    I(f"global_store_dwordx4 v{vaddr}, {vr(acc)}, s[44:45] sc1")
    I("s_mov_b32 exec_hi, -1")

def publish_extra(acc, vaddr, vtag, stride):
    I("s_mov_b32 exec_lo, 0x00ff00ff\ns_mov_b32 exec_hi, 0")
    add64(44, 44, 64*stride)
    tag4(acc, vtag)
    I(f"global_store_dwordx4 v{vaddr}, {vr(acc)}, s[44:45] sc1")
    I("s_mov_b64 exec, -1")

def role_WO():
    WB, WX = 92, 60
    e.label("L_WO")
    main_voff(1, 1152, 8)
    extra_voff(2, 1152, 8)
    I("s_lshl_b32 s48, s28, 2\ns_add_u32 s48, s48, s29\ns_sub_u32 s52, s48, 9")
    I("s_mul_i32 s48, s52, 73728")
    add64(32, sWO, "s48"); srd(32, 32, 64*1152)
    publish_addr(H3A, 2048, 52, 8)
    get_tag(12, 10)
    make_msk()
    I(f"v_lshrrev_b32 v9, 4, v0\nv_lshlrev_b32 v9, 6, v9")
    I("s_mov_b32 s47, 0xffff")
    if O.iwo == 99: lds_spin(F_HP, 1, 10, 11)
    else: lds_spin(F_GOE, O.nwo, 10, 11)
    stamp(5)
    for i in range(16):
        if i: I(f"s_mov_b32 s48, {4608*i}")
        I(f"buffer_load_dwordx4 {vr(WB+4*i)}, v1, s[32:35], {'s48' if i else '0'} offen {O.nt}")
    ln = L("wonx")
    I("s_cmp_eq_u32 s3, 0"); br(f"s_cbranch_scc0 {ln}")
    for i in range(8):
        if i: I(f"s_mov_b32 s48, {9216*i}")
        I(f"buffer_load_dwordx4 {vr(WX+4*i)}, v2, s[32:35], {'s48' if i else '0'} offen {O.nt}")
    e.label(ln)
    Y, ACC = 32, 28
    I("s_setprio 3")
    I("s_waitcnt vmcnt(0)")
    stamp(6)
    I("s_barrier")
    stamp(7)
    e.lgq = []
    for q in range(4): e.lg(f"ds_read_b128 {vr(Y+4*q)}, v9 offset:{L_Y+16*q}", ("y", q))
    gemv(16, ACC, 16, lambda i: WB + 4*i, lambda i: Y + i, pre=lambda i: e.lg_wait(("y", i >> 2)) if (i & 3) == 0 else None, bld=build_m)
    publish_main(ACC, 8, 12)
    I("s_cmp_eq_u32 s3, 0"); br("s_cbranch_scc0 L_WO_done")
    AC2 = 48
    gemv(8, AC2, 16, lambda i: WX + 4*i, lambda i: 24 + (i & 1), pre=lambda i: I(f"v_bfi_b32 v{24+(i&1)}, s47, v{Y+2*i}, v{Y+2*i+1}"))
    half_combine(AC2, 20)
    publish_extra(AC2, 8, 12, 2048)
    e.label("L_WO_done")
    finish()

def role_WO_C():
    e.label("L_WO_C")
    I("s_lshl_b32 s48, s28, 2\ns_add_u32 s48, s48, s29\ns_sub_u32 s52, s48, 9")
    I("s_add_u32 s53, s52, 48")
    red_setup()
    def bases(o2, oml):
        I(f"s_lshl_b32 s48, s52, 12\ns_add_u32 s48, s48, {o2}"); add64(36, sWS, "s48")
        I(f"s_lshl_b32 s48, s52, 8\ns_add_u32 s48, s48, {oml}"); add64(38, sWS, "s48")
    bases(*((H2, HML) if O.local else (H2G, HMLG)))
    I("v_and_b32 v3, 3, v0\nv_lshlrev_b32 v3, 2, v3\nv_lshrrev_b32 v9, 4, v0\nv_add_u32 v3, v3, v9\nv_lshlrev_b32 v3, 4, v3")
    I(f"v_lshlrev_b32 v12, 2, v0")
    lds_spin(F_HP, 1, 10, 11)
    I("s_waitcnt vmcnt(0)")
    I(f"v_lshlrev_b32 v{RX}, 16, v{RX}")
    stamp(5)
    def mk(b):
        for k in range(4): I(f"global_load_dwordx4 {vr(b+4*k)}, v1, s[36:37] offset:{1024*k} sc1")
        I(f"global_load_dwordx4 {vr(b+16)}, v3, s[38:39] sc1")
    pollp(mk, 5, 20, 44, 16, 10, 15, switch=(lambda: bases(H2G, HMLG)) if O.local else None)
    stamp(6)
    I("v_max_f32_dpp v36, v32, v32 quad_perm:[1,0,3,2] row_mask:0xf bank_mask:0xf")
    I("v_max_f32_dpp v36, v36, v36 quad_perm:[2,3,0,1] row_mask:0xf bank_mask:0xf")
    cross_allreduce("max", [36], [37])
    I(f"v_sub_f32 v32, v32, v36\nv_mul_f32 v32, {LOG2E:#x}, v32\nv_exp_f32 v32, v32")
    I("v_mul_f32 v33, v33, v32")
    for r in range(4): I(f"v_mul_f32_dpp v{16+r}, v32, v{16+r} quad_perm:[0,0,0,0] row_mask:0xf bank_mask:0xf")
    I("v_add_f32_dpp v33, v33, v33 quad_perm:[1,0,3,2] row_mask:0xf bank_mask:0xf")
    for r in range(4): I(f"v_fmac_f32_dpp v{16+r}, v32, v{20+r} quad_perm:[1,1,1,1] row_mask:0xf bank_mask:0xf")
    I("v_add_f32_dpp v33, v33, v33 quad_perm:[2,3,0,1] row_mask:0xf bank_mask:0xf")
    for r in range(4): I(f"v_fmac_f32_dpp v{16+r}, v32, v{24+r} quad_perm:[2,2,2,2] row_mask:0xf bank_mask:0xf")
    I("v_mov_b32 v37, v33")
    for r in range(4): I(f"v_fmac_f32_dpp v{16+r}, v32, v{28+r} quad_perm:[3,3,3,3] row_mask:0xf bank_mask:0xf")
    I("v_permlane16_swap_b32 v33, v37")
    I("v_add_f32 v33, v33, v37")
    I("v_permlane32_swap_b32 v16, v18\nv_permlane32_swap_b32 v17, v19")
    I("v_mov_b32 v37, v33")
    pk("add", 16, 16, 18)
    I("v_permlane32_swap_b32 v33, v37")
    I("v_permlane16_swap_b32 v16, v17")
    I("v_add_f32 v33, v33, v37")
    I("v_add_f32 v16, v16, v17")
    I("v_rcp_f32 v33, v33")
    I("v_mul_f32 v16, v16, v33")
    I("v_cvt_pk_bf16_f32 v16, v16, v16")
    I(f"ds_write_b32 v12, v16 offset:{L_Y}")
    I("s_waitcnt lgkmcnt(0)")
    I("s_barrier")
    stamp(7)
    I("s_cmp_lt_u32 s53, 72"); br("s_cbranch_scc1 L_RED_main")
    finish()

RX, RA, RH, RT = 120, 121, 122, 123
def red_setup():
    I(f"s_min_u32 s50, s53, 71")
    I(f"v_lshrrev_b32 v8, 4, v0\nv_and_b32 v9, 1, v0\nv_lshl_add_u32 v9, v9, 2, v8\nv_lshlrev_b32 v9, 1, v9\ns_lshl_b32 s48, s50, 4\nv_add_u32 v{RA}, s48, v9")
    I(f"global_load_ushort v{RX}, v{RA}, {sp(sX)}")
    I(f"s_lshl_b32 s48, s50, 11\ns_add_u32 s48, s48, {H3A}"); add64(40, sWS, "s48")
    I(f"s_mul_i32 s48, s50, 4608\ns_add_u32 s48, s48, {H4}"); add64(42, sWS, "s48")
    add64(44, 42, 4096)
    I("v_lshlrev_b32 v1, 4, v0")
    I(f"v_lshrrev_b32 v8, 1, v0\nv_mul_u32_u24 v8, 2304, v8\nv_and_b32 v9, 1, v0\nv_lshl_add_u32 v{RH}, v9, 4, v8")
    I(f"s_lshl_b32 s48, s50, 5\ns_add_u32 s48, s48, {H3B}"); add64(46, sWS, "s48")
    get_tag(RT, 8)
    for r in range(4): I(f"v_mov_b32 v{96+r}, v{RT}")

def role_RED():
    e.comment("===== column reducers: 8 columns per wave; blocks 0..47 on the reducer workgroups, 48..71 on wave C of output projections")
    e.label("L_RED")
    I("s_cmp_ge_u32 s3, 1"); br("s_cbranch_scc1 L_RED_done")
    I("s_mul_i32 s53, s28, 3\ns_add_u32 s53, s53, s29\ns_sub_u32 s53, s53, 13")
    red_setup()
    lds_spin(F_HP, 1, 12, 13)
    I("s_waitcnt vmcnt(0)"); e.vmq = []
    I(f"v_lshlrev_b32 v{RX}, 16, v{RX}")
    I("s_setprio 3")
    e.settle()
    e.label("L_RED_main")
    stamp(8)
    def mk(b):
        for k in range(2): I(f"global_load_dwordx4 {vr(b+4*k)}, v1, s[40:41] offset:{1024*k} sc1")
    pollp(mk, 2, 8, 60, 16, 12, RT)
    stamp(9)
    pk("add", 16, 16, 20); pk("add", 18, 18, 22)
    rscatter4(16)
    rows_allreduce("add", [16], (2, 4, 8))
    rne1(16, 12)
    I(f"v_add_f32 v{RX}, v{RX}, v16")
    rne1(RX, 12)
    gather_rows(RX, 20)
    I("s_mov_b32 exec_lo, -1\ns_mov_b32 exec_hi, 0")
    tag4(20, RT)
    I(f"global_store_dwordx4 v{RH}, v[20:23], s[46:47] sc1")
    I("s_mov_b64 exec, -1")
    stamp(10)
    def mk4(b):
        for k in range(4): I(f"global_load_dwordx4 {vr(b+4*k)}, v1, s[42:43] offset:{1024*k} sc1")
        I("s_mov_b32 exec_hi, 0")
        I(f"global_load_dwordx4 {vr(b+16)}, v1, s[44:45] sc1")
        I("s_mov_b32 exec_hi, -1")
    pollp(mk4, 5, 20, 80, 16, 12, RT)
    if O.diag: I("s_memrealtime s[78:79]")
    pk("add", 16, 16, 20); pk("add", 18, 18, 22); pk("add", 24, 24, 28); pk("add", 26, 26, 30)
    pk("add", 16, 16, 32); pk("add", 18, 18, 34)
    pk("add", 16, 16, 24); pk("add", 18, 18, 26)
    rscatter4(16)
    rows_allreduce("add", [16], (2, 4, 8))
    rne1(16, 12)
    I(f"v_add_f32 v{RX}, v{RX}, v16")
    I(f"v_cvt_pk_bf16_f32 v{RX}, v{RX}, v{RX}")
    I("s_mov_b32 exec_lo, 0x00030003\ns_mov_b32 exec_hi, 0x00030003")
    I(f"global_store_short v{RA}, v{RX}, {sp(sOUT)}")
    le = L("noep")
    I("s_cmp_eq_u32 s53, 0"); e.branch(f"s_cbranch_scc0 {le}")
    I(f"v_mov_b32 v12, {L_TAG}\nds_read_b32 v13, v12\nv_mov_b32 v14, 0")
    add64(32, sWS, EPOCH)
    I("s_mov_b64 exec, 1\ns_waitcnt lgkmcnt(0)")
    I("global_store_dword v14, v13, s[32:33]")
    e.label(le)
    I("s_mov_b64 exec, -1")
    e.label("L_RED_done")
    if O.pad:
        lp = L("pad")
        e.label(lp)
        I("s_memrealtime s[92:93]\ns_waitcnt lgkmcnt(0)\ns_sub_u32 s92, s92, s90")
        I(f"s_cmp_lt_u32 s92, {O.pad}"); br(f"s_cbranch_scc1 {lp}")
    finish()

def ffn_ids():
    I("s_lshr_b32 s48, s28, 1\ns_mul_i32 s48, s48, 9\ns_add_u32 s48, s48, s29\ns_lshl_b32 s48, s48, 6")
    I("s_and_b32 s49, s28, 1\ns_lshl_b32 s49, s49, 5\ns_add_u32 s52, s48, s49")

def role_FFN():
    GB, DB, DX = 88, 124, 72
    e.label("L_FFN")
    stamp(7)
    ffn_ids()
    ld, lj = L("nodown"), L("ffj")
    I("v_lshrrev_b32 v16, 4, v0\nv_bfe_u32 v9, v0, 3, 1\nv_lshl_add_u32 v8, v16, 3, v9")
    I("s_mul_i32 s48, s3, 72\nv_add_u32 v8, s48, v8\nv_mul_u32_u24 v8, 9216, v8")
    I("v_and_b32 v9, 3, v0\nv_lshlrev_b32 v9, 4, v9\ns_lshl_b32 s48, s52, 1\nv_add3_u32 v8, v8, v9, s48")
    I("v_bfe_u32 v9, v0, 2, 1\nv_cmp_eq_u32 vcc, 1, v9")
    I(f"v_mov_b32 v10, s{sWG}\nv_mov_b32 v11, s{sWU}\nv_cndmask_b32 v10, v10, v11, vcc")
    I(f"v_mov_b32 v11, s{sWG+1}\nv_mov_b32 v12, s{sWU+1}\nv_cndmask_b32 v11, v11, v12, vcc")
    I("v_add_co_u32 v10, vcc, v10, v8\nv_addc_co_u32 v11, vcc, 0, v11, vcc")
    I(f"s_mov_b32 s48, {2*9216}\ns_mov_b32 s49, 0\ns_mov_b32 s50, {26*9216}\ns_mov_b32 s51, 0")
    I(f"v_mul_u32_u24 v18, {6*9216}, v16\nv_sub_u32 v18, {26*9216}, v18\nv_mov_b32 v19, 0")
    for k in range(9):
        if not O.x_noffn: I(f"global_load_dwordx4 {vr(GB+4*k)}, v[10:11], off {O.ntg}")
        if k < 7: I(f"v_lshl_add_u64 v[10:11], v[10:11], 0, {'s[50:51]' if k == 3 else 's[48:49]'}")
        if k == 7: I("v_lshl_add_u64 v[10:11], v[18:19], 0, v[10:11]")
    I(f"s_mul_i32 s48, s3, 144\ns_add_u32 s48, s48, {L_XLN2}\nv_lshlrev_b32 v8, 4, v16\nv_add_u32 v13, s48, v8")
    I("v_lshlrev_b32 v8, 2, v16\nv_add_u32 v14, s48, v8")
    I(f"v_and_b32 v8, 7, v0\nv_lshlrev_b32 v8, 3, v8\nv_bfe_u32 v9, v0, 4, 1\nv_lshl_add_u32 v8, v9, 2, v8\nv_mul_u32_u24 v8, {GUS}, v8")
    I(f"v_lshrrev_b32 v9, 5, v0\nv_lshl_add_u32 v8, v9, 2, v8\ns_lshl_b32 s48, s3, 3\ns_add_u32 s48, s48, {L_GUP}\nv_add_u32 v15, s48, v8")
    I("s_cmp_ge_u32 s3, 4"); br(f"s_cbranch_scc1 {ld}")
    main_voff(1, 1152, 8)
    extra_voff(2, 1152, 8)
    I("s_mul_i32 s48, s52, 1152"); add64(32, sWD, "s48"); srd(32, 32, 32*1152)
    if O.dwait < 9: I(f"s_waitcnt vmcnt({O.dwait})")
    lx = L("dnx")
    I("s_cmp_eq_u32 s3, 0"); br(f"s_cbranch_scc0 {lx}")
    for i in range(4):
        if i: I(f"s_mov_b32 s48, {9216*i}")
        if not O.x_noffn: I(f"buffer_load_dwordx4 {vr(DX+4*i)}, v2, s[32:35], {'s48' if i else '0'} offen {O.nt}")
    e.label(lx)
    for i in range(8):
        if i: I(f"s_mov_b32 s48, {4608*i}")
        if not O.x_noffn: I(f"buffer_load_dwordx4 {vr(DB+4*i)}, v1, s[32:35], {'s48' if i else '0'} offen {O.nt}")
    I("s_mul_i32 s47, s28, 9\ns_add_u32 s47, s47, s29")
    publish_addr(H4, 4608, 47, 40)
    get_tag(42, 8)
    make_msk()
    I("v_bfe_u32 v8, v0, 3, 1\nv_lshlrev_b32 v8, 5, v8\nv_and_b32 v9, 7, v0\nv_lshl_add_u32 v8, v9, 2, v8\nv_lshrrev_b32 v9, 4, v0\nv_add_u32 v8, v8, v9")
    I(f"v_mul_u32_u24 v43, {GUS}, v8")
    I("s_mov_b32 s47, 0xffff")
    lw = L("w12")
    I("s_cmp_eq_u32 s3, 0"); br(f"s_cbranch_scc1 {lw}")
    I("s_waitcnt vmcnt(8)")
    e.branch(f"s_branch {lj}")
    e.label(lw)
    I("s_waitcnt vmcnt(12)")
    e.branch(f"s_branch {lj}")
    e.label(ld)
    I(f"s_mov_b64 s[44:45], {sp(sWS)}\nv_mov_b32 v40, 0")
    I("s_waitcnt vmcnt(0)")
    e.label(lj)
    I("s_setprio 3")
    stamp(8)
    I("s_barrier")
    e.vmq = []; e.lgq = []
    for H in range(2): e.lg(f"ds_read_b128 {vr(16+4*H)}, v13 offset:{64*H}", ("pk", H))
    e.lg(f"ds_read_b32 v24, v14 offset:128", ("pk", 2))
    ACC = 28
    gemv(9, ACC, 32, lambda k: GB + 4*k, lambda k: 16 + k, pre=lambda k: e.lg_wait(("pk", k >> 2)) if (k & 3) == 0 else None)
    I("s_mov_b32 exec_lo, 0x00ff00ff\ns_mov_b32 exec_hi, 0xff00ff00")
    for r in range(4): I(f"ds_write_b32 v15, v{ACC+r} offset:{GUS*r}")
    I("s_mov_b64 exec, -1")
    I("s_waitcnt lgkmcnt(0)")
    I("s_barrier")
    I("s_cmp_ge_u32 s3, 4"); br("s_cbranch_scc1 L_FFN_done")
    stamp(9)
    e.lgq = []
    for k in range(4): e.lg(f"ds_read_b128 {vr(12+4*k)}, v43 offset:{L_GUP+16*k}", ("gp", k))
    e.lg_wait(("gp", 1))
    pk("add", 12, 12, 16); pk("add", 14, 14, 18)
    e.lg_wait(("gp", 3))
    pk("add", 20, 20, 24); pk("add", 22, 22, 26)
    pk("add", 12, 12, 20); pk("add", 14, 14, 22)
    pk("add", 12, 12, 14)
    I("v_add_f32 v12, v12, v13")
    rne1(12, 13)
    I("v_mul_f32 v14, v12, v12")
    I("v_mov_b32 v15, 0x3d372713")
    I("v_mov_b32_dpp v13, v12 row_ror:8 row_mask:0xf bank_mask:0xf")
    I("v_fma_f32 v14, v14, v15, 1.0")
    I("v_mul_f32 v14, v14, v12")
    I("v_mul_f32 v14, 0xc0135761, v14")
    I("v_exp_f32 v14, v14")
    I("v_add_f32 v14, 1.0, v14")
    I("v_rcp_f32 v14, v14")
    I("v_mul_f32 v12, v12, v14")
    rne1(12, 14)
    I("v_mul_f32 v12, v12, v13")
    I("v_cvt_pk_bf16_f32 v16, v12, v12")
    I("s_waitcnt vmcnt(0)")
    stamp(10)
    ACC2 = 28
    gemv(8, ACC2, 20, lambda i: DB + 4*i, lambda i: 18 + (i & 1),
         pre=lambda i: I(f"v_mov_b32_dpp v{18+(i&1)}, v16 row_newbcast:{i} row_mask:0xf bank_mask:0xf"), bld=build_m)
    publish_main(ACC2, 40, 42)
    I("s_cmp_eq_u32 s3, 0"); br("s_cbranch_scc0 L_FFN_done")
    AC3 = 48
    def pre4(i):
        I(f"v_mov_b32_dpp v17, v16 row_newbcast:{2*i} row_mask:0xf bank_mask:0xf")
        I(f"v_mov_b32_dpp v18, v16 row_newbcast:{2*i+1} row_mask:0xf bank_mask:0xf")
        I(f"v_bfi_b32 v{32+(i&1)}, s47, v17, v18")
    gemv(4, AC3, 20, lambda i: DX + 4*i, lambda i: 32 + (i & 1), pre=pre4)
    half_combine(AC3, 52)
    publish_extra(AC3, 40, 42, 4608)
    e.label("L_FFN_done")
    finish()

def role_FFN_C():
    e.label("L_FFN_C")
    I("s_mul_i32 s47, s28, 9\ns_add_u32 s47, s47, s29")
    I(f"s_and_b32 s48, s47, 15\ns_mul_i32 s48, s48, 2304\ns_add_u32 s48, s48, {H3B}")
    add64(36, sWS, "s48")
    for r in range(4): I(f"v_mov_b32 v{68+r}, v15")
    I(f"v_lshlrev_b32 v2, 3, v0")
    lds_spin(F_HP, 1, 8, 9)
    stamp(5)
    def mk(b):
        I(f"global_load_dwordx4 {vr(b)}, v1, s[36:37] sc1")
        I(f"global_load_dwordx4 {vr(b+4)}, v1, s[36:37] offset:1024 sc1")
        I("s_mov_b64 exec, 0xffff")
        I(f"global_load_dwordx4 {vr(b+8)}, v1, s[36:37] offset:2048 sc1")
        I("s_mov_b64 exec, -1")
    pollp(mk, 3, 12, 60, 16, 8, 15)
    stamp(6)
    layernorm(list(range(16, 28)), 8, "0xffff", 32, 52)
    I(f"ds_write_b64 v2, v[52:53] offset:{L_XLN2}\nds_write_b64 v2, v[54:55] offset:{L_XLN2+512}")
    I("s_mov_b64 exec, 0xffff")
    I(f"ds_write_b64 v2, v[56:57] offset:{L_XLN2+1024}")
    I("s_mov_b64 exec, -1")
    I("s_waitcnt lgkmcnt(0)")
    I("s_barrier")
    stamp(7)
    finish()

def build():
    prologue()
    role_T0_head()
    role_A()
    role_C()
    role_T()
    role_WO()
    role_WO_C()
    role_RED()
    role_FFN_C()
    role_FFN()
    e.label("L_end")
    I("s_endpgm")
    e.raw("L_code_end:")
    head = []
    ref = open("sequential_preLN__sliding_block_cached__geglu_ffn__decode.s.ref").read().split("\n")
    for l in ref:
        if l.startswith("; @launch"): break
        if l.startswith("; Override") or l.startswith("; grid="): continue
        head.append(l)
    head.append(f"; @launch grid=(256,1,1) block=(576,1,1) lds={LDS_BYTES}")
    head.append('.amdgcn_target "amdgcn-amd-amdhsa--gfx950"')
    head.append(".text")
    head.append(f".set CODE_BYTES, L_code_end-{NAME}")
    head.append(".set PF_MASK, 15")
    tail = f""".section .rodata,"a"
.p2align 6
.amdhsa_kernel {NAME}
  .amdhsa_next_free_vgpr 168
  .amdhsa_next_free_sgpr 96
  .amdhsa_accum_offset 168
  .amdhsa_group_segment_fixed_size 0
  .amdhsa_kernarg_size 96
  .amdhsa_user_sgpr_count 2
  .amdhsa_user_sgpr_kernarg_segment_ptr 1
  .amdhsa_system_sgpr_workgroup_id_x 1
  .amdhsa_float_denorm_mode_32 3
.end_amdhsa_kernel
"""
    return "\n".join(head) + "\n" + e.text() + tail

if __name__ == "__main__":
    out = sys.argv[1]
    for a in sys.argv[2:]:
        k, v = a.split("=")
        cur = getattr(O, k)
        setattr(O, k, (v == "1") if isinstance(cur, bool) else (int(v) if isinstance(cur, int) else v))
    txt = build()
    open(out, "w").write(txt)
    print(f"wrote {out}: {len(txt)} bytes, nops {e.nnop}, lds {LDS_BYTES}")
```

```python
import sys, os
sys.path.insert(0, os.path.dirname(os.path.abspath(__file__)))
from emit import Emitter

NAME = "sequential_preLN__sliding_block_cached__geglu_ffn__decode_kernel"

class Opt:
    diag = False
    diag2 = False
    light = False
    diag3 = False
    win = 7
    igo = 99
    iwo = 7
    ngo = 4
    nwo = 4
    iq = 16
    nq = 1
    wowin = 16
    nt = "nt"
    ntg = "nt"
    budget = 200000
    prefetch = True
    krot = 17
    nrep = 32
    gearly = 0
    movewq = False
    local = True
    npoll = 1
    x_notail = False
    x_pert = ""
    x_noffn = False
    x_h2plain = False
    dwait = 9
    pfall = 0
    pfslow = True
    pfnt = ""
    pad = 0
O = Opt()

HML  = 0x10000
H3B  = 0x1D0000
H2   = 0x20000
H3A  = 0x60000
H4   = 0x84000
EPOCH = 0xE0000
H1   = 0xE8000
H1G, H2G, HMLG = 0x110000, 0x140000, 0x180000
HX = 0x1C0000
TAGM = 0x3ff
F_TAG, F_Q, CNT_O, F_GOE, F_GOL, F_X, CNT_GU, CNT_S, F_PUB, F_Y, F_K, F_HP = 0, 4, 8, 12, 16, 20, 24, 28, 32, 36, 40, 44
L_TAG = 48
L_Y = 0x80
L_STAT = 0x180
L_LN1, L_Q, L_OP, L_XLN2, L_GUP = 0x200, 0x700, 0xA00, 0x1A00, 0x1F00
GUS = 80
LDS_BYTES = L_GUP + 64*GUS

sX, sK, sV, sWQ, sWO, sBX, sWG, sWU, sWD, sOUT, sDBG, sWS = 4, 6, 8, 10, 12, 14, 16, 18, 20, 22, 24, 26
sJ, sS, sBUD, sTAGM = 28, 29, 30, 31
sT3 = 51
LOG2E = 0x3fb8aa3b
SEL = 4
e = Emitter()
I = e.I
uid = [0]
def L(p):
    uid[0] += 1
    return f"L_{p}_{uid[0]}"
def sp(r): return f"s[{r}:{r+1}]"
def vr(r, n=4): return f"v[{r}:{r+n-1}]"
def br(text):
    e.raw("  " + text); e._advance(1)

def add64(d, b, off):
    I(f"s_add_u32 s{d}, s{b}, {off}")
    I(f"s_addc_u32 s{d+1}, s{b+1}, 0")

def srd(d, base, nrec):
    if d != base: I(f"s_mov_b32 s{d}, s{base}")
    I(f"s_and_b32 s{d+1}, s{base+1}, 0xffff")
    I(f"s_mov_b32 s{d+2}, {nrec}")
    I(f"s_mov_b32 s{d+3}, 0x20000")

def stamp(k):
    if O.diag and (k == 0 or not O.light): I(f"s_memrealtime s[{64+2*k}:{65+2*k}]")

def stamps_dyn():
    I("s_memrealtime s[86:87]")
    I("s_waitcnt lgkmcnt(0)")
    I("s_mov_b64 exec, 1")
    add64(62, sWS, "0x20000000")
    I("s_lshl_b32 s61, s60, 8\ns_add_u32 s61, s61, s2\ns_lshl_b32 s61, s61, 7")
    add64(62, 62, "s61")
    I("v_mov_b32 v2, 0")
    for k in ((0, 11) if O.light else range(12)):
        I(f"v_mov_b32 v4, s{64+2*k}\nv_mov_b32 v5, s{65+2*k}")
        I(f"global_store_dwordx2 v2, v[4:5], s[62:63] offset:{8*k}")
        I("s_nop 1")

def finish(role=None):
    if O.diag:
        I("s_mov_b32 s60, s59")
        stamps_dyn()
    I("s_endpgm")

def budget(done):
    I(f"s_cmp_eq_u32 s{sBUD}, 0")
    br(f"s_cbranch_scc1 {done}")
    I(f"s_sub_u32 s{sBUD}, s{sBUD}, 1")

def lds_spin(addr, val, vt=2, va=3):
    lp, done = L("spin"), L("spun")
    I(f"v_mov_b32 v{va}, {addr}")
    e.settle()
    e.label(lp)
    I(f"ds_read_b32 v{vt}, v{va}")
    budget(done)
    I("s_waitcnt lgkmcnt(0)")
    I(f"v_readfirstlane_b32 s{sT3}, v{vt}")
    I(f"s_cmp_ge_u32 s{sT3}, {val}")
    br(f"s_cbranch_scc0 {lp}")
    e.label(done)
    I("s_waitcnt lgkmcnt(0)")
    e.lgq = []

def lds_set(addr, val=1, vt=2, va=3):
    I(f"v_mov_b32 v{va}, {addr}\nv_mov_b32 v{vt}, {val}")
    I(f"ds_write_b32 v{va}, v{vt}")

def lds_inc(addr, va, vt):
    I(f"v_mov_b32 v{va}, {addr}\nv_mov_b32 v{vt}, 1\ns_mov_b64 exec, 1\nds_add_u32 v{va}, v{vt}\ns_mov_b64 exec, -1")

def check_set(src, dst, n, vt, vtag, mask=TAGM):
    for k in range(n): I(f"v_xor_b32 v{dst+k}, v{src+k}, v{vtag}")
    r = [dst+k for k in range(n)]
    I(f"v_or3_b32 v{vt}, v{r[0]}, v{r[1]}, v{r[2]}")
    q = r[3:]
    while len(q) >= 2:
        I(f"v_or3_b32 v{vt}, v{vt}, v{q[0]}, v{q[1]}"); q = q[2:]
    if q: I(f"v_or_b32 v{vt}, v{vt}, v{q[0]}")
    I(f"v_and_b32 v{vt}, {mask:#x}, v{vt}")
    I(f"v_cmp_ne_u32 vcc, 0, v{vt}")

def pollp(mk, nloads, n, setA, dst, vt, vtag, switch=None, check=None):
    lp, done = L("poll"), L("polled")
    if switch: I(f"s_mov_b32 s57, {O.tries}")
    e.settle(); e.label(lp)
    if switch:
        lk = L("keep")
        I("s_sub_u32 s57, s57, 1"); br(f"s_cbranch_scc0 {lk}")
        switch()
        I("s_mov_b32 s57, 0x7fffffff")
        e.label(lk)
    mk(setA)
    budget(done)
    I("s_waitcnt vmcnt(0)")
    if check: check()
    else: check_set(setA, dst, n, vt, vtag)
    br(f"s_cbranch_vccnz {lp}")
    e.label(done)
    e.vmq = []

def get_tag(v, t):
    lds_spin(F_TAG, 1, t, t+1)
    I(f"v_mov_b32 v{t}, {L_TAG}")
    I(f"ds_read_b32 v{v}, v{t}")
    I(f"s_movk_i32 s{sTAGM}, {TAGM:#x}")
    I("s_waitcnt lgkmcnt(0)")
    I(f"v_and_b32 v{v}, {TAGM:#x}, v{v}")

def tag4(r, vtag):
    for k in range(4): I(f"v_bfi_b32 v{r+k}, s{sTAGM}, v{vtag}, v{r+k}")

def rows_allreduce(op, vs, steps=(8, 4, 2, 1)):
    for k in steps:
        for v in vs: I(f"v_{op}_f32_dpp v{v}, v{v}, v{v} row_ror:{k} row_mask:0xf bank_mask:0xf")

def cross_allreduce(op, vs, ts):
    for sw in ("v_permlane16_swap_b32", "v_permlane32_swap_b32"):
        for v, t in zip(vs, ts): I(f"v_mov_b32 v{t}, v{v}")
        for v, t in zip(vs, ts): I(f"{sw} v{v}, v{t}")
        for v, t in zip(vs, ts): I(f"v_{op}_f32 v{v}, v{v}, v{t}")

def allreduce(op, vs, ts):
    rows_allreduce(op, vs); cross_allreduce(op, vs, ts)

def rscatter4(r):
    I(f"v_permlane32_swap_b32 v{r}, v{r+2}")
    I(f"v_permlane32_swap_b32 v{r+1}, v{r+3}")
    I(f"v_pk_add_f32 v[{r}:{r+1}], v[{r}:{r+1}], v[{r+2}:{r+3}]")
    I(f"v_permlane16_swap_b32 v{r}, v{r+1}")
    I(f"v_add_f32 v{r}, v{r}, v{r+1}")

def gather_rows(src, dst):
    I(f"v_mov_b32 v{dst}, v{src}\nv_mov_b32 v{dst+1}, v{src}")
    I(f"v_permlane16_swap_b32 v{dst}, v{dst+1}")
    I(f"v_mov_b32 v{dst+2}, v{dst}\nv_mov_b32 v{dst+3}, v{dst+1}")
    I(f"v_permlane32_swap_b32 v{dst}, v{dst+2}\nv_permlane32_swap_b32 v{dst+1}, v{dst+3}")

def rne1(v, t):
    I(f"v_cvt_pk_bf16_f32 v{t}, v{v}, v{v}")
    I(f"v_lshlrev_b32 v{v}, 16, v{t}")

def rne2(a, b, t):
    I(f"v_cvt_pk_bf16_f32 v{t}, v{a}, v{b}")
    I(f"v_lshlrev_b32 v{a}, 16, v{t}")
    I(f"v_and_b32 v{b}, 0xffff0000, v{t}")

def pk(op, d, a, b, mods=""):
    I(f"v_pk_{op}_f32 v[{d}:{d+1}], v[{a}:{a+1}], v[{b}:{b+1}] {mods}".rstrip())

def make_sel(t):
    m, b, h, c = t, t+1, t+2, t+3
    I(f"v_and_b32 v{m}, 15, v0")
    I(f"v_lshrrev_b32 v{b}, 3, v{m}")
    I(f"v_mul_u32_u24 v{b}, 0x0202, v{b}")
    I(f"v_add_u32 v{b}, 0x0100, v{b}")
    I(f"v_lshlrev_b32 v{h}, 16, v{b}")
    I(f"v_or_b32 v{h}, 0x0c0c, v{h}")
    I(f"v_or_b32 v{b}, 0x0c0c0000, v{b}")
    I(f"v_and_b32 v{c}, 1, v{m}")
    I(f"v_cmp_eq_u32 vcc, 1, v{c}")
    I(f"v_cndmask_b32 v{b}, v{b}, v{h}, vcc")
    I(f"v_bfe_u32 v{m}, v{m}, 1, 2")
    I(f"v_mov_b32 v{c}, 0x0c0c0c0c")
    for d in range(4):
        I(f"v_cmp_eq_u32 vcc, {d}, v{m}")
        I(f"v_cndmask_b32 v{SEL+d}, v{c}, v{b}, vcc")

MSK = 156
def make_msk():
    I(f"v_mov_b32 v{MSK}, -1")
    for d in (1, 2, 3): I(f"v_perm_b32 v{MSK+d}, v{MSK}, v{MSK}, v{SEL+d}")
    I(f"v_perm_b32 v{MSK}, v{MSK}, v{MSK}, v{SEL}")

def build_m(a, src):
    for d in range(4): I(f"v_and_b32 v{a+d}, v{src}, v{MSK+d}")

def build_a(a, src):
    for d in range(4): I(f"v_perm_b32 v{a+d}, v{src}, v{src}, v{SEL+d}")

def mfma(acc, a, b, first=False):
    c = "0" if first else vr(acc)
    I(f"v_mfma_f32_16x16x32_bf16 {vr(acc)}, {vr(a)}, {vr(b)}, {c}")

def gemv(n, acc, abuf, wreg, src, pre=None, wait=None, bld=None):
    def build(i):
        if pre: pre(i)
        (bld or build_a)(abuf + 4*(i & 1), src(i))
    build(0)
    if n > 1: build(1)
    for i in range(n):
        if wait: wait(i)
        mfma(acc, abuf + 4*(i & 1), wreg(i), first=(i == 0))
        if i + 2 < n: build(i + 2)

def layernorm(f, nA, maskB, t, out):
    n = len(f); f0 = f[0]
    s1, s2, u, w, mm, rr = t, t+1, t+2, t+3, t+4, t+6
    d = t + 8
    I(f"v_readlane_b32 s48, v{f0}, 0")
    I("s_mov_b32 s49, s48")
    for k in range(0, nA, 2): I(f"v_pk_add_f32 v[{d+k}:{d+k+1}], v[{f0+k}:{f0+k+1}], s[48:49] neg_lo:[0,1] neg_hi:[0,1]")
    for k in range(nA, n): I(f"v_mov_b32 v{d+k}, 0")
    I(f"s_mov_b64 exec, {maskB}")
    for k in range(nA, n, 2): I(f"v_pk_add_f32 v[{d+k}:{d+k+1}], v[{f0+k}:{f0+k+1}], s[48:49] neg_lo:[0,1] neg_hi:[0,1]")
    I("s_mov_b64 exec, -1")
    pk("mul", mm, d, d)
    pk("add", rr, d, d+2)
    for k in range(2, n, 2): I(f"v_pk_fma_f32 v[{mm}:{mm+1}], v[{d+k}:{d+k+1}], v[{d+k}:{d+k+1}], v[{mm}:{mm+1}]")
    for k in range(4, n, 2): pk("add", rr, rr, d+k)
    I(f"v_add_f32 v{s2}, v{mm}, v{mm+1}\nv_add_f32 v{s1}, v{rr}, v{rr+1}")
    allreduce("add", [s1, s2], [u, w])
    I(f"v_mul_f32 v{s1}, 0x3ae38e39, v{s1}\nv_mul_f32 v{s2}, 0x3ae38e39, v{s2}")
    I(f"v_fma_f32 v{s2}, -v{s1}, v{s1}, v{s2}")
    I(f"v_add_f32 v{s1}, s48, v{s1}")
    I(f"v_max_f32 v{s2}, 0, v{s2}")
    I(f"v_cvt_pk_bf16_f32 v{u}, v{s1}, v{s2}")
    I(f"v_and_b32 v{s2}, 0xffff0000, v{u}\nv_lshlrev_b32 v{mm}, 16, v{u}")
    I(f"v_add_f32 v{s2}, 0x3727c5ac, v{s2}")
    I(f"v_mov_b32 v{mm+1}, v{mm}")
    rne1(s2, u)
    I(f"v_sqrt_f32 v{s2}, v{s2}")
    for k in range(0, n, 2): I(f"v_pk_add_f32 v[{d+k}:{d+k+1}], v[{f0+k}:{f0+k+1}], v[{mm}:{mm+1}] neg_lo:[0,1] neg_hi:[0,1]")
    rne1(s2, u)
    I(f"v_rcp_f32 v{rr}, v{s2}")
    for k in range(0, n, 2): I(f"v_cvt_pk_bf16_f32 v{f0+k}, v{d+k}, v{d+k+1}")
    I(f"v_mov_b32 v{rr+1}, v{rr}")
    for k in range(0, n, 2):
        I(f"v_lshlrev_b32 v{d+k}, 16, v{f0+k}\nv_and_b32 v{d+k+1}, 0xffff0000, v{f0+k}")
    for k in range(0, n, 2): pk("mul", d+k, d+k, rr)
    for k in range(0, n, 2): I(f"v_cvt_pk_bf16_f32 v{out+k//2}, v{d+k}, v{d+k+1}")

def ids():
    I("s_and_b32 s28, s2, 7\ns_lshl_b32 s28, s28, 1\ns_bfe_u32 s29, s2, 0x10003\ns_add_u32 s28, s28, s29")
    I("s_lshr_b32 s29, s2, 4")
    I(f"s_mov_b32 s{sBUD}, {O.budget}")

def prologue():
    e.raw(f".globl {NAME}\n.p2align 8\n.type {NAME},@function\n{NAME}:")
    I("s_cmp_ge_u32 s2, 256")
    br("s_cbranch_scc1 L_end")
    I("s_load_dwordx16 s[4:19], s[0:1], 0")
    I("s_load_dwordx8 s[20:27], s[0:1], 64")
    I("v_lshrrev_b32 v1, 6, v0")
    I("v_and_b32 v0, 63, v0")
    I("v_readfirstlane_b32 s3, v1")
    if O.pad: I("s_memrealtime s[90:91]")
    if O.diag:
        for k in range(66, 88): I(f"s_mov_b32 s{k}, 0")
        I("s_mov_b32 s59, s3")
    stamp(0)
    I("s_cmp_eq_u32 s3, 8"); br("s_cbranch_scc1 L_C")
    I("s_cmp_ge_u32 s3, 6"); br("s_cbranch_scc1 L_T")
    I("s_cmp_eq_u32 s3, 1"); br("s_cbranch_scc1 L_T")
    I("s_cmp_ge_u32 s3, 2"); br("s_cbranch_scc1 L_A")

def merge_tile(t, DA, S0):
    d0, d1 = DA + 8*(t & 1), DA + 8*(t & 1) + 4
    for h in range(2):
        I(f"v_cndmask_b32 v{d0+h}, v{d0+h}, v{d1+h}, s[56:57]")
        I(f"v_cndmask_b32 v{d0+2+h}, v{d1+2+h}, v{d0+2+h}, s[56:57]")
    for h in range(2):
        I(f"v_add_f32_dpp v{S0+h}, v{d0+2+h}, v{d0+h} quad_perm:[1,0,3,2] row_mask:{1<<t:#x} bank_mask:0xf")

def role_A():
    KB, VB = 40, 104
    def KR(t, ee, l): return KB + 4*(4*t + 2*ee + l)
    def VR(i): return VB + 4*i
    QA, DA, S0, S1, P = 8, 16, 32, 33, 34
    QADDR, OADDR, HOFF = 35, 36, 37
    e.label("L_A")
    I("s_setprio 2")
    ids()
    I("s_sub_u32 s3, s3, 2")
    I("v_bfe_u32 v8, v0, 1, 3\nv_lshlrev_b32 v8, 8, v8")
    I("v_lshrrev_b32 v9, 4, v0")
    I("v_and_b32 v10, 1, v0")
    I("v_lshl_add_u32 v11, v9, 1, v10\nv_lshl_add_u32 v1, v11, 4, v8")
    I("s_lshl_b32 s49, s3, 4\ns_add_u32 s49, s49, s29")
    I(f"s_lshl_b32 s48, s28, 24\ns_add_u32 s48, s48, {61440*256}")
    I("v_xor_b32 v10, 1, v10\nv_lshl_add_u32 v11, v9, 1, v10\nv_lshl_add_u32 v2, v11, 4, v8")
    I("s_lshl_b32 s40, s49, 11")
    def grp(k): I(f"s_add_u32 s50, s49, {O.krot*k}\ns_and_b32 s50, s50, 63\ns_add_u32 s50, s50, {64*k}\ns_lshl_b32 s{40+k}, s50, 11")
    for k in range(1, 8): grp(k)
    I("s_waitcnt lgkmcnt(0)")
    if O.diag3: stamp(9)
    add64(32, sK, "s48"); srd(32, 32, 0x100000)
    I("s_barrier")
    if O.diag3: stamp(10)
    seq = [("K", k) for k in range(16)] + [("V", i) for i in range(16)]
    def issue(n):
        kind, k = seq[n]
        if kind == "K":
            t, ee, l = k >> 2, (k >> 1) & 1, k & 1
            e.vm(f"buffer_load_dwordx4 {vr(KR(t,ee,l))}, v{1+ee}, s[32:35], s{40+2*t+ee} offen offset:{l*128} {O.nt}", ("K", k))
        else:
            e.vm(f"buffer_load_dwordx4 {vr(VR(k))}, v{(3, 31)[k & 1]}, s[36:39], 0 offen offset:{256*(k>>1)} {O.nt}", ("V", k))
            for idx, flag in ((O.iwo, F_GOE), (O.igo, F_GOL)):
                if k == idx: lds_inc(flag, 38, 39)
        if n == O.iq: lds_inc(F_K, 38, 39)
    for n in range(O.win): issue(n)
    stamp(1)
    for p_, vd in ((0, 3), (1, 31)):
        I(f"v_mov_b32 v{vd}, s{40+p_}")
        for g in range(1, 4):
            I(f"v_cmp_eq_u32 vcc, {g}, v9\nv_mov_b32 v11, s{40+2*g+p_}\nv_cndmask_b32 v{vd}, v{vd}, v11, vcc")
        I(f"v_and_b32 v10, 15, v0\nv_lshl_add_u32 v{vd}, v10, 4, v{vd}")
    add64(36, sV, "s48"); srd(36, 36, 0x100000)
    make_sel(20)
    I(f"v_and_b32 v20, 1, v0\nv_lshlrev_b32 v20, 8, v20")
    I("v_bfe_u32 v21, v0, 1, 1\nv_lshl_add_u32 v21, v9, 1, v21")
    I(f"v_lshl_add_u32 v{QADDR}, v21, 4, v20")
    I("s_mov_b32 s56, 0xaaaaaaaa\ns_mov_b32 s57, 0xaaaaaaaa")
    I("v_and_b32 v20, 15, v0\nv_lshlrev_b32 v20, 1, v20\nv_and_b32 v21, 1, v9\nv_add_u32 v20, v20, v21")
    I("v_lshrrev_b32 v21, 1, v9\nv_lshl_add_u32 v20, v21, 5, v20")
    I(f"s_lshl_b32 s49, s3, 10\ns_add_u32 s49, s49, {L_OP}\nv_lshl_add_u32 v{OADDR}, v20, 4, s49")
    I(f"v_lshlrev_b32 v20, 12, v9\nv_and_b32 v21, 15, v0\nv_lshl_add_u32 v{HOFF}, v21, 4, v20")
    I(f"s_lshl_b32 s49, s28, 14\ns_lshl_b32 s50, s29, 8\ns_add_u32 s49, s49, s50\ns_add_u32 s49, s49, {H2 if O.local else H2G}")
    add64(52, sWS, "s49")
    I(f"s_lshl_b32 s49, s28, 10\ns_lshl_b32 s50, s29, 4\ns_add_u32 s49, s49, s50\ns_add_u32 s49, s49, {HML if O.local else HMLG}")
    add64(54, sWS, "s49")
    nxt = O.win
    while nxt < 32:
        e.vm_wait_n(O.win - 1); issue(nxt); nxt += 1
    stamp(2)
    lds_spin(F_Q, 1, 38, 39)
    stamp(3)
    I(f"v_mov_b32 v38, {L_TAG}\nds_read_b32 v39, v38\ns_movk_i32 s{sTAGM}, {TAGM:#x}")
    e.lg(f"ds_read_b128 {vr(QA)}, v{QADDR} offset:{L_Q}", "qa0")
    e.lg(f"ds_read_b128 {vr(QA+4)}, v{QADDR} offset:{L_Q+128}", "qa1")
    e.vm_wait(("K", 15))
    e.lg_all()
    I(f"v_and_b32 v39, {TAGM:#x}, v39")
    for t in range(4):
        d0, d1 = DA + 8*(t & 1), DA + 8*(t & 1) + 4
        for ee, d in ((0, d0), (1, d1)): mfma(d, QA, KR(t, ee, 0), first=True)
        for ee, d in ((0, d0), (1, d1)): mfma(d, QA+4, KR(t, ee, 1))
        if t == 0: I("v_readfirstlane_b32 s58, v39")
        if t >= 1: merge_tile(t-1, DA, S0)
    merge_tile(3, DA, S0)
    rne2(S0, S1, 20)
    I(f"v_mul_f32 v{S0}, 0x3db504f3, v{S0}\nv_mul_f32 v{S1}, 0x3db504f3, v{S1}")
    rne2(S0, S1, 20)
    M0, L0, M1, L1 = 24, 25, 26, 27
    I(f"v_mov_b32 v{M0}, v{S0}\nv_mov_b32 v{M1}, v{S1}")
    allreduce("max", [M0, M1], [20, 21])
    I(f"v_sub_f32 v{S0}, v{S0}, v{M0}\nv_sub_f32 v{S1}, v{S1}, v{M1}")
    I(f"v_mul_f32 v{S0}, {LOG2E:#x}, v{S0}\nv_mul_f32 v{S1}, {LOG2E:#x}, v{S1}")
    I(f"v_exp_f32 v{L0}, v{S0}\nv_exp_f32 v{L1}, v{S1}")
    I(f"v_cvt_pk_bf16_f32 v{P}, v{L0}, v{L1}")
    stamp(4)
    ACC = 16
    def bld(i):
        I(f"v_mov_b32_dpp v{20+(i&1)}, v{P} row_newbcast:{i} row_mask:0xf bank_mask:0xf")
        build_a(QA + 4*(i & 1), 20 + (i & 1))
    def pv(i):
        e.vm_wait(("V", i))
        mfma(ACC, QA + 4*(i & 1), VR(i), first=(i == 0))
        if i + 2 < 16: bld(i + 2)
    bld(0); bld(1)
    for i in range(4): pv(i)
    allreduce("add", [L0, L1], [22, 23])
    I(f"s_lshl_b32 s48, s3, 4\ns_add_u32 s48, s48, {L_STAT}\nv_mov_b32 v22, s48")
    I("s_mov_b64 exec, 1")
    e.lg(f"ds_write_b128 v22, {vr(M0)}", "st")
    I(f"v_mov_b32 v22, {CNT_S}\nv_mov_b32 v23, 1")
    e.lg_wait("st")
    I("ds_add_u32 v22, v23")
    I("s_mov_b64 exec, -1")
    for i in range(4, 8): pv(i)
    lds_spin(CNT_S, 4, 22, 23)
    I(f"v_mov_b32 v22, {L_STAT}")
    ST = 40
    for w in range(4): e.lg(f"ds_read_b128 {vr(ST+4*w)}, v22 offset:{16*w}", ("sw", w))
    e.lg_wait(("sw", 3))
    GM0, GM1, GL0, GL1, F = 56, 57, 58, 59, 60
    I(f"v_max3_f32 v{GM0}, v{ST}, v{ST+4}, v{ST+8}\nv_max3_f32 v{GM1}, v{ST+2}, v{ST+6}, v{ST+10}")
    I(f"v_max_f32 v{GM0}, v{GM0}, v{ST+12}\nv_max_f32 v{GM1}, v{GM1}, v{ST+14}")
    for w in range(4): I(f"v_sub_f32 v{ST+4*w}, v{ST+4*w}, v{GM0}\nv_sub_f32 v{ST+4*w+2}, v{ST+4*w+2}, v{GM1}")
    for w in range(4): I(f"v_mul_f32 v{ST+4*w}, {LOG2E:#x}, v{ST+4*w}\nv_mul_f32 v{ST+4*w+2}, {LOG2E:#x}, v{ST+4*w+2}")
    for w in range(4): I(f"v_exp_f32 v{ST+4*w}, v{ST+4*w}\nv_exp_f32 v{ST+4*w+2}, v{ST+4*w+2}")
    I(f"v_sub_f32 v{M0}, v{M0}, v{GM0}\nv_sub_f32 v{M1}, v{M1}, v{GM1}")
    I(f"v_mul_f32 v{GL0}, v{ST}, v{ST+1}\nv_mul_f32 v{GL1}, v{ST+2}, v{ST+3}")
    I(f"v_mul_f32 v{M0}, {LOG2E:#x}, v{M0}\nv_mul_f32 v{M1}, {LOG2E:#x}, v{M1}")
    for w in range(1, 4): I(f"v_fmac_f32 v{GL0}, v{ST+4*w}, v{ST+4*w+1}\nv_fmac_f32 v{GL1}, v{ST+4*w+2}, v{ST+4*w+3}")
    I(f"v_exp_f32 v{M0}, v{M0}\nv_exp_f32 v{M1}, v{M1}")
    I("s_mov_b32 s48, 0\ns_mov_b32 s49, -1\ns_mov_b32 s50, 0xc\ns_mov_b32 s51, 0")
    I(f"v_cndmask_b32 v{F}, v{M0}, v{M1}, s[48:49]")
    ML = 64
    I(f"v_cndmask_b32 v{ML}, v{GM0}, v{GM1}, s[50:51]\nv_cndmask_b32 v{ML+1}, v{GL0}, v{GL1}, s[50:51]")
    I(f"v_mov_b32 v{ML+8}, s58")
    I(f"v_mov_b32 v{ML+2}, 0\nv_mov_b32 v{ML+3}, 0\nv_lshlrev_b32 v{ML+4}, 8, v0")
    tag4(ML, ML+8)
    I(f"v_mov_b32 v{ML+5}, {CNT_O}\nv_mov_b32 v{ML+6}, 1\nv_lshlrev_b32 v{ML+7}, 4, v0")
    I(f"v_mov_b32 v{F+1}, v{F}")
    for i in range(8, 16): pv(i)
    stamp(5)
    pk("mul", ACC, ACC, F); pk("mul", ACC+2, ACC+2, F)
    e.lg(f"ds_write_b128 v{OADDR}, {vr(ACC)}", "op")
    I("s_mov_b64 exec, 1")
    e.lg_wait("op")
    e.lg(f"ds_add_rtn_u32 v{ML+6}, v{ML+5}, v{ML+6}", "cnt")
    e.lg_wait("cnt")
    I(f"v_readfirstlane_b32 s48, v{ML+6}")
    I("s_mov_b64 exec, -1")
    I("s_cmp_eq_u32 s48, 3")
    br("s_cbranch_scc0 L_A_done")
    for w in range(4): e.lg(f"ds_read_b128 {vr(40+4*w)}, v{ML+7} offset:{L_OP+1024*w}", ("o", w))
    e.lg_wait(("o", 1))
    pk("add", 40, 40, 44); pk("add", 42, 42, 46)
    e.lg_wait(("o", 3))
    pk("add", 48, 48, 52); pk("add", 50, 50, 54)
    pk("add", 40, 40, 48); pk("add", 42, 42, 50)
    tag4(40, ML+8)
    if O.local:
        I(f"global_store_dwordx4 v{HOFF}, {vr(40)}, s[52:53]")
        I("s_mov_b64 exec, 0xf")
        I(f"global_store_dwordx4 v{ML+4}, {vr(ML)}, s[54:55]")
        I("s_mov_b64 exec, -1")
        add64(52, 52, H2G - H2); add64(54, 54, HMLG - HML)
    I(f"global_store_dwordx4 v{HOFF}, {vr(40)}, s[52:53] sc1")
    I("s_mov_b64 exec, 0xf")
    I(f"global_store_dwordx4 v{ML+4}, {vr(ML)}, s[54:55] sc1")
    I("s_mov_b64 exec, -1")
    lds_set(F_HP, 1, 38, 39)
    e.settle()
    e.label("L_A_done")
    stamp(6)
    if not O.x_notail:
        if O.pfslow:
            I("s_cmp_ge_u32 s29, 13"); br("s_cbranch_scc1 L_A_pf")
        I("s_cmp_lt_u32 s29, 9")
        br("s_cbranch_scc0 L_A_end")
        I("s_add_u32 s3, s3, 4")
        lds_spin(F_HP, 1, 38, 39)
        e.branch("s_branch L_FFN")
        if O.pfslow:
            e.label("L_A_pf")
            I("s_lshr_b32 s48, s28, 1")
            I("s_sub_u32 s49, 3, s48\ns_and_b32 s49, s49, 7")
            I("s_mul_i32 s50, s48, 9\ns_add_u32 s50, s50, s49\ns_lshl_b32 s50, s50, 7")
            I("s_and_b32 s51, s28, 1\ns_mul_i32 s51, s51, 3\ns_add_u32 s51, s51, s29\ns_sub_u32 s51, s51, 13\ns_lshl_b32 s51, s51, 2\ns_add_u32 s51, s51, s3")
            I("s_mul_i32 s51, s51, 24*9216\ns_add_u32 s50, s50, s51")
            I("v_lshrrev_b32 v8, 3, v0\nv_mul_u32_u24 v8, 9216, v8\nv_and_b32 v9, 7, v0\nv_lshl_add_u32 v8, v9, 4, v8")
            I(f"s_mov_b32 s32, s{sWG}"); srd(32, sWG, 576*9216)
            I(f"s_mov_b32 s36, s{sWU}"); srd(36, sWU, 576*9216)
            lds_spin(F_HP, 1, 38, 39)
            def six():
                for i in range(3):
                    I(f"s_add_u32 s51, s50, {8*9216*i}")
                    I(f"buffer_load_dwordx4 {vr(40+8*i)}, v8, s[32:35], s51 offen {O.pfnt}")
                    I(f"buffer_load_dwordx4 {vr(44+8*i)}, v8, s[36:39], s51 offen {O.pfnt}")
            six()
            lp2 = L("pf2")
            I("s_cmp_eq_u32 s48, 3"); br(f"s_cbranch_scc0 {lp2}")
            I("s_add_u32 s50, s50, 8*128")
            six()
            e.label(lp2)
            if O.pfall:
                nr = 8*O.pfall
                I("s_and_b32 s51, s28, 1\ns_mul_i32 s51, s51, 3\ns_add_u32 s51, s51, s29\ns_sub_u32 s51, s51, 13\ns_lshl_b32 s51, s51, 2\ns_add_u32 s51, s51, s3")
                I(f"s_and_b32 s50, s51, 7\ns_mul_i32 s50, s50, 72\ns_add_u32 s50, s50, {72-nr}")
                I(f"s_lshr_b32 s51, s51, 3\ns_mul_i32 s51, s51, {nr//3 if nr % 3 == 0 else (nr+2)//3}\ns_add_u32 s50, s50, s51")
                I("s_mul_i32 s50, s50, 9216\ns_mul_i32 s51, s48, 1152\ns_add_u32 s50, s50, s51")
                I("v_lshlrev_b32 v9, 4, v0")
                n3 = nr//3 if nr % 3 == 0 else (nr+2)//3
                for r in range(n3):
                    I(f"s_add_u32 s51, s50, {9216*r}")
                    I(f"buffer_load_dwordx4 {vr(40+8*(r&3))}, v9, s[32:35], s51 offen {O.pfnt}")
                    I(f"buffer_load_dwordx4 {vr(44+8*(r&3))}, v9, s[36:39], s51 offen {O.pfnt}")
                for r in range(0, n3, 8):
                    I(f"s_add_u32 s51, s50, {9216*r + 1024}")
                    I(f"buffer_load_dwordx4 {vr(72)}, v8, s[32:35], s51 offen {O.pfnt}")
                    I(f"buffer_load_dwordx4 {vr(76)}, v8, s[36:39], s51 offen {O.pfnt}")
    e.label("L_A_end")
    finish()

def half_combine(acc, t):
    for r in range(4): I(f"v_mov_b32 v{t+r}, v{acc+r}")
    for r in range(4): I(f"v_permlane32_swap_b32 v{acc+r}, v{t+r}")
    for r in range(4): I(f"v_add_f32_dpp v{acc+r}, v{t+r}, v{acc+r} row_ror:8 row_mask:0xf bank_mask:0xf")

def role_T0_head():
    WB = 32
    I("s_setprio 3")
    ids()
    I("s_mov_b32 s58, s29\ns_mov_b32 s57, 0")
    if O.movewq:
        I("s_sub_u32 s48, s29, 9\ns_cmp_lt_u32 s48, 4"); br("s_cbranch_scc1 L_T0_skip")
    e.label("L_head")
    I("v_lshlrev_b32 v1, 4, v0")
    I("v_lshrrev_b32 v16, 4, v0\nv_bfe_u32 v17, v0, 3, 1")
    I("v_and_b32 v18, 7, v0\nv_lshlrev_b32 v18, 4, v18")
    I("v_lshl_add_u32 v19, v16, 3, v17\nv_lshl_add_u32 v2, v19, 13, v18")
    I("v_lshl_add_u32 v19, v16, 2, v17\nv_lshl_add_u32 v3, v19, 13, v18")
    I("s_lshr_b32 s48, s58, 2\ns_mul_i32 s49, s48, 0x120000\ns_and_b32 s50, s58, 3\ns_lshl_b32 s50, s50, 7\ns_add_u32 s49, s49, s50")
    I("s_lshl_b32 s50, s28, 9\ns_add_u32 s49, s49, s50")
    if O.diag3: stamp(5)
    I("s_waitcnt lgkmcnt(0)")
    if O.diag3: stamp(6)
    srd(32, sX, 1152)
    e.vm(f"buffer_load_dwordx4 {vr(8)}, v1, s[32:35], 0 offen", "xa")
    e.vm(f"buffer_load_dwordx4 {vr(12)}, v1, s[32:35], 0 offen offset:1024", "xb")
    add64(36, sWQ, "s49"); srd(36, 36, 144*8192)
    steps = [(2, (32*Ig + 2*ii)*8192) for Ig in range(4) for ii in range(4)] + [(3, 128*8192), (3, 130*8192)]
    for k, (vo, so) in enumerate(steps):
        if so: I(f"s_mov_b32 s50, {so}")
        e.vm(f"buffer_load_dwordx4 {vr(WB+4*k)}, v{vo}, s[36:39], {'s50' if so else '0'} offen {O.nt}", ("wq", k))
    I("s_barrier")
    stamp(1)
    make_sel(104)
    I("v_lshrrev_b32 v104, 4, v0\nv_lshlrev_b32 v105, 4, v104\nv_lshlrev_b32 v106, 3, v104")
    I(f"s_mul_i32 s50, s48, 288\ns_add_u32 s50, s50, {L_LN1}")
    I("v_add_u32 v150, s50, v105\nv_add_u32 v151, s50, v106")
    I("v_and_b32 v152, 7, v0\nv_lshlrev_b32 v152, 1, v152\nv_add_u32 v152, v152, v104\nv_lshlrev_b32 v152, 4, v152")
    I("s_lshl_b32 s49, s28, 13\ns_lshl_b32 s50, s48, 11\ns_add_u32 s49, s49, s50\ns_and_b32 s50, s58, 3\ns_lshl_b32 s50, s50, 8\ns_add_u32 s49, s49, s50")
    I(f"s_add_u32 s49, s49, {H1G}")
    add64(44, sWS, "s49")
    e.vm_wait("xb")
    for half, base in ((0, 8), (1, 12)):
        for d in range(4):
            I(f"v_lshlrev_b32 v{16+8*half+2*d}, 16, v{base+d}")
            I(f"v_and_b32 v{17+8*half+2*d}, 0xffff0000, v{base+d}")
    layernorm(list(range(16, 32)), 8, "0xff", 104, 8)
    e.lg(f"ds_write_b128 v1, {vr(8)} offset:{L_LN1}", "ln")
    I("s_mov_b64 exec, 0xff")
    e.lg(f"ds_write_b128 v1, {vr(12)} offset:{L_LN1+1024}", "ln2")
    I("s_mov_b64 exec, -1")
    e.lg_all()
    for Ig in range(4): e.lg(f"ds_read_b128 {vr(108+4*Ig)}, v150 offset:{64*Ig}", ("pk", Ig))
    e.lg(f"ds_read_b64 v[124:125], v151 offset:256", ("pk", 4))
    stamp(2)
    ACC = 16
    gemv(18, ACC, 20, lambda k: WB + 4*k, lambda k: 108 + k,
         pre=lambda k: e.lg_wait(("pk", k >> 2)) if (k & 3) == 0 else None,
         wait=lambda k: e.vm_wait(("wq", k)))
    stamp(3)
    get_tag_full = True
    lds_spin(F_TAG, 1, 28, 29)
    I(f"v_mov_b32 v28, {L_TAG}\nds_read_b32 v30, v28")
    half_combine(ACC, 20)
    I("s_waitcnt lgkmcnt(0)")
    I(f"v_mov_b32 v28, v{ACC}\nv_mov_b32 v29, v{ACC+1}\nv_mov_b32 v31, v30")
    I(f"v_mov_b32 v20, v{ACC+2}\nv_mov_b32 v21, v{ACC+3}\nv_mov_b32 v22, v30\nv_mov_b32 v23, v30")
    I("s_mov_b32 exec_lo, 0x00ff00ff\ns_mov_b32 exec_hi, 0")
    I(f"global_store_dwordx4 v152, v[28:31], s[44:45] sc1")
    I(f"global_store_dwordx4 v152, v[20:23], s[44:45] offset:1024 sc1")
    I("s_mov_b64 exec, -1")
    stamp(4)
    I("s_cmp_eq_u32 s57, 1"); br("s_cbranch_scc1 L_T_exit")
    I("s_mov_b32 s3, 0")
    e.branch("s_branch L_Tail")
    if O.movewq:
        e.label("L_T0_skip")
        I("s_waitcnt lgkmcnt(0)")
        I("s_barrier")
        make_sel(8)
        I("s_mov_b32 s3, 0")
        e.branch("s_branch L_Tail")
    e.label("L_T_exit")
    finish()

def role_C():
    e.comment("===== wave 1: launch tag, gathers")
    e.label("L_C")
    I("s_setprio 3")
    I("v_lshlrev_b32 v2, 2, v0\nv_mov_b32 v3, 0")
    I("ds_write_b32 v2, v3")
    ids()
    I("s_waitcnt lgkmcnt(0)")
    I("s_barrier")
    add64(34, sWS, EPOCH)
    I("s_load_dword s56, s[34:35], 0")
    I("v_lshlrev_b32 v1, 4, v0")
    if O.prefetch:
        lp = L("pc")
        I("s_getpc_b64 s[32:33]")
        e.label(lp)
        I(f"s_sub_u32 s32, s32, {lp}-{NAME}\ns_subb_u32 s33, s33, 0")
        I("s_lshr_b32 s48, s2, 3\ns_and_b32 s48, s48, PF_MASK\ns_lshl_b32 s48, s48, 10")
        I("v_add_u32 v2, s48, v1\nv_min_u32 v2, CODE_BYTES-16, v2")
        I("global_load_dwordx4 v[16:19], v2, s[32:33]")
    stamp(1)
    I("s_waitcnt lgkmcnt(0)")
    I("s_add_u32 s56, s56, 1")
    I(f"v_mov_b32 v40, s56")
    I(f"v_mov_b32 v3, {L_TAG}\nds_write_b32 v3, v40\ns_waitcnt lgkmcnt(0)")
    lds_set(F_TAG, 1, 2, 3)
    stamp(2)
    if O.local:
        I("s_getreg_b32 s61, hwreg(HW_REG_XCC_ID)\ns_and_b32 s61, s61, 15")
        I(f"s_lshl_b32 s48, s28, 8\ns_add_u32 s48, s48, {HX}"); add64(36, sWS, "s48")
        I("v_mov_b32 v41, s61\nv_mov_b32 v42, v40\nv_mov_b32 v43, s61")
        I("s_lshl_b32 s48, s29, 4\nv_mov_b32 v2, s48\ns_mov_b64 exec, 1")
        I("global_store_dwordx4 v2, v[40:43], s[36:37] sc1")
        I("s_mov_b64 exec, -1")
    stamp(4)
    I(f"s_lshl_b32 s48, s28, 13\ns_add_u32 s48, s48, {H1G}"); add64(32, sWS, "s48")
    add64(34, 32, 4096)
    lds_spin(F_K, O.nq, 2, 3)
    def mk(b):
        for k in range(8): I(f"global_load_dwordx4 {vr(b+4*k)}, v1, s[{32+2*(k>>2)}:{33+2*(k>>2)}] offset:{1024*(k&3)} sc1")
    def chk():
        I("v_xor_b32 v8, v46, v40")
        for k in range(8):
            for x in ((47,) if k == 0 else (46+4*k, 47+4*k)): I(f"v_bitop3_b32 v8, v8, v{x}, v40 bitop3:0xf6")
        I("v_cmp_ne_u32 vcc, 0, v8")
    pollp(mk, 8, 32, 44, 0, 8, 40, check=chk)
    I("s_waitcnt vmcnt(0)")
    for half in range(2):
        pk("add", 16+2*half, 44+4*half, 52+4*half)
        pk("add", 20+2*half, 60+4*half, 68+4*half)
    pk("add", 16, 16, 20); pk("add", 18, 18, 22)
    I("v_cvt_pk_bf16_f32 v8, v16, v17\nv_cvt_pk_bf16_f32 v9, v18, v19")
    I("v_lshlrev_b32 v2, 3, v0")
    I(f"ds_write_b64 v2, v[8:9] offset:{L_Q}")
    I("s_waitcnt lgkmcnt(0)")
    lds_set(F_Q, 1, 2, 3)
    stamp(3)
    I(f"v_and_b32 v15, {TAGM:#x}, v40")
    if O.x_notail: e.branch("s_branch L_C_done")
    I("s_cmp_ge_u32 s29, 13"); br("s_cbranch_scc1 L_C_done")
    I("s_cmp_ge_u32 s29, 9"); br("s_cbranch_scc1 L_WO_C")
    e.branch("s_branch L_FFN_C")
    e.label("L_C_done")
    finish()

def role_T():
    e.comment("===== waves 6..9 (tail index 1..4) and wave 0 after its q slice")
    e.label("L_T")
    ids()
    I("s_cmp_eq_u32 s3, 1\ns_cselect_b32 s3, 8, s3\ns_sub_u32 s3, s3, 5")
    if O.movewq:
        ln = L("nohelp")
        I("s_sub_u32 s48, s29, 13\ns_cmp_lt_u32 s48, 2"); br(f"s_cbranch_scc0 {ln}")
        I("s_sub_u32 s49, s3, 1\ns_cmp_lt_u32 s49, 2"); br(f"s_cbranch_scc0 {ln}")
        I("s_lshl_b32 s48, s48, 1\ns_add_u32 s58, s48, s49\ns_add_u32 s58, s58, 9\ns_mov_b32 s57, 1\ns_setprio 3")
        e.branch("s_branch L_head")
        e.label(ln)
    I("s_waitcnt lgkmcnt(0)")
    I("s_barrier")
    make_sel(8)
    e.label("L_Tail")
    if O.x_notail: finish()
    I("s_setprio 0")
    I("s_cmp_ge_u32 s29, 13"); br("s_cbranch_scc1 L_RED")
    I("s_cmp_ge_u32 s29, 9"); br("s_cbranch_scc1 L_WO")
    if O.gearly: lds_spin(F_GOL, O.ngo, 8, 9)
    elif O.igo == 99: lds_spin(F_HP, 1, 8, 9)
    else: lds_spin(F_GOL, O.ngo, 8, 9)
    e.branch("s_branch L_FFN")

def main_voff(v, rowstride, t):
    I(f"v_lshrrev_b32 v{t}, 4, v0\nv_mul_u32_u24 v{t}, {rowstride}, v{t}\nv_and_b32 v{t+1}, 15, v0\nv_lshl_add_u32 v{v}, v{t+1}, 4, v{t}")
    I(f"s_lshl_b32 s48, s3, 8\nv_add_u32 v{v}, s48, v{v}")

def extra_voff(v, rowstride, t):
    I(f"v_lshrrev_b32 v{t}, 4, v0\nv_bfe_u32 v{t+1}, v0, 3, 1\nv_lshl_add_u32 v{t}, v{t+1}, 2, v{t}\nv_mul_u32_u24 v{t}, {rowstride}, v{t}")
    I(f"v_and_b32 v{t+1}, 7, v0\nv_lshl_add_u32 v{v}, v{t+1}, 4, v{t}\nv_add_u32 v{v}, 1024, v{v}")

def publish_addr(region, stride, prod_sgpr, t):
    I(f"v_and_b32 v{t}, 15, v0\ns_lshl_b32 s48, s3, 4\nv_add_u32 v{t}, s48, v{t}")
    I(f"v_mul_u32_u24 v{t}, {stride}, v{t}")
    I(f"v_lshrrev_b32 v{t+1}, 4, v0\nv_lshl_add_u32 v{t}, v{t+1}, 4, v{t}")
    I(f"s_lshl_b32 s48, s{prod_sgpr}, 5\ns_add_u32 s48, s48, {region}")
    add64(44, sWS, "s48")

def publish_main(acc, vaddr, vtag):
    I("s_mov_b32 exec_hi, 0")
    tag4(acc, vtag)
    I(f"global_store_dwordx4 v{vaddr}, {vr(acc)}, s[44:45] sc1")
    I("s_mov_b32 exec_hi, -1")

def publish_extra(acc, vaddr, vtag, stride):
    I("s_mov_b32 exec_lo, 0x00ff00ff\ns_mov_b32 exec_hi, 0")
    add64(44, 44, 64*stride)
    tag4(acc, vtag)
    I(f"global_store_dwordx4 v{vaddr}, {vr(acc)}, s[44:45] sc1")
    I("s_mov_b64 exec, -1")

def role_WO():
    WB, WX = 92, 60
    e.label("L_WO")
    main_voff(1, 1152, 8)
    extra_voff(2, 1152, 8)
    I("s_lshl_b32 s48, s28, 2\ns_add_u32 s48, s48, s29\ns_sub_u32 s52, s48, 9")
    I("s_mul_i32 s48, s52, 73728")
    add64(32, sWO, "s48"); srd(32, 32, 64*1152)
    publish_addr(H3A, 2048, 52, 8)
    get_tag(12, 10)
    make_msk()
    I(f"v_lshrrev_b32 v9, 4, v0\nv_lshlrev_b32 v9, 6, v9")
    I("s_mov_b32 s47, 0xffff")
    if O.iwo == 99: lds_spin(F_HP, 1, 10, 11)
    else: lds_spin(F_GOE, O.nwo, 10, 11)
    stamp(5)
    for i in range(16):
        if i: I(f"s_mov_b32 s48, {4608*i}")
        I(f"buffer_load_dwordx4 {vr(WB+4*i)}, v1, s[32:35], {'s48' if i else '0'} offen {O.nt}")
    ln = L("wonx")
    I("s_cmp_eq_u32 s3, 0"); br(f"s_cbranch_scc0 {ln}")
    for i in range(8):
        if i: I(f"s_mov_b32 s48, {9216*i}")
        I(f"buffer_load_dwordx4 {vr(WX+4*i)}, v2, s[32:35], {'s48' if i else '0'} offen {O.nt}")
    e.label(ln)
    Y, ACC = 32, 28
    I("s_setprio 3")
    I("s_waitcnt vmcnt(0)")
    stamp(6)
    I("s_barrier")
    stamp(7)
    e.lgq = []
    for q in range(4): e.lg(f"ds_read_b128 {vr(Y+4*q)}, v9 offset:{L_Y+16*q}", ("y", q))
    gemv(16, ACC, 16, lambda i: WB + 4*i, lambda i: Y + i, pre=lambda i: e.lg_wait(("y", i >> 2)) if (i & 3) == 0 else None, bld=build_m)
    publish_main(ACC, 8, 12)
    I("s_cmp_eq_u32 s3, 0"); br("s_cbranch_scc0 L_WO_done")
    AC2 = 48
    gemv(8, AC2, 16, lambda i: WX + 4*i, lambda i: 24 + (i & 1), pre=lambda i: I(f"v_bfi_b32 v{24+(i&1)}, s47, v{Y+2*i}, v{Y+2*i+1}"))
    half_combine(AC2, 20)
    publish_extra(AC2, 8, 12, 2048)
    e.label("L_WO_done")
    finish()

def role_WO_C():
    e.label("L_WO_C")
    I("s_lshl_b32 s48, s28, 2\ns_add_u32 s48, s48, s29\ns_sub_u32 s52, s48, 9")
    I("s_add_u32 s53, s52, 48")
    red_setup()
    I("s_mov_b32 s62, 0")
    if O.local:
        I(f"s_lshl_b32 s48, s28, 8\ns_add_u32 s48, s48, {HX}"); add64(36, sWS, "s48")
        lp, dn = L("xp"), L("xpd")
        I("s_mov_b64 exec, 0xffff")
        e.settle(); e.label(lp)
        I("global_load_dwordx4 v[16:19], v1, s[36:37] sc1")
        budget(dn)
        I("s_waitcnt vmcnt(0)")
        I("v_xor_b32 v8, v16, v40")
        I("v_bitop3_b32 v8, v8, v18, v40 bitop3:0xf6")
        I("v_cmp_ne_u32 vcc, 0, v8"); br(f"s_cbranch_vccnz {lp}")
        e.label(dn)
        I("s_waitcnt vmcnt(0)")
        I("v_cmp_ne_u32 vcc, s61, v17")
        I("s_cmp_eq_u64 vcc, 0\ns_cselect_b32 s62, 1, 0\ns_mov_b64 exec, -1")
    I(f"s_mov_b32 s48, {H2}\ns_mov_b32 s49, {H2G}\ns_cmp_eq_u32 s62, 1\ns_cselect_b32 s49, s48, s49")
    I(f"s_lshl_b32 s48, s52, 12\ns_add_u32 s48, s48, s49"); add64(36, sWS, "s48")
    I(f"s_mov_b32 s48, {HML}\ns_mov_b32 s49, {HMLG}\ns_cmp_eq_u32 s62, 1\ns_cselect_b32 s49, s48, s49")
    I(f"s_lshl_b32 s48, s52, 8\ns_add_u32 s48, s48, s49"); add64(38, sWS, "s48")
    I("v_and_b32 v3, 3, v0\nv_lshlrev_b32 v3, 2, v3\nv_lshrrev_b32 v9, 4, v0\nv_add_u32 v3, v3, v9\nv_lshlrev_b32 v3, 4, v3")
    I(f"v_lshlrev_b32 v12, 2, v0")
    lds_spin(F_HP, 1, 10, 11)
    I("s_waitcnt vmcnt(0)")
    I(f"v_lshlrev_b32 v{RX}, 16, v{RX}")
    stamp(5)
    def mk(b):
        for k in range(4): I(f"global_load_dwordx4 {vr(b+4*k)}, v1, s[36:37] offset:{1024*k} sc1")
        I(f"global_load_dwordx4 {vr(b+16)}, v3, s[38:39] sc1")
    pollp(mk, 5, 20, 44, 16, 10, 15)
    stamp(6)
    I("v_max_f32_dpp v36, v32, v32 quad_perm:[1,0,3,2] row_mask:0xf bank_mask:0xf")
    I("v_max_f32_dpp v36, v36, v36 quad_perm:[2,3,0,1] row_mask:0xf bank_mask:0xf")
    cross_allreduce("max", [36], [37])
    I(f"v_sub_f32 v32, v32, v36\nv_mul_f32 v32, {LOG2E:#x}, v32\nv_exp_f32 v32, v32")
    I("v_mul_f32 v33, v33, v32")
    for r in range(4): I(f"v_mul_f32_dpp v{16+r}, v32, v{16+r} quad_perm:[0,0,0,0] row_mask:0xf bank_mask:0xf")
    I("v_add_f32_dpp v33, v33, v33 quad_perm:[1,0,3,2] row_mask:0xf bank_mask:0xf")
    for r in range(4): I(f"v_fmac_f32_dpp v{16+r}, v32, v{20+r} quad_perm:[1,1,1,1] row_mask:0xf bank_mask:0xf")
    I("v_add_f32_dpp v33, v33, v33 quad_perm:[2,3,0,1] row_mask:0xf bank_mask:0xf")
    for r in range(4): I(f"v_fmac_f32_dpp v{16+r}, v32, v{24+r} quad_perm:[2,2,2,2] row_mask:0xf bank_mask:0xf")
    I("v_mov_b32 v37, v33")
    for r in range(4): I(f"v_fmac_f32_dpp v{16+r}, v32, v{28+r} quad_perm:[3,3,3,3] row_mask:0xf bank_mask:0xf")
    I("v_permlane16_swap_b32 v33, v37")
    I("v_add_f32 v33, v33, v37")
    I("v_permlane32_swap_b32 v16, v18\nv_permlane32_swap_b32 v17, v19")
    I("v_mov_b32 v37, v33")
    pk("add", 16, 16, 18)
    I("v_permlane32_swap_b32 v33, v37")
    I("v_permlane16_swap_b32 v16, v17")
    I("v_add_f32 v33, v33, v37")
    I("v_add_f32 v16, v16, v17")
    I("v_rcp_f32 v33, v33")
    I("v_mul_f32 v16, v16, v33")
    I("v_cvt_pk_bf16_f32 v16, v16, v16")
    I(f"ds_write_b32 v12, v16 offset:{L_Y}")
    I("s_waitcnt lgkmcnt(0)")
    I("s_barrier")
    stamp(7)
    I("s_cmp_lt_u32 s53, 72"); br("s_cbranch_scc1 L_RED_main")
    finish()

RX, RA, RH, RT = 120, 121, 122, 123
def red_setup():
    I(f"s_min_u32 s50, s53, 71")
    I(f"v_lshrrev_b32 v8, 4, v0\nv_and_b32 v9, 1, v0\nv_lshl_add_u32 v9, v9, 2, v8\nv_lshlrev_b32 v9, 1, v9\ns_lshl_b32 s48, s50, 4\nv_add_u32 v{RA}, s48, v9")
    I(f"global_load_ushort v{RX}, v{RA}, {sp(sX)}")
    I(f"s_lshl_b32 s48, s50, 11\ns_add_u32 s48, s48, {H3A}"); add64(40, sWS, "s48")
    I(f"s_mul_i32 s48, s50, 4608\ns_add_u32 s48, s48, {H4}"); add64(42, sWS, "s48")
    add64(44, 42, 4096)
    I("v_lshlrev_b32 v1, 4, v0")
    I(f"v_lshrrev_b32 v8, 1, v0\nv_mul_u32_u24 v8, 2304, v8\nv_and_b32 v9, 1, v0\nv_lshl_add_u32 v{RH}, v9, 4, v8")
    I(f"s_lshl_b32 s48, s50, 5\ns_add_u32 s48, s48, {H3B}"); add64(46, sWS, "s48")
    get_tag(RT, 8)
    for r in range(4): I(f"v_mov_b32 v{96+r}, v{RT}")

def role_RED():
    e.comment("===== column reducers: 8 columns per wave; blocks 0..47 on the reducer workgroups, 48..71 on wave C of output projections")
    e.label("L_RED")
    I("s_cmp_ge_u32 s3, 1"); br("s_cbranch_scc1 L_RED_done")
    I("s_mul_i32 s53, s28, 3\ns_add_u32 s53, s53, s29\ns_sub_u32 s53, s53, 13")
    red_setup()
    lds_spin(F_HP, 1, 12, 13)
    I("s_waitcnt vmcnt(0)"); e.vmq = []
    I(f"v_lshlrev_b32 v{RX}, 16, v{RX}")
    I("s_setprio 3")
    e.settle()
    e.label("L_RED_main")
    stamp(8)
    def mk(b):
        for k in range(2): I(f"global_load_dwordx4 {vr(b+4*k)}, v1, s[40:41] offset:{1024*k} sc1")
    pollp(mk, 2, 8, 60, 16, 12, RT)
    stamp(9)
    pk("add", 16, 16, 20); pk("add", 18, 18, 22)
    rscatter4(16)
    rows_allreduce("add", [16], (2, 4, 8))
    rne1(16, 12)
    I(f"v_add_f32 v{RX}, v{RX}, v16")
    rne1(RX, 12)
    gather_rows(RX, 20)
    if O.nrep == 16: I("s_mov_b32 exec_hi, 0")
    tag4(20, RT)
    I(f"global_store_dwordx4 v{RH}, v[20:23], s[46:47] sc1")
    if O.nrep == 16: I("s_mov_b32 exec_hi, -1")
    stamp(10)
    def mk4(b):
        for k in range(4): I(f"global_load_dwordx4 {vr(b+4*k)}, v1, s[42:43] offset:{1024*k} sc1")
        I("s_mov_b32 exec_hi, 0")
        I(f"global_load_dwordx4 {vr(b+16)}, v1, s[44:45] sc1")
        I("s_mov_b32 exec_hi, -1")
    pollp(mk4, 5, 20, 80, 16, 12, RT)
    stamp(7)
    pk("add", 16, 16, 20); pk("add", 18, 18, 22); pk("add", 24, 24, 28); pk("add", 26, 26, 30)
    pk("add", 16, 16, 32); pk("add", 18, 18, 34)
    pk("add", 16, 16, 24); pk("add", 18, 18, 26)
    rscatter4(16)
    rows_allreduce("add", [16], (2, 4, 8))
    rne1(16, 12)
    I(f"v_add_f32 v{RX}, v{RX}, v16")
    if O.x_pert: I(f"v_add_f32 v{RX}, {O.x_pert}, v{RX}")
    I(f"v_cvt_pk_bf16_f32 v{RX}, v{RX}, v{RX}")
    I("s_mov_b32 exec_lo, 0x00030003\ns_mov_b32 exec_hi, 0x00030003")
    I(f"global_store_short v{RA}, v{RX}, {sp(sOUT)}")
    le = L("noep")
    I("s_cmp_eq_u32 s53, 0"); e.branch(f"s_cbranch_scc0 {le}")
    I(f"v_mov_b32 v12, {L_TAG}\nds_read_b32 v13, v12\nv_mov_b32 v14, 0")
    add64(32, sWS, EPOCH)
    I("s_mov_b64 exec, 1\ns_waitcnt lgkmcnt(0)")
    I("global_store_dword v14, v13, s[32:33]")
    e.label(le)
    I("s_mov_b64 exec, -1")
    e.label("L_RED_done")
    if O.pad:
        lp = L("pad")
        e.label(lp)
        I("s_memrealtime s[92:93]\ns_waitcnt lgkmcnt(0)\ns_sub_u32 s92, s92, s90")
        I(f"s_cmp_lt_u32 s92, {O.pad}"); br(f"s_cbranch_scc1 {lp}")
    finish()

def ffn_ids():
    I("s_lshr_b32 s48, s28, 1\ns_mul_i32 s48, s48, 9\ns_add_u32 s48, s48, s29\ns_lshl_b32 s48, s48, 6")
    I("s_and_b32 s49, s28, 1\ns_lshl_b32 s49, s49, 5\ns_add_u32 s52, s48, s49")

def role_FFN():
    GB, DB, DX = 88, 124, 72
    e.label("L_FFN")
    stamp(7)
    ffn_ids()
    ld, lj = L("nodown"), L("ffj")
    I("v_lshrrev_b32 v16, 4, v0\nv_bfe_u32 v9, v0, 3, 1\nv_lshl_add_u32 v8, v16, 3, v9")
    I("s_mul_i32 s48, s3, 72\nv_add_u32 v8, s48, v8\nv_mul_u32_u24 v8, 9216, v8")
    I("v_and_b32 v9, 3, v0\nv_lshlrev_b32 v9, 4, v9\ns_lshl_b32 s48, s52, 1\nv_add3_u32 v8, v8, v9, s48")
    I("v_bfe_u32 v9, v0, 2, 1\nv_cmp_eq_u32 vcc, 1, v9")
    I(f"v_mov_b32 v10, s{sWG}\nv_mov_b32 v11, s{sWU}\nv_cndmask_b32 v10, v10, v11, vcc")
    I(f"v_mov_b32 v11, s{sWG+1}\nv_mov_b32 v12, s{sWU+1}\nv_cndmask_b32 v11, v11, v12, vcc")
    I("v_add_co_u32 v10, vcc, v10, v8\nv_addc_co_u32 v11, vcc, 0, v11, vcc")
    I(f"s_mov_b32 s48, {2*9216}\ns_mov_b32 s49, 0\ns_mov_b32 s50, {26*9216}\ns_mov_b32 s51, 0")
    I(f"v_mul_u32_u24 v18, {6*9216}, v16\nv_sub_u32 v18, {26*9216}, v18\nv_mov_b32 v19, 0")
    for k in range(9):
        if O.gearly and k == O.gearly:
            lds_spin(F_HP, 1, 20, 21)
            I("s_mov_b32 s51, 0")
        if not O.x_noffn: I(f"global_load_dwordx4 {vr(GB+4*k)}, v[10:11], off {O.ntg}")
        if k < 7: I(f"v_lshl_add_u64 v[10:11], v[10:11], 0, {'s[50:51]' if k == 3 else 's[48:49]'}")
        if k == 7: I("v_lshl_add_u64 v[10:11], v[18:19], 0, v[10:11]")
    I(f"s_mul_i32 s48, s3, 144\ns_add_u32 s48, s48, {L_XLN2}\nv_lshlrev_b32 v8, 4, v16\nv_add_u32 v13, s48, v8")
    I("v_lshlrev_b32 v8, 2, v16\nv_add_u32 v14, s48, v8")
    I(f"v_and_b32 v8, 7, v0\nv_lshlrev_b32 v8, 3, v8\nv_bfe_u32 v9, v0, 4, 1\nv_lshl_add_u32 v8, v9, 2, v8\nv_mul_u32_u24 v8, {GUS}, v8")
    I(f"v_lshrrev_b32 v9, 5, v0\nv_lshl_add_u32 v8, v9, 2, v8\ns_lshl_b32 s48, s3, 3\ns_add_u32 s48, s48, {L_GUP}\nv_add_u32 v15, s48, v8")
    I("s_cmp_ge_u32 s3, 4"); br(f"s_cbranch_scc1 {ld}")
    main_voff(1, 1152, 8)
    extra_voff(2, 1152, 8)
    I("s_mul_i32 s48, s52, 1152"); add64(32, sWD, "s48"); srd(32, 32, 32*1152)
    if O.dwait < 9: I(f"s_waitcnt vmcnt({O.dwait})")
    lx = L("dnx")
    I("s_cmp_eq_u32 s3, 0"); br(f"s_cbranch_scc0 {lx}")
    for i in range(4):
        if i: I(f"s_mov_b32 s48, {9216*i}")
        if not O.x_noffn: I(f"buffer_load_dwordx4 {vr(DX+4*i)}, v2, s[32:35], {'s48' if i else '0'} offen {O.nt}")
    e.label(lx)
    for i in range(8):
        if i: I(f"s_mov_b32 s48, {4608*i}")
        if not O.x_noffn: I(f"buffer_load_dwordx4 {vr(DB+4*i)}, v1, s[32:35], {'s48' if i else '0'} offen {O.nt}")
    I("s_mul_i32 s47, s28, 9\ns_add_u32 s47, s47, s29")
    publish_addr(H4, 4608, 47, 40)
    get_tag(42, 8)
    make_msk()
    I("v_bfe_u32 v8, v0, 3, 1\nv_lshlrev_b32 v8, 5, v8\nv_and_b32 v9, 7, v0\nv_lshl_add_u32 v8, v9, 2, v8\nv_lshrrev_b32 v9, 4, v0\nv_add_u32 v8, v8, v9")
    I(f"v_mul_u32_u24 v43, {GUS}, v8")
    I("s_mov_b32 s47, 0xffff")
    lw = L("w12")
    I("s_cmp_eq_u32 s3, 0"); br(f"s_cbranch_scc1 {lw}")
    I("s_waitcnt vmcnt(8)")
    e.branch(f"s_branch {lj}")
    e.label(lw)
    I("s_waitcnt vmcnt(12)")
    e.branch(f"s_branch {lj}")
    e.label(ld)
    I(f"s_mov_b64 s[44:45], {sp(sWS)}\nv_mov_b32 v40, 0")
    I("s_waitcnt vmcnt(0)")
    e.label(lj)
    I("s_setprio 3")
    stamp(8)
    I("s_barrier")
    e.vmq = []; e.lgq = []
    for H in range(2): e.lg(f"ds_read_b128 {vr(16+4*H)}, v13 offset:{64*H}", ("pk", H))
    e.lg(f"ds_read_b32 v24, v14 offset:128", ("pk", 2))
    ACC = 28
    gemv(9, ACC, 32, lambda k: GB + 4*k, lambda k: 16 + k, pre=lambda k: e.lg_wait(("pk", k >> 2)) if (k & 3) == 0 else None)
    I("s_mov_b32 exec_lo, 0x00ff00ff\ns_mov_b32 exec_hi, 0xff00ff00")
    for r in range(4): I(f"ds_write_b32 v15, v{ACC+r} offset:{GUS*r}")
    I("s_mov_b64 exec, -1")
    I("s_waitcnt lgkmcnt(0)")
    I("s_barrier")
    I("s_cmp_ge_u32 s3, 4"); br("s_cbranch_scc1 L_FFN_done")
    stamp(9)
    e.lgq = []
    for k in range(4): e.lg(f"ds_read_b128 {vr(12+4*k)}, v43 offset:{L_GUP+16*k}", ("gp", k))
    e.lg_wait(("gp", 1))
    pk("add", 12, 12, 16); pk("add", 14, 14, 18)
    e.lg_wait(("gp", 3))
    pk("add", 20, 20, 24); pk("add", 22, 22, 26)
    pk("add", 12, 12, 20); pk("add", 14, 14, 22)
    pk("add", 12, 12, 14)
    I("v_add_f32 v12, v12, v13")
    rne1(12, 13)
    I("v_mul_f32 v14, v12, v12")
    I("v_mov_b32 v15, 0x3d372713")
    I("v_mov_b32_dpp v13, v12 row_ror:8 row_mask:0xf bank_mask:0xf")
    I("v_fma_f32 v14, v14, v15, 1.0")
    I("v_mul_f32 v14, v14, v12")
    I("v_mul_f32 v14, 0xc0135761, v14")
    I("v_exp_f32 v14, v14")
    I("v_add_f32 v14, 1.0, v14")
    I("v_rcp_f32 v14, v14")
    I("v_mul_f32 v12, v12, v14")
    rne1(12, 14)
    I("v_mul_f32 v12, v12, v13")
    I("v_cvt_pk_bf16_f32 v16, v12, v12")
    I("s_waitcnt vmcnt(0)")
    stamp(10)
    ACC2 = 28
    gemv(8, ACC2, 20, lambda i: DB + 4*i, lambda i: 18 + (i & 1),
         pre=lambda i: I(f"v_mov_b32_dpp v{18+(i&1)}, v16 row_newbcast:{i} row_mask:0xf bank_mask:0xf"), bld=build_m)
    publish_main(ACC2, 40, 42)
    I("s_cmp_eq_u32 s3, 0"); br("s_cbranch_scc0 L_FFN_done")
    AC3 = 48
    def pre4(i):
        I(f"v_mov_b32_dpp v17, v16 row_newbcast:{2*i} row_mask:0xf bank_mask:0xf")
        I(f"v_mov_b32_dpp v18, v16 row_newbcast:{2*i+1} row_mask:0xf bank_mask:0xf")
        I(f"v_bfi_b32 v{32+(i&1)}, s47, v17, v18")
    gemv(4, AC3, 20, lambda i: DX + 4*i, lambda i: 32 + (i & 1), pre=pre4)
    half_combine(AC3, 52)
    publish_extra(AC3, 40, 42, 4608)
    e.label("L_FFN_done")
    finish()

def role_FFN_C():
    e.label("L_FFN_C")
    I("s_mul_i32 s47, s28, 9\ns_add_u32 s47, s47, s29")
    I(f"s_and_b32 s48, s47, {O.nrep-1}\ns_mul_i32 s48, s48, 2304\ns_add_u32 s48, s48, {H3B}")
    add64(36, sWS, "s48")
    for r in range(4): I(f"v_mov_b32 v{68+r}, v15")
    I(f"v_lshlrev_b32 v2, 3, v0")
    lds_spin(F_HP, 1, 8, 9)
    stamp(5)
    def mk(b):
        I(f"global_load_dwordx4 {vr(b)}, v1, s[36:37] sc1")
        I(f"global_load_dwordx4 {vr(b+4)}, v1, s[36:37] offset:1024 sc1")
        I("s_mov_b64 exec, 0xffff")
        I(f"global_load_dwordx4 {vr(b+8)}, v1, s[36:37] offset:2048 sc1")
        I("s_mov_b64 exec, -1")
    pollp(mk, 3, 12, 60, 16, 8, 15)
    stamp(6)
    layernorm(list(range(16, 28)), 8, "0xffff", 32, 52)
    I(f"ds_write_b64 v2, v[52:53] offset:{L_XLN2}\nds_write_b64 v2, v[54:55] offset:{L_XLN2+512}")
    I("s_mov_b64 exec, 0xffff")
    I(f"ds_write_b64 v2, v[56:57] offset:{L_XLN2+1024}")
    I("s_mov_b64 exec, -1")
    I("s_waitcnt lgkmcnt(0)")
    I("s_barrier")
    stamp(7)
    finish()

def build():
    prologue()
    role_T0_head()
    role_A()
    role_C()
    role_T()
    role_WO()
    role_WO_C()
    role_RED()
    role_FFN_C()
    role_FFN()
    e.label("L_end")
    I("s_endpgm")
    e.raw("L_code_end:")
    head = []
    ref = open("sequential_preLN__sliding_block_cached__geglu_ffn__decode.s.ref").read().split("\n")
    for l in ref:
        if l.startswith("; @launch"): break
        if l.startswith("; Override") or l.startswith("; grid="): continue
        head.append(l)
    head.append(f"; @launch grid=(256,1,1) block=(576,1,1) lds={LDS_BYTES}")
    head.append('.amdgcn_target "amdgcn-amd-amdhsa--gfx950"')
    head.append(".text")
    head.append(f".set CODE_BYTES, L_code_end-{NAME}")
    head.append(".set PF_MASK, 15")
    tail = f""".section .rodata,"a"
.p2align 6
.amdhsa_kernel {NAME}
  .amdhsa_next_free_vgpr 168
  .amdhsa_next_free_sgpr 96
  .amdhsa_accum_offset 168
  .amdhsa_group_segment_fixed_size 0
  .amdhsa_kernarg_size 96
  .amdhsa_user_sgpr_count 2
  .amdhsa_user_sgpr_kernarg_segment_ptr 1
  .amdhsa_system_sgpr_workgroup_id_x 1
  .amdhsa_float_denorm_mode_32 3
.end_amdhsa_kernel
"""
    return "\n".join(head) + "\n" + e.text() + tail

if __name__ == "__main__":
    out = sys.argv[1]
    for a in sys.argv[2:]:
        k, v = a.split("=")
        cur = getattr(O, k)
        setattr(O, k, (v == "1") if isinstance(cur, bool) else (int(v) if isinstance(cur, int) else v))
    txt = build()
    open(out, "w").write(txt)
    print(f"wrote {out}: {len(txt)} bytes, nops {e.nnop}, lds {LDS_BYTES}")
```

```python
import sys, os
sys.path.insert(0, os.path.dirname(os.path.abspath(__file__)))
from emit import Emitter

NAME = "sequential_preLN__sliding_block_cached__geglu_ffn__decode_kernel"

class Opt:
    diag = False
    diag2 = False
    light = False
    diag3 = False
    win = 7
    igo = 15
    iwo = 7
    ngo = 4
    nwo = 4
    iq = 16
    nq = 1
    wowin = 16
    nt = "nt"
    ntg = "nt"
    budget = 200000
    prefetch = True
    krot = 17
    nrep = 32
    gearly = 4
    qlocal = True
    movewq = False
    local = True
    npoll = 1
    x_notail = False
    x_pert = ""
    x_noffn = False
    x_h2plain = False
    dwait = 9
    pfall = 0
    pfslow = True
    pfnt = ""
    pad = 0
O = Opt()

HML  = 0x10000
H3B  = 0x1D0000
H2   = 0x20000
H3A  = 0x60000
H4   = 0x84000
EPOCH = 0xE0000
H1   = 0xE8000
H1G, H2G, HMLG = 0x110000, 0x140000, 0x180000
HX = 0x1C0000
TAGM = 0x3ff
F_TAG, F_Q, CNT_O, F_GOE, F_GOL, F_X, CNT_GU, CNT_S, F_PUB, F_Y, F_K, F_HP = 0, 4, 8, 12, 16, 20, 24, 28, 32, 36, 40, 44
L_TAG = 48
L_Y = 0x80
L_STAT = 0x180
L_LN1, L_Q, L_OP, L_XLN2, L_GUP = 0x200, 0x700, 0xA00, 0x1A00, 0x1F00
LDS_BYTES = L_GUP + 16*256

sX, sK, sV, sWQ, sWO, sBX, sWG, sWU, sWD, sOUT, sDBG, sWS = 4, 6, 8, 10, 12, 14, 16, 18, 20, 22, 24, 26
sJ, sS, sBUD, sTAGM = 28, 29, 30, 31
sT3 = 51
LOG2E = 0x3fb8aa3b
SEL = 4
e = Emitter()
I = e.I
uid = [0]
def L(p):
    uid[0] += 1
    return f"L_{p}_{uid[0]}"
def sp(r): return f"s[{r}:{r+1}]"
def vr(r, n=4): return f"v[{r}:{r+n-1}]"
def br(text):
    e.raw("  " + text); e._advance(1)

def add64(d, b, off):
    I(f"s_add_u32 s{d}, s{b}, {off}")
    I(f"s_addc_u32 s{d+1}, s{b+1}, 0")

def srd(d, base, nrec):
    if d != base: I(f"s_mov_b32 s{d}, s{base}")
    I(f"s_and_b32 s{d+1}, s{base+1}, 0xffff")
    I(f"s_mov_b32 s{d+2}, {nrec}")
    I(f"s_mov_b32 s{d+3}, 0x20000")

def stamp(k):
    if O.diag and (k == 0 or not O.light): I(f"s_memrealtime s[{64+2*k}:{65+2*k}]")

def stamps_dyn():
    I("s_memrealtime s[86:87]")
    I("s_waitcnt lgkmcnt(0)")
    I("s_mov_b64 exec, 1")
    add64(62, sWS, "0x20000000")
    I("s_lshl_b32 s61, s60, 8\ns_add_u32 s61, s61, s2\ns_lshl_b32 s61, s61, 7")
    add64(62, 62, "s61")
    I("v_mov_b32 v2, 0")
    for k in ((0, 11) if O.light else range(12)):
        I(f"v_mov_b32 v4, s{64+2*k}\nv_mov_b32 v5, s{65+2*k}")
        I(f"global_store_dwordx2 v2, v[4:5], s[62:63] offset:{8*k}")
        I("s_nop 1")

def finish(role=None):
    if O.diag:
        I("s_mov_b32 s60, s59")
        stamps_dyn()
    I("s_endpgm")

def budget(done):
    I(f"s_cmp_eq_u32 s{sBUD}, 0")
    br(f"s_cbranch_scc1 {done}")
    I(f"s_sub_u32 s{sBUD}, s{sBUD}, 1")

def lds_spin(addr, val, vt=2, va=3):
    lp, done = L("spin"), L("spun")
    I(f"v_mov_b32 v{va}, {addr}")
    e.settle()
    e.label(lp)
    I(f"ds_read_b32 v{vt}, v{va}")
    budget(done)
    I("s_waitcnt lgkmcnt(0)")
    I(f"v_readfirstlane_b32 s{sT3}, v{vt}")
    I(f"s_cmp_ge_u32 s{sT3}, {val}")
    br(f"s_cbranch_scc0 {lp}")
    e.label(done)
    I("s_waitcnt lgkmcnt(0)")
    e.lgq = []

def lds_set(addr, val=1, vt=2, va=3):
    I(f"v_mov_b32 v{va}, {addr}\nv_mov_b32 v{vt}, {val}")
    I(f"ds_write_b32 v{va}, v{vt}")

def lds_inc(addr, va, vt):
    I(f"v_mov_b32 v{va}, {addr}\nv_mov_b32 v{vt}, 1\ns_mov_b64 exec, 1\nds_add_u32 v{va}, v{vt}\ns_mov_b64 exec, -1")

def check_set(src, dst, n, vt, vtag, mask=TAGM):
    for k in range(n): I(f"v_xor_b32 v{dst+k}, v{src+k}, v{vtag}")
    r = [dst+k for k in range(n)]
    I(f"v_or3_b32 v{vt}, v{r[0]}, v{r[1]}, v{r[2]}")
    q = r[3:]
    while len(q) >= 2:
        I(f"v_or3_b32 v{vt}, v{vt}, v{q[0]}, v{q[1]}"); q = q[2:]
    if q: I(f"v_or_b32 v{vt}, v{vt}, v{q[0]}")
    I(f"v_and_b32 v{vt}, {mask:#x}, v{vt}")
    I(f"v_cmp_ne_u32 vcc, 0, v{vt}")

def pollp(mk, nloads, n, setA, dst, vt, vtag, switch=None, check=None, tries=1):
    lp, done = L("poll"), L("polled")
    if switch: I(f"s_mov_b32 s57, {tries}")
    e.settle(); e.label(lp)
    if switch:
        lk = L("keep")
        I("s_sub_u32 s57, s57, 1"); br(f"s_cbranch_scc0 {lk}")
        switch()
        I("s_mov_b32 s57, 0x7fffffff")
        e.label(lk)
    mk(setA)
    budget(done)
    I("s_waitcnt vmcnt(0)")
    if check: check()
    else: check_set(setA, dst, n, vt, vtag)
    br(f"s_cbranch_vccnz {lp}")
    e.label(done)
    e.vmq = []

def get_tag(v, t):
    lds_spin(F_TAG, 1, t, t+1)
    I(f"v_mov_b32 v{t}, {L_TAG}")
    I(f"ds_read_b32 v{v}, v{t}")
    I(f"s_movk_i32 s{sTAGM}, {TAGM:#x}")
    I("s_waitcnt lgkmcnt(0)")
    I(f"v_and_b32 v{v}, {TAGM:#x}, v{v}")

def tag4(r, vtag):
    for k in range(4): I(f"v_bfi_b32 v{r+k}, s{sTAGM}, v{vtag}, v{r+k}")

def rows_allreduce(op, vs, steps=(8, 4, 2, 1)):
    for k in steps:
        for v in vs: I(f"v_{op}_f32_dpp v{v}, v{v}, v{v} row_ror:{k} row_mask:0xf bank_mask:0xf")

def cross_allreduce(op, vs, ts):
    for sw in ("v_permlane16_swap_b32", "v_permlane32_swap_b32"):
        for v, t in zip(vs, ts): I(f"v_mov_b32 v{t}, v{v}")
        for v, t in zip(vs, ts): I(f"{sw} v{v}, v{t}")
        for v, t in zip(vs, ts): I(f"v_{op}_f32 v{v}, v{v}, v{t}")

def allreduce(op, vs, ts):
    rows_allreduce(op, vs); cross_allreduce(op, vs, ts)

def rscatter4(r):
    I(f"v_permlane32_swap_b32 v{r}, v{r+2}")
    I(f"v_permlane32_swap_b32 v{r+1}, v{r+3}")
    I(f"v_pk_add_f32 v[{r}:{r+1}], v[{r}:{r+1}], v[{r+2}:{r+3}]")
    I(f"v_permlane16_swap_b32 v{r}, v{r+1}")
    I(f"v_add_f32 v{r}, v{r}, v{r+1}")

def gather_rows(src, dst):
    I(f"v_mov_b32 v{dst}, v{src}\nv_mov_b32 v{dst+1}, v{src}")
    I(f"v_permlane16_swap_b32 v{dst}, v{dst+1}")
    I(f"v_mov_b32 v{dst+2}, v{dst}\nv_mov_b32 v{dst+3}, v{dst+1}")
    I(f"v_permlane32_swap_b32 v{dst}, v{dst+2}\nv_permlane32_swap_b32 v{dst+1}, v{dst+3}")

def rne1(v, t):
    I(f"v_cvt_pk_bf16_f32 v{t}, v{v}, v{v}")
    I(f"v_lshlrev_b32 v{v}, 16, v{t}")

def rne2(a, b, t):
    I(f"v_cvt_pk_bf16_f32 v{t}, v{a}, v{b}")
    I(f"v_lshlrev_b32 v{a}, 16, v{t}")
    I(f"v_and_b32 v{b}, 0xffff0000, v{t}")

def pk(op, d, a, b, mods=""):
    I(f"v_pk_{op}_f32 v[{d}:{d+1}], v[{a}:{a+1}], v[{b}:{b+1}] {mods}".rstrip())

def make_sel(t):
    m, b, h, c = t, t+1, t+2, t+3
    I(f"v_and_b32 v{m}, 15, v0")
    I(f"v_lshrrev_b32 v{b}, 3, v{m}")
    I(f"v_mul_u32_u24 v{b}, 0x0202, v{b}")
    I(f"v_add_u32 v{b}, 0x0100, v{b}")
    I(f"v_lshlrev_b32 v{h}, 16, v{b}")
    I(f"v_or_b32 v{h}, 0x0c0c, v{h}")
    I(f"v_or_b32 v{b}, 0x0c0c0000, v{b}")
    I(f"v_and_b32 v{c}, 1, v{m}")
    I(f"v_cmp_eq_u32 vcc, 1, v{c}")
    I(f"v_cndmask_b32 v{b}, v{b}, v{h}, vcc")
    I(f"v_bfe_u32 v{m}, v{m}, 1, 2")
    I(f"v_mov_b32 v{c}, 0x0c0c0c0c")
    for d in range(4):
        I(f"v_cmp_eq_u32 vcc, {d}, v{m}")
        I(f"v_cndmask_b32 v{SEL+d}, v{c}, v{b}, vcc")

MSK = 156
def make_msk():
    I(f"v_mov_b32 v{MSK}, -1")
    for d in (1, 2, 3): I(f"v_perm_b32 v{MSK+d}, v{MSK}, v{MSK}, v{SEL+d}")
    I(f"v_perm_b32 v{MSK}, v{MSK}, v{MSK}, v{SEL}")

def build_m(a, src):
    for d in range(4): I(f"v_and_b32 v{a+d}, v{src}, v{MSK+d}")

def build_a(a, src):
    for d in range(4): I(f"v_perm_b32 v{a+d}, v{src}, v{src}, v{SEL+d}")

def mfma(acc, a, b, first=False):
    c = "0" if first else vr(acc)
    I(f"v_mfma_f32_16x16x32_bf16 {vr(acc)}, {vr(a)}, {vr(b)}, {c}")

def gemv(n, acc, abuf, wreg, src, pre=None, wait=None, bld=None):
    def build(i):
        if pre: pre(i)
        (bld or build_a)(abuf + 4*(i & 1), src(i))
    build(0)
    if n > 1: build(1)
    for i in range(n):
        if wait: wait(i)
        mfma(acc, abuf + 4*(i & 1), wreg(i), first=(i == 0))
        if i + 2 < n: build(i + 2)

def layernorm(f, nA, maskB, t, out):
    n = len(f); f0 = f[0]
    s1, s2, u, w, mm, rr = t, t+1, t+2, t+3, t+4, t+6
    d = t + 8
    I(f"v_readlane_b32 s48, v{f0}, 0")
    I("s_mov_b32 s49, s48")
    for k in range(0, nA, 2): I(f"v_pk_add_f32 v[{d+k}:{d+k+1}], v[{f0+k}:{f0+k+1}], s[48:49] neg_lo:[0,1] neg_hi:[0,1]")
    for k in range(nA, n): I(f"v_mov_b32 v{d+k}, 0")
    I(f"s_mov_b64 exec, {maskB}")
    for k in range(nA, n, 2): I(f"v_pk_add_f32 v[{d+k}:{d+k+1}], v[{f0+k}:{f0+k+1}], s[48:49] neg_lo:[0,1] neg_hi:[0,1]")
    I("s_mov_b64 exec, -1")
    pk("mul", mm, d, d)
    pk("add", rr, d, d+2)
    for k in range(2, n, 2): I(f"v_pk_fma_f32 v[{mm}:{mm+1}], v[{d+k}:{d+k+1}], v[{d+k}:{d+k+1}], v[{mm}:{mm+1}]")
    for k in range(4, n, 2): pk("add", rr, rr, d+k)
    I(f"v_add_f32 v{s2}, v{mm}, v{mm+1}\nv_add_f32 v{s1}, v{rr}, v{rr+1}")
    allreduce("add", [s1, s2], [u, w])
    I(f"v_mul_f32 v{s1}, 0x3ae38e39, v{s1}\nv_mul_f32 v{s2}, 0x3ae38e39, v{s2}")
    I(f"v_fma_f32 v{s2}, -v{s1}, v{s1}, v{s2}")
    I(f"v_add_f32 v{s1}, s48, v{s1}")
    I(f"v_max_f32 v{s2}, 0, v{s2}")
    I(f"v_cvt_pk_bf16_f32 v{u}, v{s1}, v{s2}")
    I(f"v_and_b32 v{s2}, 0xffff0000, v{u}\nv_lshlrev_b32 v{mm}, 16, v{u}")
    I(f"v_add_f32 v{s2}, 0x3727c5ac, v{s2}")
    I(f"v_mov_b32 v{mm+1}, v{mm}")
    rne1(s2, u)
    I(f"v_sqrt_f32 v{s2}, v{s2}")
    for k in range(0, n, 2): I(f"v_pk_add_f32 v[{d+k}:{d+k+1}], v[{f0+k}:{f0+k+1}], v[{mm}:{mm+1}] neg_lo:[0,1] neg_hi:[0,1]")
    rne1(s2, u)
    I(f"v_rcp_f32 v{rr}, v{s2}")
    for k in range(0, n, 2): I(f"v_cvt_pk_bf16_f32 v{f0+k}, v{d+k}, v{d+k+1}")
    I(f"v_mov_b32 v{rr+1}, v{rr}")
    for k in range(0, n, 2):
        I(f"v_lshlrev_b32 v{d+k}, 16, v{f0+k}\nv_and_b32 v{d+k+1}, 0xffff0000, v{f0+k}")
    for k in range(0, n, 2): pk("mul", d+k, d+k, rr)
    for k in range(0, n, 2): I(f"v_cvt_pk_bf16_f32 v{out+k//2}, v{d+k}, v{d+k+1}")

def ids():
    I("s_and_b32 s28, s2, 7\ns_lshl_b32 s28, s28, 1\ns_bfe_u32 s29, s2, 0x10003\ns_add_u32 s28, s28, s29")
    I("s_lshr_b32 s29, s2, 4")
    I(f"s_mov_b32 s{sBUD}, {O.budget}")

def prologue():
    e.raw(f".globl {NAME}\n.p2align 8\n.type {NAME},@function\n{NAME}:")
    I("s_cmp_ge_u32 s2, 256")
    br("s_cbranch_scc1 L_end")
    I("s_load_dwordx16 s[4:19], s[0:1], 0")
    I("s_load_dwordx8 s[20:27], s[0:1], 64")
    I("v_lshrrev_b32 v1, 6, v0")
    I("v_and_b32 v0, 63, v0")
    I("v_readfirstlane_b32 s3, v1")
    if O.pad: I("s_memrealtime s[90:91]")
    if O.diag:
        for k in range(66, 88): I(f"s_mov_b32 s{k}, 0")
        I("s_mov_b32 s59, s3")
    stamp(0)
    I("s_cmp_eq_u32 s3, 8"); br("s_cbranch_scc1 L_C")
    I("s_cmp_ge_u32 s3, 6"); br("s_cbranch_scc1 L_T")
    I("s_cmp_eq_u32 s3, 1"); br("s_cbranch_scc1 L_T")
    I("s_cmp_ge_u32 s3, 2"); br("s_cbranch_scc1 L_A")

def merge_tile(t, DA, S0):
    d0, d1 = DA + 8*(t & 1), DA + 8*(t & 1) + 4
    for h in range(2):
        I(f"v_cndmask_b32 v{d0+h}, v{d0+h}, v{d1+h}, s[56:57]")
        I(f"v_cndmask_b32 v{d0+2+h}, v{d1+2+h}, v{d0+2+h}, s[56:57]")
    for h in range(2):
        I(f"v_add_f32_dpp v{S0+h}, v{d0+2+h}, v{d0+h} quad_perm:[1,0,3,2] row_mask:{1<<t:#x} bank_mask:0xf")

def role_A():
    KB, VB = 40, 104
    def KR(t, ee, l): return KB + 4*(4*t + 2*ee + l)
    def VR(i): return VB + 4*i
    QA, DA, S0, S1, P = 8, 16, 32, 33, 34
    QADDR, OADDR, HOFF = 35, 36, 37
    e.label("L_A")
    I("s_setprio 2")
    ids()
    I("s_sub_u32 s3, s3, 2")
    I("v_bfe_u32 v8, v0, 1, 3\nv_lshlrev_b32 v8, 8, v8")
    I("v_lshrrev_b32 v9, 4, v0")
    I("v_and_b32 v10, 1, v0")
    I("v_lshl_add_u32 v11, v9, 1, v10\nv_lshl_add_u32 v1, v11, 4, v8")
    I("s_lshl_b32 s49, s3, 4\ns_add_u32 s49, s49, s29")
    I(f"s_lshl_b32 s48, s28, 24\ns_add_u32 s48, s48, {61440*256}")
    I("v_xor_b32 v10, 1, v10\nv_lshl_add_u32 v11, v9, 1, v10\nv_lshl_add_u32 v2, v11, 4, v8")
    I("s_lshl_b32 s40, s49, 11")
    def grp(k): I(f"s_add_u32 s50, s49, {O.krot*k}\ns_and_b32 s50, s50, 63\ns_add_u32 s50, s50, {64*k}\ns_lshl_b32 s{40+k}, s50, 11")
    for k in range(1, 8): grp(k)
    I("s_waitcnt lgkmcnt(0)")
    if O.diag3: stamp(9)
    add64(32, sK, "s48"); srd(32, 32, 0x100000)
    I("s_barrier")
    if O.diag3: stamp(10)
    seq = [("K", k) for k in range(16)] + [("V", i) for i in range(16)]
    def issue(n):
        kind, k = seq[n]
        if kind == "K":
            t, ee, l = k >> 2, (k >> 1) & 1, k & 1
            e.vm(f"buffer_load_dwordx4 {vr(KR(t,ee,l))}, v{1+ee}, s[32:35], s{40+2*t+ee} offen offset:{l*128} {O.nt}", ("K", k))
        else:
            e.vm(f"buffer_load_dwordx4 {vr(VR(k))}, v{(3, 31)[k & 1]}, s[36:39], 0 offen offset:{256*(k>>1)} {O.nt}", ("V", k))
            for idx, flag in ((O.iwo, F_GOE), (O.igo, F_GOL)):
                if k == idx: lds_inc(flag, 38, 39)
        if n == O.iq: lds_inc(F_K, 38, 39)
    for n in range(O.win): issue(n)
    stamp(1)
    for p_, vd in ((0, 3), (1, 31)):
        I(f"v_mov_b32 v{vd}, s{40+p_}")
        for g in range(1, 4):
            I(f"v_cmp_eq_u32 vcc, {g}, v9\nv_mov_b32 v11, s{40+2*g+p_}\nv_cndmask_b32 v{vd}, v{vd}, v11, vcc")
        I(f"v_and_b32 v10, 15, v0\nv_lshl_add_u32 v{vd}, v10, 4, v{vd}")
    add64(36, sV, "s48"); srd(36, 36, 0x100000)
    make_sel(20)
    I(f"v_and_b32 v20, 1, v0\nv_lshlrev_b32 v20, 8, v20")
    I("v_bfe_u32 v21, v0, 1, 1\nv_lshl_add_u32 v21, v9, 1, v21")
    I(f"v_lshl_add_u32 v{QADDR}, v21, 4, v20")
    I("s_mov_b32 s56, 0xaaaaaaaa\ns_mov_b32 s57, 0xaaaaaaaa")
    I("v_and_b32 v20, 15, v0\nv_lshlrev_b32 v20, 1, v20\nv_and_b32 v21, 1, v9\nv_add_u32 v20, v20, v21")
    I("v_lshrrev_b32 v21, 1, v9\nv_lshl_add_u32 v20, v21, 5, v20")
    I(f"s_lshl_b32 s49, s3, 10\ns_add_u32 s49, s49, {L_OP}\nv_lshl_add_u32 v{OADDR}, v20, 4, s49")
    I(f"v_lshlrev_b32 v20, 12, v9\nv_and_b32 v21, 15, v0\nv_lshl_add_u32 v{HOFF}, v21, 4, v20")
    I(f"s_lshl_b32 s49, s28, 14\ns_lshl_b32 s50, s29, 8\ns_add_u32 s49, s49, s50\ns_add_u32 s49, s49, {H2 if O.local else H2G}")
    add64(52, sWS, "s49")
    I(f"s_lshl_b32 s49, s28, 10\ns_lshl_b32 s50, s29, 4\ns_add_u32 s49, s49, s50\ns_add_u32 s49, s49, {HML if O.local else HMLG}")
    add64(54, sWS, "s49")
    nxt = O.win
    while nxt < 32:
        e.vm_wait_n(O.win - 1); issue(nxt); nxt += 1
    stamp(2)
    lds_spin(F_Q, 1, 38, 39)
    stamp(3)
    I(f"v_mov_b32 v38, {L_TAG}\nds_read_b32 v39, v38\ns_movk_i32 s{sTAGM}, {TAGM:#x}")
    e.lg(f"ds_read_b128 {vr(QA)}, v{QADDR} offset:{L_Q}", "qa0")
    e.lg(f"ds_read_b128 {vr(QA+4)}, v{QADDR} offset:{L_Q+128}", "qa1")
    e.vm_wait(("K", 15))
    e.lg_all()
    I(f"v_and_b32 v39, {TAGM:#x}, v39")
    for t in range(4):
        d0, d1 = DA + 8*(t & 1), DA + 8*(t & 1) + 4
        for ee, d in ((0, d0), (1, d1)): mfma(d, QA, KR(t, ee, 0), first=True)
        for ee, d in ((0, d0), (1, d1)): mfma(d, QA+4, KR(t, ee, 1))
        if t == 0: I("v_readfirstlane_b32 s58, v39")
        if t >= 1: merge_tile(t-1, DA, S0)
    merge_tile(3, DA, S0)
    rne2(S0, S1, 20)
    I(f"v_mul_f32 v{S0}, 0x3db504f3, v{S0}\nv_mul_f32 v{S1}, 0x3db504f3, v{S1}")
    rne2(S0, S1, 20)
    M0, L0, M1, L1 = 24, 25, 26, 27
    I(f"v_mov_b32 v{M0}, v{S0}\nv_mov_b32 v{M1}, v{S1}")
    allreduce("max", [M0, M1], [20, 21])
    I(f"v_sub_f32 v{S0}, v{S0}, v{M0}\nv_sub_f32 v{S1}, v{S1}, v{M1}")
    I(f"v_mul_f32 v{S0}, {LOG2E:#x}, v{S0}\nv_mul_f32 v{S1}, {LOG2E:#x}, v{S1}")
    I(f"v_exp_f32 v{L0}, v{S0}\nv_exp_f32 v{L1}, v{S1}")
    I(f"v_cvt_pk_bf16_f32 v{P}, v{L0}, v{L1}")
    stamp(4)
    ACC = 16
    def bld(i):
        I(f"v_mov_b32_dpp v{20+(i&1)}, v{P} row_newbcast:{i} row_mask:0xf bank_mask:0xf")
        build_a(QA + 4*(i & 1), 20 + (i & 1))
    def pv(i):
        e.vm_wait(("V", i))
        mfma(ACC, QA + 4*(i & 1), VR(i), first=(i == 0))
        if i + 2 < 16: bld(i + 2)
    bld(0); bld(1)
    for i in range(4): pv(i)
    allreduce("add", [L0, L1], [22, 23])
    I(f"s_lshl_b32 s48, s3, 4\ns_add_u32 s48, s48, {L_STAT}\nv_mov_b32 v22, s48")
    I("s_mov_b64 exec, 1")
    e.lg(f"ds_write_b128 v22, {vr(M0)}", "st")
    I(f"v_mov_b32 v22, {CNT_S}\nv_mov_b32 v23, 1")
    e.lg_wait("st")
    I("ds_add_u32 v22, v23")
    I("s_mov_b64 exec, -1")
    for i in range(4, 8): pv(i)
    lds_spin(CNT_S, 4, 22, 23)
    I(f"v_mov_b32 v22, {L_STAT}")
    ST = 40
    for w in range(4): e.lg(f"ds_read_b128 {vr(ST+4*w)}, v22 offset:{16*w}", ("sw", w))
    e.lg_wait(("sw", 3))
    GM0, GM1, GL0, GL1, F = 56, 57, 58, 59, 60
    I(f"v_max3_f32 v{GM0}, v{ST}, v{ST+4}, v{ST+8}\nv_max3_f32 v{GM1}, v{ST+2}, v{ST+6}, v{ST+10}")
    I(f"v_max_f32 v{GM0}, v{GM0}, v{ST+12}\nv_max_f32 v{GM1}, v{GM1}, v{ST+14}")
    for w in range(4): I(f"v_sub_f32 v{ST+4*w}, v{ST+4*w}, v{GM0}\nv_sub_f32 v{ST+4*w+2}, v{ST+4*w+2}, v{GM1}")
    for w in range(4): I(f"v_mul_f32 v{ST+4*w}, {LOG2E:#x}, v{ST+4*w}\nv_mul_f32 v{ST+4*w+2}, {LOG2E:#x}, v{ST+4*w+2}")
    for w in range(4): I(f"v_exp_f32 v{ST+4*w}, v{ST+4*w}\nv_exp_f32 v{ST+4*w+2}, v{ST+4*w+2}")
    I(f"v_sub_f32 v{M0}, v{M0}, v{GM0}\nv_sub_f32 v{M1}, v{M1}, v{GM1}")
    I(f"v_mul_f32 v{GL0}, v{ST}, v{ST+1}\nv_mul_f32 v{GL1}, v{ST+2}, v{ST+3}")
    I(f"v_mul_f32 v{M0}, {LOG2E:#x}, v{M0}\nv_mul_f32 v{M1}, {LOG2E:#x}, v{M1}")
    for w in range(1, 4): I(f"v_fmac_f32 v{GL0}, v{ST+4*w}, v{ST+4*w+1}\nv_fmac_f32 v{GL1}, v{ST+4*w+2}, v{ST+4*w+3}")
    I(f"v_exp_f32 v{M0}, v{M0}\nv_exp_f32 v{M1}, v{M1}")
    I("s_mov_b32 s48, 0\ns_mov_b32 s49, -1\ns_mov_b32 s50, 0xc\ns_mov_b32 s51, 0")
    I(f"v_cndmask_b32 v{F}, v{M0}, v{M1}, s[48:49]")
    ML = 64
    I(f"v_cndmask_b32 v{ML}, v{GM0}, v{GM1}, s[50:51]\nv_cndmask_b32 v{ML+1}, v{GL0}, v{GL1}, s[50:51]")
    I(f"v_mov_b32 v{ML+8}, s58")
    I(f"v_mov_b32 v{ML+2}, 0\nv_mov_b32 v{ML+3}, 0\nv_lshlrev_b32 v{ML+4}, 8, v0")
    tag4(ML, ML+8)
    I(f"v_mov_b32 v{ML+5}, {CNT_O}\nv_mov_b32 v{ML+6}, 1\nv_lshlrev_b32 v{ML+7}, 4, v0")
    I(f"v_mov_b32 v{F+1}, v{F}")
    for i in range(8, 16): pv(i)
    stamp(5)
    pk("mul", ACC, ACC, F); pk("mul", ACC+2, ACC+2, F)
    e.lg(f"ds_write_b128 v{OADDR}, {vr(ACC)}", "op")
    I("s_mov_b64 exec, 1")
    e.lg_wait("op")
    e.lg(f"ds_add_rtn_u32 v{ML+6}, v{ML+5}, v{ML+6}", "cnt")
    e.lg_wait("cnt")
    I(f"v_readfirstlane_b32 s48, v{ML+6}")
    I("s_mov_b64 exec, -1")
    I("s_cmp_eq_u32 s48, 3")
    br("s_cbranch_scc0 L_A_done")
    for w in range(4): e.lg(f"ds_read_b128 {vr(40+4*w)}, v{ML+7} offset:{L_OP+1024*w}", ("o", w))
    e.lg_wait(("o", 1))
    pk("add", 40, 40, 44); pk("add", 42, 42, 46)
    e.lg_wait(("o", 3))
    pk("add", 48, 48, 52); pk("add", 50, 50, 54)
    pk("add", 40, 40, 48); pk("add", 42, 42, 50)
    tag4(40, ML+8)
    if O.local:
        I(f"global_store_dwordx4 v{HOFF}, {vr(40)}, s[52:53]")
        I("s_mov_b64 exec, 0xf")
        I(f"global_store_dwordx4 v{ML+4}, {vr(ML)}, s[54:55]")
        I("s_mov_b64 exec, -1")
        add64(52, 52, H2G - H2); add64(54, 54, HMLG - HML)
    I(f"global_store_dwordx4 v{HOFF}, {vr(40)}, s[52:53] sc1")
    I("s_mov_b64 exec, 0xf")
    I(f"global_store_dwordx4 v{ML+4}, {vr(ML)}, s[54:55] sc1")
    I("s_mov_b64 exec, -1")
    lds_set(F_HP, 1, 38, 39)
    e.settle()
    e.label("L_A_done")
    stamp(6)
    if not O.x_notail:
        if O.pfslow:
            I("s_cmp_ge_u32 s29, 13"); br("s_cbranch_scc1 L_A_pf")
        I("s_cmp_lt_u32 s29, 9")
        br("s_cbranch_scc0 L_A_end")
        I("s_add_u32 s3, s3, 4")
        lds_spin(F_HP, 1, 38, 39)
        e.branch("s_branch L_FFN")
        if O.pfslow:
            e.label("L_A_pf")
            I("s_lshr_b32 s48, s28, 1")
            I("s_sub_u32 s49, 3, s48\ns_and_b32 s49, s49, 7")
            I("s_mul_i32 s50, s48, 9\ns_add_u32 s50, s50, s49\ns_lshl_b32 s50, s50, 7")
            I("s_and_b32 s51, s28, 1\ns_mul_i32 s51, s51, 3\ns_add_u32 s51, s51, s29\ns_sub_u32 s51, s51, 13\ns_lshl_b32 s51, s51, 2\ns_add_u32 s51, s51, s3")
            I("s_mul_i32 s51, s51, 24*9216\ns_add_u32 s50, s50, s51")
            I("v_lshrrev_b32 v8, 3, v0\nv_mul_u32_u24 v8, 9216, v8\nv_and_b32 v9, 7, v0\nv_lshl_add_u32 v8, v9, 4, v8")
            I(f"s_mov_b32 s32, s{sWG}"); srd(32, sWG, 576*9216)
            I(f"s_mov_b32 s36, s{sWU}"); srd(36, sWU, 576*9216)
            lds_spin(F_HP, 1, 38, 39)
            def six():
                for i in range(3):
                    I(f"s_add_u32 s51, s50, {8*9216*i}")
                    I(f"buffer_load_dwordx4 {vr(40+8*i)}, v8, s[32:35], s51 offen {O.pfnt}")
                    I(f"buffer_load_dwordx4 {vr(44+8*i)}, v8, s[36:39], s51 offen {O.pfnt}")
            six()
            lp2 = L("pf2")
            I("s_cmp_eq_u32 s48, 3"); br(f"s_cbranch_scc0 {lp2}")
            I("s_add_u32 s50, s50, 8*128")
            six()
            e.label(lp2)
            if O.pfall:
                nr = 8*O.pfall
                I("s_and_b32 s51, s28, 1\ns_mul_i32 s51, s51, 3\ns_add_u32 s51, s51, s29\ns_sub_u32 s51, s51, 13\ns_lshl_b32 s51, s51, 2\ns_add_u32 s51, s51, s3")
                I(f"s_and_b32 s50, s51, 7\ns_mul_i32 s50, s50, 72\ns_add_u32 s50, s50, {72-nr}")
                I(f"s_lshr_b32 s51, s51, 3\ns_mul_i32 s51, s51, {nr//3 if nr % 3 == 0 else (nr+2)//3}\ns_add_u32 s50, s50, s51")
                I("s_mul_i32 s50, s50, 9216\ns_mul_i32 s51, s48, 1152\ns_add_u32 s50, s50, s51")
                I("v_lshlrev_b32 v9, 4, v0")
                n3 = nr//3 if nr % 3 == 0 else (nr+2)//3
                for r in range(n3):
                    I(f"s_add_u32 s51, s50, {9216*r}")
                    I(f"buffer_load_dwordx4 {vr(40+8*(r&3))}, v9, s[32:35], s51 offen {O.pfnt}")
                    I(f"buffer_load_dwordx4 {vr(44+8*(r&3))}, v9, s[36:39], s51 offen {O.pfnt}")
                for r in range(0, n3, 8):
                    I(f"s_add_u32 s51, s50, {9216*r + 1024}")
                    I(f"buffer_load_dwordx4 {vr(72)}, v8, s[32:35], s51 offen {O.pfnt}")
                    I(f"buffer_load_dwordx4 {vr(76)}, v8, s[36:39], s51 offen {O.pfnt}")
    e.label("L_A_end")
    finish()

def half_combine(acc, t):
    for r in range(4): I(f"v_mov_b32 v{t+r}, v{acc+r}")
    for r in range(4): I(f"v_permlane32_swap_b32 v{acc+r}, v{t+r}")
    for r in range(4): I(f"v_add_f32_dpp v{acc+r}, v{t+r}, v{acc+r} row_ror:8 row_mask:0xf bank_mask:0xf")

def role_T0_head():
    WB = 32
    I("s_setprio 3")
    ids()
    I("s_mov_b32 s58, s29\ns_mov_b32 s57, 0")
    if O.movewq:
        I("s_sub_u32 s48, s29, 9\ns_cmp_lt_u32 s48, 4"); br("s_cbranch_scc1 L_T0_skip")
    e.label("L_head")
    I("v_lshlrev_b32 v1, 4, v0")
    I("v_lshrrev_b32 v16, 4, v0\nv_bfe_u32 v17, v0, 3, 1")
    I("v_and_b32 v18, 7, v0\nv_lshlrev_b32 v18, 4, v18")
    I("v_lshl_add_u32 v19, v16, 3, v17\nv_lshl_add_u32 v2, v19, 13, v18")
    I("v_lshl_add_u32 v19, v16, 2, v17\nv_lshl_add_u32 v3, v19, 13, v18")
    I("s_lshr_b32 s48, s58, 2\ns_mul_i32 s49, s48, 0x120000\ns_and_b32 s50, s58, 3\ns_lshl_b32 s50, s50, 7\ns_add_u32 s49, s49, s50")
    I("s_lshl_b32 s50, s28, 9\ns_add_u32 s49, s49, s50")
    if O.diag3: stamp(5)
    I("s_waitcnt lgkmcnt(0)")
    if O.diag3: stamp(6)
    srd(32, sX, 1152)
    e.vm(f"buffer_load_dwordx4 {vr(8)}, v1, s[32:35], 0 offen", "xa")
    e.vm(f"buffer_load_dwordx4 {vr(12)}, v1, s[32:35], 0 offen offset:1024", "xb")
    add64(36, sWQ, "s49"); srd(36, 36, 144*8192)
    steps = [(2, (32*Ig + 2*ii)*8192) for Ig in range(4) for ii in range(4)] + [(3, 128*8192), (3, 130*8192)]
    for k, (vo, so) in enumerate(steps):
        if so: I(f"s_mov_b32 s50, {so}")
        e.vm(f"buffer_load_dwordx4 {vr(WB+4*k)}, v{vo}, s[36:39], {'s50' if so else '0'} offen {O.nt}", ("wq", k))
    I("s_barrier")
    stamp(1)
    make_sel(104)
    I("v_lshrrev_b32 v104, 4, v0\nv_lshlrev_b32 v105, 4, v104\nv_lshlrev_b32 v106, 3, v104")
    I(f"s_mul_i32 s50, s48, 288\ns_add_u32 s50, s50, {L_LN1}")
    I("v_add_u32 v150, s50, v105\nv_add_u32 v151, s50, v106")
    I("v_and_b32 v152, 7, v0\nv_lshlrev_b32 v152, 1, v152\nv_add_u32 v152, v152, v104\nv_lshlrev_b32 v152, 4, v152")
    I("s_lshl_b32 s49, s28, 13\ns_lshl_b32 s50, s48, 11\ns_add_u32 s49, s49, s50\ns_and_b32 s50, s58, 3\ns_lshl_b32 s50, s50, 8\ns_add_u32 s49, s49, s50")
    I(f"s_add_u32 s49, s49, {H1 if O.qlocal else H1G}")
    add64(44, sWS, "s49")
    e.vm_wait("xb")
    for half, base in ((0, 8), (1, 12)):
        for d in range(4):
            I(f"v_lshlrev_b32 v{16+8*half+2*d}, 16, v{base+d}")
            I(f"v_and_b32 v{17+8*half+2*d}, 0xffff0000, v{base+d}")
    layernorm(list(range(16, 32)), 8, "0xff", 104, 8)
    e.lg(f"ds_write_b128 v1, {vr(8)} offset:{L_LN1}", "ln")
    I("s_mov_b64 exec, 0xff")
    e.lg(f"ds_write_b128 v1, {vr(12)} offset:{L_LN1+1024}", "ln2")
    I("s_mov_b64 exec, -1")
    e.lg_all()
    for Ig in range(4): e.lg(f"ds_read_b128 {vr(108+4*Ig)}, v150 offset:{64*Ig}", ("pk", Ig))
    e.lg(f"ds_read_b64 v[124:125], v151 offset:256", ("pk", 4))
    stamp(2)
    ACC = 16
    gemv(18, ACC, 20, lambda k: WB + 4*k, lambda k: 108 + k,
         pre=lambda k: e.lg_wait(("pk", k >> 2)) if (k & 3) == 0 else None,
         wait=lambda k: e.vm_wait(("wq", k)))
    stamp(3)
    get_tag_full = True
    lds_spin(F_TAG, 1, 28, 29)
    I(f"v_mov_b32 v28, {L_TAG}\nds_read_b32 v30, v28")
    half_combine(ACC, 20)
    I("s_waitcnt lgkmcnt(0)")
    I(f"v_mov_b32 v28, v{ACC}\nv_mov_b32 v29, v{ACC+1}\nv_mov_b32 v31, v30")
    I(f"v_mov_b32 v20, v{ACC+2}\nv_mov_b32 v21, v{ACC+3}\nv_mov_b32 v22, v30\nv_mov_b32 v23, v30")
    I("s_mov_b32 exec_lo, 0x00ff00ff\ns_mov_b32 exec_hi, 0")
    if O.qlocal:
        I(f"global_store_dwordx4 v152, v[28:31], s[44:45]")
        I(f"global_store_dwordx4 v152, v[20:23], s[44:45] offset:1024")
        add64(44, 44, H1G - H1)
    I(f"global_store_dwordx4 v152, v[28:31], s[44:45] sc1")
    I(f"global_store_dwordx4 v152, v[20:23], s[44:45] offset:1024 sc1")
    I("s_mov_b64 exec, -1")
    stamp(4)
    I("s_cmp_eq_u32 s57, 1"); br("s_cbranch_scc1 L_T_exit")
    I("s_mov_b32 s3, 0")
    e.branch("s_branch L_Tail")
    if O.movewq:
        e.label("L_T0_skip")
        I("s_waitcnt lgkmcnt(0)")
        I("s_barrier")
        make_sel(8)
        I("s_mov_b32 s3, 0")
        e.branch("s_branch L_Tail")
    e.label("L_T_exit")
    finish()

def role_C():
    e.comment("===== wave 1: launch tag, gathers")
    e.label("L_C")
    I("s_setprio 3")
    I("v_lshlrev_b32 v2, 2, v0\nv_mov_b32 v3, 0")
    I("ds_write_b32 v2, v3")
    ids()
    I("s_waitcnt lgkmcnt(0)")
    I("s_barrier")
    add64(34, sWS, EPOCH)
    I("s_load_dword s56, s[34:35], 0")
    I("v_lshlrev_b32 v1, 4, v0")
    if O.prefetch:
        lp = L("pc")
        I("s_getpc_b64 s[32:33]")
        e.label(lp)
        I(f"s_sub_u32 s32, s32, {lp}-{NAME}\ns_subb_u32 s33, s33, 0")
        I("s_lshr_b32 s48, s2, 3\ns_and_b32 s48, s48, PF_MASK\ns_lshl_b32 s48, s48, 10")
        I("v_add_u32 v2, s48, v1\nv_min_u32 v2, CODE_BYTES-16, v2")
        I("global_load_dwordx4 v[16:19], v2, s[32:33]")
    stamp(1)
    I("s_waitcnt lgkmcnt(0)")
    I("s_add_u32 s56, s56, 1")
    I(f"v_mov_b32 v40, s56")
    I(f"v_mov_b32 v3, {L_TAG}\nds_write_b32 v3, v40\ns_waitcnt lgkmcnt(0)")
    lds_set(F_TAG, 1, 2, 3)
    stamp(2)
    if O.local:
        I("s_getreg_b32 s61, hwreg(HW_REG_XCC_ID)\ns_and_b32 s61, s61, 15")
        I(f"s_lshl_b32 s48, s28, 8\ns_add_u32 s48, s48, {HX}"); add64(36, sWS, "s48")
        I("v_mov_b32 v41, s61\nv_mov_b32 v42, v40\nv_mov_b32 v43, s61")
        I("s_lshl_b32 s48, s29, 4\nv_mov_b32 v2, s48\ns_mov_b64 exec, 1")
        I("global_store_dwordx4 v2, v[40:43], s[36:37] sc1")
        I("s_mov_b64 exec, -1")
    stamp(4)
    def qbase(off):
        I(f"s_lshl_b32 s48, s28, 13\ns_add_u32 s48, s48, {off}"); add64(32, sWS, "s48")
        add64(34, 32, 4096)
    qbase(H1 if O.qlocal else H1G)
    lds_spin(F_K, O.nq, 2, 3)
    def mk(b):
        for k in range(8): I(f"global_load_dwordx4 {vr(b+4*k)}, v1, s[{32+2*(k>>2)}:{33+2*(k>>2)}] offset:{1024*(k&3)} sc1")
    def chk():
        I("v_xor_b32 v8, v46, v40")
        for k in range(8):
            for x in ((47,) if k == 0 else (46+4*k, 47+4*k)): I(f"v_bitop3_b32 v8, v8, v{x}, v40 bitop3:0xf6")
        I("v_cmp_ne_u32 vcc, 0, v8")
    pollp(mk, 8, 32, 44, 0, 8, 40, check=chk, switch=(lambda: qbase(H1G)) if O.qlocal else None, tries=1)
    I("s_waitcnt vmcnt(0)")
    for half in range(2):
        pk("add", 16+2*half, 44+4*half, 52+4*half)
        pk("add", 20+2*half, 60+4*half, 68+4*half)
    pk("add", 16, 16, 20); pk("add", 18, 18, 22)
    I("v_cvt_pk_bf16_f32 v8, v16, v17\nv_cvt_pk_bf16_f32 v9, v18, v19")
    I("v_lshlrev_b32 v2, 3, v0")
    I(f"ds_write_b64 v2, v[8:9] offset:{L_Q}")
    I("s_waitcnt lgkmcnt(0)")
    lds_set(F_Q, 1, 2, 3)
    stamp(3)
    I(f"v_and_b32 v15, {TAGM:#x}, v40")
    if O.x_notail: e.branch("s_branch L_C_done")
    I("s_cmp_ge_u32 s29, 13"); br("s_cbranch_scc1 L_C_done")
    I("s_cmp_ge_u32 s29, 9"); br("s_cbranch_scc1 L_WO_C")
    e.branch("s_branch L_FFN_C")
    e.label("L_C_done")
    finish()

def role_T():
    e.comment("===== waves 6..9 (tail index 1..4) and wave 0 after its q slice")
    e.label("L_T")
    ids()
    I("s_cmp_eq_u32 s3, 1\ns_cselect_b32 s3, 8, s3\ns_sub_u32 s3, s3, 5")
    if O.movewq:
        ln = L("nohelp")
        I("s_sub_u32 s48, s29, 13\ns_cmp_lt_u32 s48, 2"); br(f"s_cbranch_scc0 {ln}")
        I("s_sub_u32 s49, s3, 1\ns_cmp_lt_u32 s49, 2"); br(f"s_cbranch_scc0 {ln}")
        I("s_lshl_b32 s48, s48, 1\ns_add_u32 s58, s48, s49\ns_add_u32 s58, s58, 9\ns_mov_b32 s57, 1\ns_setprio 3")
        e.branch("s_branch L_head")
        e.label(ln)
    I("s_waitcnt lgkmcnt(0)")
    I("s_barrier")
    make_sel(8)
    e.label("L_Tail")
    if O.x_notail: finish()
    I("s_setprio 0")
    I("s_cmp_ge_u32 s29, 13"); br("s_cbranch_scc1 L_RED")
    I("s_cmp_ge_u32 s29, 9"); br("s_cbranch_scc1 L_WO")
    if O.gearly: lds_spin(F_GOL, O.ngo, 8, 9)
    elif O.igo == 99: lds_spin(F_HP, 1, 8, 9)
    else: lds_spin(F_GOL, O.ngo, 8, 9)
    e.branch("s_branch L_FFN")

def main_voff(v, rowstride, t):
    I(f"v_lshrrev_b32 v{t}, 4, v0\nv_mul_u32_u24 v{t}, {rowstride}, v{t}\nv_and_b32 v{t+1}, 15, v0\nv_lshl_add_u32 v{v}, v{t+1}, 4, v{t}")
    I(f"s_lshl_b32 s48, s3, 8\nv_add_u32 v{v}, s48, v{v}")

def extra_voff(v, rowstride, t):
    I(f"v_lshrrev_b32 v{t}, 4, v0\nv_bfe_u32 v{t+1}, v0, 3, 1\nv_lshl_add_u32 v{t}, v{t+1}, 2, v{t}\nv_mul_u32_u24 v{t}, {rowstride}, v{t}")
    I(f"v_and_b32 v{t+1}, 7, v0\nv_lshl_add_u32 v{v}, v{t+1}, 4, v{t}\nv_add_u32 v{v}, 1024, v{v}")

def publish_addr(region, stride, prod_sgpr, t):
    I(f"v_and_b32 v{t}, 15, v0\ns_lshl_b32 s48, s3, 4\nv_add_u32 v{t}, s48, v{t}")
    I(f"v_mul_u32_u24 v{t}, {stride}, v{t}")
    I(f"v_lshrrev_b32 v{t+1}, 4, v0\nv_lshl_add_u32 v{t}, v{t+1}, 4, v{t}")
    I(f"s_lshl_b32 s48, s{prod_sgpr}, 5\ns_add_u32 s48, s48, {region}")
    add64(44, sWS, "s48")

def publish_main(acc, vaddr, vtag):
    I("s_mov_b32 exec_hi, 0")
    tag4(acc, vtag)
    I(f"global_store_dwordx4 v{vaddr}, {vr(acc)}, s[44:45] sc1")
    I("s_mov_b32 exec_hi, -1")

def publish_extra(acc, vaddr, vtag, stride):
    I("s_mov_b32 exec_lo, 0x00ff00ff\ns_mov_b32 exec_hi, 0")
    add64(44, 44, 64*stride)
    tag4(acc, vtag)
    I(f"global_store_dwordx4 v{vaddr}, {vr(acc)}, s[44:45] sc1")
    I("s_mov_b64 exec, -1")

def role_WO():
    WB, WX = 92, 60
    e.label("L_WO")
    main_voff(1, 1152, 8)
    extra_voff(2, 1152, 8)
    I("s_lshl_b32 s48, s28, 2\ns_add_u32 s48, s48, s29\ns_sub_u32 s52, s48, 9")
    I("s_mul_i32 s48, s52, 73728")
    add64(32, sWO, "s48"); srd(32, 32, 64*1152)
    publish_addr(H3A, 2048, 52, 8)
    get_tag(12, 10)
    make_msk()
    I(f"v_lshrrev_b32 v9, 4, v0\nv_lshlrev_b32 v9, 6, v9")
    I("s_mov_b32 s47, 0xffff")
    if O.iwo == 99: lds_spin(F_HP, 1, 10, 11)
    else: lds_spin(F_GOE, O.nwo, 10, 11)
    stamp(5)
    for i in range(16):
        if i: I(f"s_mov_b32 s48, {4608*i}")
        I(f"buffer_load_dwordx4 {vr(WB+4*i)}, v1, s[32:35], {'s48' if i else '0'} offen {O.nt}")
    ln = L("wonx")
    I("s_cmp_eq_u32 s3, 0"); br(f"s_cbranch_scc0 {ln}")
    for i in range(8):
        if i: I(f"s_mov_b32 s48, {9216*i}")
        I(f"buffer_load_dwordx4 {vr(WX+4*i)}, v2, s[32:35], {'s48' if i else '0'} offen {O.nt}")
    e.label(ln)
    Y, ACC = 32, 28
    I("s_setprio 3")
    I("s_waitcnt vmcnt(0)")
    stamp(6)
    I("s_barrier")
    stamp(7)
    e.lgq = []
    for q in range(4): e.lg(f"ds_read_b128 {vr(Y+4*q)}, v9 offset:{L_Y+16*q}", ("y", q))
    gemv(16, ACC, 16, lambda i: WB + 4*i, lambda i: Y + i, pre=lambda i: e.lg_wait(("y", i >> 2)) if (i & 3) == 0 else None, bld=build_m)
    publish_main(ACC, 8, 12)
    I("s_cmp_eq_u32 s3, 0"); br("s_cbranch_scc0 L_WO_done")
    AC2 = 48
    gemv(8, AC2, 16, lambda i: WX + 4*i, lambda i: 24 + (i & 1), pre=lambda i: I(f"v_bfi_b32 v{24+(i&1)}, s47, v{Y+2*i}, v{Y+2*i+1}"))
    half_combine(AC2, 20)
    publish_extra(AC2, 8, 12, 2048)
    e.label("L_WO_done")
    finish()

def role_WO_C():
    e.label("L_WO_C")
    I("s_lshl_b32 s48, s28, 2\ns_add_u32 s48, s48, s29\ns_sub_u32 s52, s48, 9")
    I("s_add_u32 s53, s52, 48")
    red_setup()
    I("s_mov_b32 s62, 0")
    if O.local:
        I(f"s_lshl_b32 s48, s28, 8\ns_add_u32 s48, s48, {HX}"); add64(36, sWS, "s48")
        lp, dn = L("xp"), L("xpd")
        I("s_mov_b64 exec, 0xffff")
        e.settle(); e.label(lp)
        I("global_load_dwordx4 v[16:19], v1, s[36:37] sc1")
        budget(dn)
        I("s_waitcnt vmcnt(0)")
        I("v_xor_b32 v8, v16, v40")
        I("v_bitop3_b32 v8, v8, v18, v40 bitop3:0xf6")
        I("v_cmp_ne_u32 vcc, 0, v8"); br(f"s_cbranch_vccnz {lp}")
        e.label(dn)
        I("s_waitcnt vmcnt(0)")
        I("v_cmp_ne_u32 vcc, s61, v17")
        I("s_cmp_eq_u64 vcc, 0\ns_cselect_b32 s62, 1, 0\ns_mov_b64 exec, -1")
    I(f"s_mov_b32 s48, {H2}\ns_mov_b32 s49, {H2G}\ns_cmp_eq_u32 s62, 1\ns_cselect_b32 s49, s48, s49")
    I(f"s_lshl_b32 s48, s52, 12\ns_add_u32 s48, s48, s49"); add64(36, sWS, "s48")
    I(f"s_mov_b32 s48, {HML}\ns_mov_b32 s49, {HMLG}\ns_cmp_eq_u32 s62, 1\ns_cselect_b32 s49, s48, s49")
    I(f"s_lshl_b32 s48, s52, 8\ns_add_u32 s48, s48, s49"); add64(38, sWS, "s48")
    I("v_and_b32 v3, 3, v0\nv_lshlrev_b32 v3, 2, v3\nv_lshrrev_b32 v9, 4, v0\nv_add_u32 v3, v3, v9\nv_lshlrev_b32 v3, 4, v3")
    I(f"v_lshlrev_b32 v12, 2, v0")
    lds_spin(F_HP, 1, 10, 11)
    I("s_waitcnt vmcnt(0)")
    I(f"v_lshlrev_b32 v{RX}, 16, v{RX}")
    stamp(5)
    def mk(b):
        for k in range(4): I(f"global_load_dwordx4 {vr(b+4*k)}, v1, s[36:37] offset:{1024*k} sc1")
        I(f"global_load_dwordx4 {vr(b+16)}, v3, s[38:39] sc1")
    pollp(mk, 5, 20, 44, 16, 10, 15)
    stamp(6)
    I("v_max_f32_dpp v36, v32, v32 quad_perm:[1,0,3,2] row_mask:0xf bank_mask:0xf")
    I("v_max_f32_dpp v36, v36, v36 quad_perm:[2,3,0,1] row_mask:0xf bank_mask:0xf")
    cross_allreduce("max", [36], [37])
    I(f"v_sub_f32 v32, v32, v36\nv_mul_f32 v32, {LOG2E:#x}, v32\nv_exp_f32 v32, v32")
    I("v_mul_f32 v33, v33, v32")
    for r in range(4): I(f"v_mul_f32_dpp v{16+r}, v32, v{16+r} quad_perm:[0,0,0,0] row_mask:0xf bank_mask:0xf")
    I("v_add_f32_dpp v33, v33, v33 quad_perm:[1,0,3,2] row_mask:0xf bank_mask:0xf")
    for r in range(4): I(f"v_fmac_f32_dpp v{16+r}, v32, v{20+r} quad_perm:[1,1,1,1] row_mask:0xf bank_mask:0xf")
    I("v_add_f32_dpp v33, v33, v33 quad_perm:[2,3,0,1] row_mask:0xf bank_mask:0xf")
    for r in range(4): I(f"v_fmac_f32_dpp v{16+r}, v32, v{24+r} quad_perm:[2,2,2,2] row_mask:0xf bank_mask:0xf")
    I("v_mov_b32 v37, v33")
    for r in range(4): I(f"v_fmac_f32_dpp v{16+r}, v32, v{28+r} quad_perm:[3,3,3,3] row_mask:0xf bank_mask:0xf")
    I("v_permlane16_swap_b32 v33, v37")
    I("v_add_f32 v33, v33, v37")
    I("v_permlane32_swap_b32 v16, v18\nv_permlane32_swap_b32 v17, v19")
    I("v_mov_b32 v37, v33")
    pk("add", 16, 16, 18)
    I("v_permlane32_swap_b32 v33, v37")
    I("v_permlane16_swap_b32 v16, v17")
    I("v_add_f32 v33, v33, v37")
    I("v_add_f32 v16, v16, v17")
    I("v_rcp_f32 v33, v33")
    I("v_mul_f32 v16, v16, v33")
    I("v_cvt_pk_bf16_f32 v16, v16, v16")
    I(f"ds_write_b32 v12, v16 offset:{L_Y}")
    I("s_waitcnt lgkmcnt(0)")
    I("s_barrier")
    stamp(7)
    I("s_cmp_lt_u32 s53, 72"); br("s_cbranch_scc1 L_RED_main")
    finish()

RX, RA, RH, RT = 120, 121, 122, 123
def red_setup():
    I(f"s_min_u32 s50, s53, 71")
    I(f"v_lshrrev_b32 v8, 4, v0\nv_and_b32 v9, 1, v0\nv_lshl_add_u32 v9, v9, 2, v8\nv_lshlrev_b32 v9, 1, v9\ns_lshl_b32 s48, s50, 4\nv_add_u32 v{RA}, s48, v9")
    I(f"global_load_ushort v{RX}, v{RA}, {sp(sX)}")
    I(f"s_lshl_b32 s48, s50, 11\ns_add_u32 s48, s48, {H3A}"); add64(40, sWS, "s48")
    I(f"s_mul_i32 s48, s50, 4608\ns_add_u32 s48, s48, {H4}"); add64(42, sWS, "s48")
    add64(44, 42, 4096)
    I("v_lshlrev_b32 v1, 4, v0")
    I(f"v_lshrrev_b32 v8, 1, v0\nv_mul_u32_u24 v8, 2304, v8\nv_and_b32 v9, 1, v0\nv_lshl_add_u32 v{RH}, v9, 4, v8")
    I(f"s_lshl_b32 s48, s50, 5\ns_add_u32 s48, s48, {H3B}"); add64(46, sWS, "s48")
    get_tag(RT, 8)
    for r in range(4): I(f"v_mov_b32 v{96+r}, v{RT}")

def role_RED():
    e.comment("===== column reducers: 8 columns per wave; blocks 0..47 on the reducer workgroups, 48..71 on wave C of output projections")
    e.label("L_RED")
    I("s_cmp_ge_u32 s3, 1"); br("s_cbranch_scc1 L_RED_done")
    I("s_mul_i32 s53, s28, 3\ns_add_u32 s53, s53, s29\ns_sub_u32 s53, s53, 13")
    red_setup()
    lds_spin(F_HP, 1, 12, 13)
    I("s_waitcnt vmcnt(0)"); e.vmq = []
    I(f"v_lshlrev_b32 v{RX}, 16, v{RX}")
    I("s_setprio 3")
    e.settle()
    e.label("L_RED_main")
    stamp(8)
    def mk(b):
        for k in range(2): I(f"global_load_dwordx4 {vr(b+4*k)}, v1, s[40:41] offset:{1024*k} sc1")
    pollp(mk, 2, 8, 60, 16, 12, RT)
    stamp(9)
    pk("add", 16, 16, 20); pk("add", 18, 18, 22)
    rscatter4(16)
    rows_allreduce("add", [16], (2, 4, 8))
    rne1(16, 12)
    I(f"v_add_f32 v{RX}, v{RX}, v16")
    rne1(RX, 12)
    gather_rows(RX, 20)
    if O.nrep == 16: I("s_mov_b32 exec_hi, 0")
    tag4(20, RT)
    I(f"global_store_dwordx4 v{RH}, v[20:23], s[46:47] sc1")
    if O.nrep == 16: I("s_mov_b32 exec_hi, -1")
    stamp(10)
    def mk4(b):
        for k in range(4): I(f"global_load_dwordx4 {vr(b+4*k)}, v1, s[42:43] offset:{1024*k} sc1")
        I("s_mov_b32 exec_hi, 0")
        I(f"global_load_dwordx4 {vr(b+16)}, v1, s[44:45] sc1")
        I("s_mov_b32 exec_hi, -1")
    pollp(mk4, 5, 20, 80, 16, 12, RT)
    stamp(7)
    pk("add", 16, 16, 20); pk("add", 18, 18, 22); pk("add", 24, 24, 28); pk("add", 26, 26, 30)
    pk("add", 16, 16, 32); pk("add", 18, 18, 34)
    pk("add", 16, 16, 24); pk("add", 18, 18, 26)
    rscatter4(16)
    rows_allreduce("add", [16], (2, 4, 8))
    rne1(16, 12)
    I(f"v_add_f32 v{RX}, v{RX}, v16")
    if O.x_pert: I(f"v_add_f32 v{RX}, {O.x_pert}, v{RX}")
    I(f"v_cvt_pk_bf16_f32 v{RX}, v{RX}, v{RX}")
    I("s_mov_b32 exec_lo, 0x00030003\ns_mov_b32 exec_hi, 0x00030003")
    I(f"global_store_short v{RA}, v{RX}, {sp(sOUT)}")
    le = L("noep")
    I("s_cmp_eq_u32 s53, 0"); e.branch(f"s_cbranch_scc0 {le}")
    I(f"v_mov_b32 v12, {L_TAG}\nds_read_b32 v13, v12\nv_mov_b32 v14, 0")
    add64(32, sWS, EPOCH)
    I("s_mov_b64 exec, 1\ns_waitcnt lgkmcnt(0)")
    I("global_store_dword v14, v13, s[32:33]")
    e.label(le)
    I("s_mov_b64 exec, -1")
    e.label("L_RED_done")
    if O.pad:
        lp = L("pad")
        e.label(lp)
        I("s_memrealtime s[92:93]\ns_waitcnt lgkmcnt(0)\ns_sub_u32 s92, s92, s90")
        I(f"s_cmp_lt_u32 s92, {O.pad}"); br(f"s_cbranch_scc1 {lp}")
    finish()

def ffn_ids():
    I("s_lshr_b32 s48, s28, 1\ns_mul_i32 s48, s48, 9\ns_add_u32 s48, s48, s29\ns_lshl_b32 s48, s48, 6")
    I("s_and_b32 s49, s28, 1\ns_lshl_b32 s49, s49, 5\ns_add_u32 s52, s48, s49")

def role_FFN():
    GB, DB, DX = 88, 124, 72
    e.label("L_FFN")
    stamp(7)
    ffn_ids()
    ld, lj = L("nodown"), L("ffj")
    I("v_lshrrev_b32 v16, 4, v0\nv_bfe_u32 v9, v0, 3, 1\nv_lshl_add_u32 v8, v16, 3, v9")
    I("s_mul_i32 s48, s3, 72\nv_add_u32 v8, s48, v8\nv_mul_u32_u24 v8, 9216, v8")
    I("v_and_b32 v9, 3, v0\nv_lshlrev_b32 v9, 4, v9\ns_lshl_b32 s48, s52, 1\nv_add3_u32 v8, v8, v9, s48")
    I("v_bfe_u32 v9, v0, 2, 1\nv_cmp_eq_u32 vcc, 1, v9")
    I(f"v_mov_b32 v10, s{sWG}\nv_mov_b32 v11, s{sWU}\nv_cndmask_b32 v10, v10, v11, vcc")
    I(f"v_mov_b32 v11, s{sWG+1}\nv_mov_b32 v12, s{sWU+1}\nv_cndmask_b32 v11, v11, v12, vcc")
    I("v_add_co_u32 v10, vcc, v10, v8\nv_addc_co_u32 v11, vcc, 0, v11, vcc")
    I(f"s_mov_b32 s48, {2*9216}\ns_mov_b32 s49, 0\ns_mov_b32 s50, {26*9216}\ns_mov_b32 s51, 0")
    I(f"v_mul_u32_u24 v18, {6*9216}, v16\nv_sub_u32 v18, {26*9216}, v18\nv_mov_b32 v19, 0")
    for k in range(9):
        if O.gearly and k == O.gearly:
            lds_spin(F_HP, 1, 20, 21)
            I("s_mov_b32 s51, 0")
        if not O.x_noffn: I(f"global_load_dwordx4 {vr(GB+4*k)}, v[10:11], off {O.ntg}")
        if k < 7: I(f"v_lshl_add_u64 v[10:11], v[10:11], 0, {'s[50:51]' if k == 3 else 's[48:49]'}")
        if k == 7: I("v_lshl_add_u64 v[10:11], v[18:19], 0, v[10:11]")
    I(f"s_mul_i32 s48, s3, 144\ns_add_u32 s48, s48, {L_XLN2}\nv_lshlrev_b32 v8, 4, v16\nv_add_u32 v13, s48, v8")
    I("v_lshlrev_b32 v8, 2, v16\nv_add_u32 v14, s48, v8")
    I(f"v_and_b32 v8, 7, v0\nv_lshlrev_b32 v8, 5, v8\nv_bfe_u32 v9, v0, 4, 1\nv_lshl_add_u32 v8, v9, 4, v8")
    I(f"v_lshrrev_b32 v9, 5, v0\nv_lshl_add_u32 v8, v9, 8, v8\ns_lshl_b32 s48, s3, 9\ns_add_u32 s48, s48, {L_GUP}\nv_add_u32 v15, s48, v8")
    I("s_cmp_ge_u32 s3, 4"); br(f"s_cbranch_scc1 {ld}")
    main_voff(1, 1152, 8)
    extra_voff(2, 1152, 8)
    I("s_mul_i32 s48, s52, 1152"); add64(32, sWD, "s48"); srd(32, 32, 32*1152)
    if O.dwait < 9: I(f"s_waitcnt vmcnt({O.dwait})")
    lx = L("dnx")
    I("s_cmp_eq_u32 s3, 0"); br(f"s_cbranch_scc0 {lx}")
    for i in range(4):
        if i: I(f"s_mov_b32 s48, {9216*i}")
        if not O.x_noffn: I(f"buffer_load_dwordx4 {vr(DX+4*i)}, v2, s[32:35], {'s48' if i else '0'} offen {O.nt}")
    e.label(lx)
    for i in range(8):
        if i: I(f"s_mov_b32 s48, {4608*i}")
        if not O.x_noffn: I(f"buffer_load_dwordx4 {vr(DB+4*i)}, v1, s[32:35], {'s48' if i else '0'} offen {O.nt}")
    I("s_mul_i32 s47, s28, 9\ns_add_u32 s47, s47, s29")
    publish_addr(H4, 4608, 47, 40)
    get_tag(42, 8)
    make_msk()
    I(f"v_lshrrev_b32 v8, 4, v0\nv_lshlrev_b32 v8, 10, v8\nv_and_b32 v9, 15, v0\nv_lshl_add_u32 v43, v9, 4, v8")
    I("s_mov_b32 s47, 0xffff")
    lw = L("w12")
    I("s_cmp_eq_u32 s3, 0"); br(f"s_cbranch_scc1 {lw}")
    I("s_waitcnt vmcnt(8)")
    e.branch(f"s_branch {lj}")
    e.label(lw)
    I("s_waitcnt vmcnt(12)")
    e.branch(f"s_branch {lj}")
    e.label(ld)
    I(f"s_mov_b64 s[44:45], {sp(sWS)}\nv_mov_b32 v40, 0")
    I("s_waitcnt vmcnt(0)")
    e.label(lj)
    I("s_setprio 3")
    stamp(8)
    I("s_barrier")
    if O.diag3: stamp(1)
    e.vmq = []; e.lgq = []
    for H in range(2): e.lg(f"ds_read_b128 {vr(16+4*H)}, v13 offset:{64*H}", ("pk", H))
    e.lg(f"ds_read_b32 v24, v14 offset:128", ("pk", 2))
    ACC = 28
    if O.diag3: I("s_waitcnt lgkmcnt(0)"); stamp(2)
    gemv(9, ACC, 32, lambda k: GB + 4*k, lambda k: 16 + k, pre=lambda k: e.lg_wait(("pk", k >> 2)) if (k & 3) == 0 else None)
    if O.diag3: stamp(3)
    I("s_mov_b32 exec_lo, 0x00ff00ff\ns_mov_b32 exec_hi, 0xff00ff00")
    I(f"ds_write_b128 v15, {vr(ACC)}")
    I("s_mov_b64 exec, -1")
    I("s_waitcnt lgkmcnt(0)")
    if O.diag3: stamp(4)
    I("s_barrier")
    I("s_cmp_ge_u32 s3, 4"); br("s_cbranch_scc1 L_FFN_done")
    stamp(9)
    e.lgq = []
    for k in range(4): e.lg(f"ds_read_b128 {vr(12+4*k)}, v43 offset:{L_GUP+256*k}", ("gp", k))
    e.lg_wait(("gp", 1))
    pk("add", 12, 12, 16); pk("add", 14, 14, 18)
    e.lg_wait(("gp", 3))
    pk("add", 20, 20, 24); pk("add", 22, 22, 26)
    pk("add", 12, 12, 20); pk("add", 14, 14, 22)
    rscatter4(12)
    rne1(12, 13)
    I("v_mul_f32 v14, v12, v12")
    I("v_mov_b32 v15, 0x3d372713")
    I("v_mov_b32_dpp v13, v12 row_ror:8 row_mask:0xf bank_mask:0xf")
    I("v_fma_f32 v14, v14, v15, 1.0")
    I("v_mul_f32 v14, v14, v12")
    I("v_mul_f32 v14, 0xc0135761, v14")
    I("v_exp_f32 v14, v14")
    I("v_add_f32 v14, 1.0, v14")
    I("v_rcp_f32 v14, v14")
    I("v_mul_f32 v12, v12, v14")
    rne1(12, 14)
    I("v_mul_f32 v12, v12, v13")
    I("v_cvt_pk_bf16_f32 v16, v12, v12")
    I("s_waitcnt vmcnt(0)")
    stamp(10)
    ACC2 = 28
    gemv(8, ACC2, 20, lambda i: DB + 4*i, lambda i: 18 + (i & 1),
         pre=lambda i: I(f"v_mov_b32_dpp v{18+(i&1)}, v16 row_newbcast:{i} row_mask:0xf bank_mask:0xf"), bld=build_m)
    publish_main(ACC2, 40, 42)
    I("s_cmp_eq_u32 s3, 0"); br("s_cbranch_scc0 L_FFN_done")
    AC3 = 48
    def pre4(i):
        I(f"v_mov_b32_dpp v17, v16 row_newbcast:{2*i} row_mask:0xf bank_mask:0xf")
        I(f"v_mov_b32_dpp v18, v16 row_newbcast:{2*i+1} row_mask:0xf bank_mask:0xf")
        I(f"v_bfi_b32 v{32+(i&1)}, s47, v17, v18")
    gemv(4, AC3, 20, lambda i: DX + 4*i, lambda i: 32 + (i & 1), pre=pre4)
    half_combine(AC3, 52)
    publish_extra(AC3, 40, 42, 4608)
    e.label("L_FFN_done")
    finish()

def role_FFN_C():
    e.label("L_FFN_C")
    I("s_mul_i32 s47, s28, 9\ns_add_u32 s47, s47, s29")
    I(f"s_and_b32 s48, s47, {O.nrep-1}\ns_mul_i32 s48, s48, 2304\ns_add_u32 s48, s48, {H3B}")
    add64(36, sWS, "s48")
    for r in range(4): I(f"v_mov_b32 v{68+r}, v15")
    I(f"v_lshlrev_b32 v2, 3, v0")
    lds_spin(F_HP, 1, 8, 9)
    stamp(5)
    def mk(b):
        I(f"global_load_dwordx4 {vr(b)}, v1, s[36:37] sc1")
        I(f"global_load_dwordx4 {vr(b+4)}, v1, s[36:37] offset:1024 sc1")
        I("s_mov_b64 exec, 0xffff")
        I(f"global_load_dwordx4 {vr(b+8)}, v1, s[36:37] offset:2048 sc1")
        I("s_mov_b64 exec, -1")
    pollp(mk, 3, 12, 60, 16, 8, 15)
    stamp(6)
    layernorm(list(range(16, 28)), 8, "0xffff", 32, 52)
    I(f"ds_write_b64 v2, v[52:53] offset:{L_XLN2}\nds_write_b64 v2, v[54:55] offset:{L_XLN2+512}")
    I("s_mov_b64 exec, 0xffff")
    I(f"ds_write_b64 v2, v[56:57] offset:{L_XLN2+1024}")
    I("s_mov_b64 exec, -1")
    I("s_waitcnt lgkmcnt(0)")
    I("s_barrier")
    stamp(7)
    I("s_barrier")
    finish()

def build():
    prologue()
    role_T0_head()
    role_A()
    role_C()
    role_T()
    role_WO()
    role_WO_C()
    role_RED()
    role_FFN_C()
    role_FFN()
    e.label("L_end")
    I("s_endpgm")
    e.raw("L_code_end:")
    head = []
    ref = open("sequential_preLN__sliding_block_cached__geglu_ffn__decode.s.ref").read().split("\n")
    for l in ref:
        if l.startswith("; @launch"): break
        if l.startswith("; Override") or l.startswith("; grid="): continue
        head.append(l)
    head.append(f"; @launch grid=(256,1,1) block=(576,1,1) lds={LDS_BYTES}")
    head.append('.amdgcn_target "amdgcn-amd-amdhsa--gfx950"')
    head.append(".text")
    head.append(f".set CODE_BYTES, L_code_end-{NAME}")
    head.append(".set PF_MASK, 15")
    tail = f""".section .rodata,"a"
.p2align 6
.amdhsa_kernel {NAME}
  .amdhsa_next_free_vgpr 168
  .amdhsa_next_free_sgpr 96
  .amdhsa_accum_offset 168
  .amdhsa_group_segment_fixed_size 0
  .amdhsa_kernarg_size 96
  .amdhsa_user_sgpr_count 2
  .amdhsa_user_sgpr_kernarg_segment_ptr 1
  .amdhsa_system_sgpr_workgroup_id_x 1
  .amdhsa_float_denorm_mode_32 3
.end_amdhsa_kernel
"""
    return "\n".join(head) + "\n" + e.text() + tail

if __name__ == "__main__":
    out = sys.argv[1]
    for a in sys.argv[2:]:
        k, v = a.split("=")
        cur = getattr(O, k)
        setattr(O, k, (v == "1") if isinstance(cur, bool) else (int(v) if isinstance(cur, int) else v))
    txt = build()
    open(out, "w").write(txt)
    print(f"wrote {out}: {len(txt)} bytes, nops {e.nnop}, lds {LDS_BYTES}")
```

```python
import sys, os
sys.path.insert(0, os.path.dirname(os.path.abspath(__file__)))
from emit import Emitter

NAME = "sequential_preLN__sliding_block_cached__geglu_ffn__decode_kernel"

class Opt:
    diag = False
    diag2 = False
    light = False
    diag3 = False
    win = 7
    igo = 15
    iwo = 7
    ngo = 4
    nwo = 4
    iq = 16
    nq = 1
    wowin = 16
    nt = "nt"
    ntg = "nt"
    budget = 200000
    prefetch = True
    krot = 17
    nrep = 32
    gearly = 4
    qlocal = True
    aprio = 0
    pfpol = ""
    pf0 = True
    movewq = False
    local = True
    npoll = 1
    x_notail = False
    x_pert = ""
    x_noffn = False
    x_h2plain = False
    dwait = 9
    pfall = 0
    pfslow = True
    pfnt = ""
    pad = 0
O = Opt()

HML  = 0x10000
H3B  = 0x1D0000
H2   = 0x20000
H3A  = 0x60000
H4   = 0x84000
EPOCH = 0xE0000
H1   = 0xE8000
H1G, H2G, HMLG = 0x110000, 0x140000, 0x180000
HX = 0x1C0000
TAGM = 0x3ff
F_TAG, F_Q, CNT_O, F_GOE, F_GOL, F_X, CNT_GU, CNT_S, F_PUB, F_Y, F_K, F_HP = 0, 4, 8, 12, 16, 20, 24, 28, 32, 36, 40, 44
L_TAG = 48
L_Y = 0x80
L_STAT = 0x180
L_LN1, L_Q, L_OP, L_XLN2, L_GUP = 0x200, 0x700, 0xA00, 0x1A00, 0x1F00
LDS_BYTES = L_GUP + 16*256

sX, sK, sV, sWQ, sWO, sBX, sWG, sWU, sWD, sOUT, sDBG, sWS = 4, 6, 8, 10, 12, 14, 16, 18, 20, 22, 24, 26
sJ, sS, sBUD, sTAGM = 28, 29, 30, 31
sT3 = 51
LOG2E = 0x3fb8aa3b
SEL = 4
e = Emitter()
I = e.I
uid = [0]
def L(p):
    uid[0] += 1
    return f"L_{p}_{uid[0]}"
def sp(r): return f"s[{r}:{r+1}]"
def vr(r, n=4): return f"v[{r}:{r+n-1}]"
def br(text):
    e.raw("  " + text); e._advance(1)

def add64(d, b, off):
    I(f"s_add_u32 s{d}, s{b}, {off}")
    I(f"s_addc_u32 s{d+1}, s{b+1}, 0")

def srd(d, base, nrec):
    if d != base: I(f"s_mov_b32 s{d}, s{base}")
    I(f"s_and_b32 s{d+1}, s{base+1}, 0xffff")
    I(f"s_mov_b32 s{d+2}, {nrec}")
    I(f"s_mov_b32 s{d+3}, 0x20000")

def stamp(k):
    if O.diag and (k == 0 or not O.light): I(f"s_memrealtime s[{64+2*k}:{65+2*k}]")

def stamps_dyn():
    I("s_memrealtime s[86:87]")
    I("s_waitcnt lgkmcnt(0)")
    I("s_mov_b64 exec, 1")
    add64(62, sWS, "0x20000000")
    I("s_lshl_b32 s61, s60, 8\ns_add_u32 s61, s61, s2\ns_lshl_b32 s61, s61, 7")
    add64(62, 62, "s61")
    I("v_mov_b32 v2, 0")
    for k in ((0, 11) if O.light else range(12)):
        I(f"v_mov_b32 v4, s{64+2*k}\nv_mov_b32 v5, s{65+2*k}")
        I(f"global_store_dwordx2 v2, v[4:5], s[62:63] offset:{8*k}")
        I("s_nop 1")

def finish(role=None):
    if O.diag:
        I("s_mov_b32 s60, s59")
        stamps_dyn()
    I("s_endpgm")

def budget(done):
    I(f"s_cmp_eq_u32 s{sBUD}, 0")
    br(f"s_cbranch_scc1 {done}")
    I(f"s_sub_u32 s{sBUD}, s{sBUD}, 1")

def lds_spin(addr, val, vt=2, va=3):
    lp, done = L("spin"), L("spun")
    I(f"v_mov_b32 v{va}, {addr}")
    e.settle()
    e.label(lp)
    I(f"ds_read_b32 v{vt}, v{va}")
    budget(done)
    I("s_waitcnt lgkmcnt(0)")
    I(f"v_readfirstlane_b32 s{sT3}, v{vt}")
    I(f"s_cmp_ge_u32 s{sT3}, {val}")
    br(f"s_cbranch_scc0 {lp}")
    e.label(done)
    I("s_waitcnt lgkmcnt(0)")
    e.lgq = []

def lds_set(addr, val=1, vt=2, va=3):
    I(f"v_mov_b32 v{va}, {addr}\nv_mov_b32 v{vt}, {val}")
    I(f"ds_write_b32 v{va}, v{vt}")

def lds_inc(addr, va, vt):
    I(f"v_mov_b32 v{va}, {addr}\nv_mov_b32 v{vt}, 1\ns_mov_b64 exec, 1\nds_add_u32 v{va}, v{vt}\ns_mov_b64 exec, -1")

def check_set(src, dst, n, vt, vtag, mask=TAGM):
    for k in range(n): I(f"v_xor_b32 v{dst+k}, v{src+k}, v{vtag}")
    r = [dst+k for k in range(n)]
    I(f"v_or3_b32 v{vt}, v{r[0]}, v{r[1]}, v{r[2]}")
    q = r[3:]
    while len(q) >= 2:
        I(f"v_or3_b32 v{vt}, v{vt}, v{q[0]}, v{q[1]}"); q = q[2:]
    if q: I(f"v_or_b32 v{vt}, v{vt}, v{q[0]}")
    I(f"v_and_b32 v{vt}, {mask:#x}, v{vt}")
    I(f"v_cmp_ne_u32 vcc, 0, v{vt}")

def pollp(mk, nloads, n, setA, dst, vt, vtag, switch=None, check=None, tries=1):
    lp, done = L("poll"), L("polled")
    if switch: I(f"s_mov_b32 s57, {tries}")
    e.settle(); e.label(lp)
    if switch:
        lk = L("keep")
        I("s_sub_u32 s57, s57, 1"); br(f"s_cbranch_scc0 {lk}")
        switch()
        I("s_mov_b32 s57, 0x7fffffff")
        e.label(lk)
    mk(setA)
    budget(done)
    I("s_waitcnt vmcnt(0)")
    if check: check()
    else: check_set(setA, dst, n, vt, vtag)
    br(f"s_cbranch_vccnz {lp}")
    e.label(done)
    e.vmq = []

def get_tag(v, t):
    lds_spin(F_TAG, 1, t, t+1)
    I(f"v_mov_b32 v{t}, {L_TAG}")
    I(f"ds_read_b32 v{v}, v{t}")
    I(f"s_movk_i32 s{sTAGM}, {TAGM:#x}")
    I("s_waitcnt lgkmcnt(0)")
    I(f"v_and_b32 v{v}, {TAGM:#x}, v{v}")

def tag4(r, vtag):
    for k in range(4): I(f"v_bfi_b32 v{r+k}, s{sTAGM}, v{vtag}, v{r+k}")

def rows_allreduce(op, vs, steps=(8, 4, 2, 1)):
    for k in steps:
        for v in vs: I(f"v_{op}_f32_dpp v{v}, v{v}, v{v} row_ror:{k} row_mask:0xf bank_mask:0xf")

def cross_allreduce(op, vs, ts):
    for sw in ("v_permlane16_swap_b32", "v_permlane32_swap_b32"):
        for v, t in zip(vs, ts): I(f"v_mov_b32 v{t}, v{v}")
        for v, t in zip(vs, ts): I(f"{sw} v{v}, v{t}")
        for v, t in zip(vs, ts): I(f"v_{op}_f32 v{v}, v{v}, v{t}")

def allreduce(op, vs, ts):
    rows_allreduce(op, vs); cross_allreduce(op, vs, ts)

def rscatter4(r):
    I(f"v_permlane32_swap_b32 v{r}, v{r+2}")
    I(f"v_permlane32_swap_b32 v{r+1}, v{r+3}")
    I(f"v_pk_add_f32 v[{r}:{r+1}], v[{r}:{r+1}], v[{r+2}:{r+3}]")
    I(f"v_permlane16_swap_b32 v{r}, v{r+1}")
    I(f"v_add_f32 v{r}, v{r}, v{r+1}")

def gather_rows(src, dst):
    I(f"v_mov_b32 v{dst}, v{src}\nv_mov_b32 v{dst+1}, v{src}")
    I(f"v_permlane16_swap_b32 v{dst}, v{dst+1}")
    I(f"v_mov_b32 v{dst+2}, v{dst}\nv_mov_b32 v{dst+3}, v{dst+1}")
    I(f"v_permlane32_swap_b32 v{dst}, v{dst+2}\nv_permlane32_swap_b32 v{dst+1}, v{dst+3}")

def rne1(v, t):
    I(f"v_cvt_pk_bf16_f32 v{t}, v{v}, v{v}")
    I(f"v_lshlrev_b32 v{v}, 16, v{t}")

def rne2(a, b, t):
    I(f"v_cvt_pk_bf16_f32 v{t}, v{a}, v{b}")
    I(f"v_lshlrev_b32 v{a}, 16, v{t}")
    I(f"v_and_b32 v{b}, 0xffff0000, v{t}")

def pk(op, d, a, b, mods=""):
    I(f"v_pk_{op}_f32 v[{d}:{d+1}], v[{a}:{a+1}], v[{b}:{b+1}] {mods}".rstrip())

def make_sel(t):
    m, b, h, c = t, t+1, t+2, t+3
    I(f"v_and_b32 v{m}, 15, v0")
    I(f"v_lshrrev_b32 v{b}, 3, v{m}")
    I(f"v_mul_u32_u24 v{b}, 0x0202, v{b}")
    I(f"v_add_u32 v{b}, 0x0100, v{b}")
    I(f"v_lshlrev_b32 v{h}, 16, v{b}")
    I(f"v_or_b32 v{h}, 0x0c0c, v{h}")
    I(f"v_or_b32 v{b}, 0x0c0c0000, v{b}")
    I(f"v_and_b32 v{c}, 1, v{m}")
    I(f"v_cmp_eq_u32 vcc, 1, v{c}")
    I(f"v_cndmask_b32 v{b}, v{b}, v{h}, vcc")
    I(f"v_bfe_u32 v{m}, v{m}, 1, 2")
    I(f"v_mov_b32 v{c}, 0x0c0c0c0c")
    for d in range(4):
        I(f"v_cmp_eq_u32 vcc, {d}, v{m}")
        I(f"v_cndmask_b32 v{SEL+d}, v{c}, v{b}, vcc")

MSK = 156
def make_msk():
    I(f"v_mov_b32 v{MSK}, -1")
    for d in (1, 2, 3): I(f"v_perm_b32 v{MSK+d}, v{MSK}, v{MSK}, v{SEL+d}")
    I(f"v_perm_b32 v{MSK}, v{MSK}, v{MSK}, v{SEL}")

def build_m(a, src):
    for d in range(4): I(f"v_and_b32 v{a+d}, v{src}, v{MSK+d}")

def build_a(a, src):
    for d in range(4): I(f"v_perm_b32 v{a+d}, v{src}, v{src}, v{SEL+d}")

def mfma(acc, a, b, first=False):
    c = "0" if first else vr(acc)
    I(f"v_mfma_f32_16x16x32_bf16 {vr(acc)}, {vr(a)}, {vr(b)}, {c}")

def gemv(n, acc, abuf, wreg, src, pre=None, wait=None, bld=None):
    def build(i):
        if pre: pre(i)
        (bld or build_a)(abuf + 4*(i & 1), src(i))
    build(0)
    if n > 1: build(1)
    for i in range(n):
        if wait: wait(i)
        mfma(acc, abuf + 4*(i & 1), wreg(i), first=(i == 0))
        if i + 2 < n: build(i + 2)

def layernorm(f, nA, maskB, t, out):
    n = len(f); f0 = f[0]
    s1, s2, u, w, mm, rr = t, t+1, t+2, t+3, t+4, t+6
    d = t + 8
    I(f"v_readlane_b32 s48, v{f0}, 0")
    I("s_mov_b32 s49, s48")
    for k in range(0, nA, 2): I(f"v_pk_add_f32 v[{d+k}:{d+k+1}], v[{f0+k}:{f0+k+1}], s[48:49] neg_lo:[0,1] neg_hi:[0,1]")
    for k in range(nA, n): I(f"v_mov_b32 v{d+k}, 0")
    I(f"s_mov_b64 exec, {maskB}")
    for k in range(nA, n, 2): I(f"v_pk_add_f32 v[{d+k}:{d+k+1}], v[{f0+k}:{f0+k+1}], s[48:49] neg_lo:[0,1] neg_hi:[0,1]")
    I("s_mov_b64 exec, -1")
    pk("mul", mm, d, d)
    pk("add", rr, d, d+2)
    for k in range(2, n, 2): I(f"v_pk_fma_f32 v[{mm}:{mm+1}], v[{d+k}:{d+k+1}], v[{d+k}:{d+k+1}], v[{mm}:{mm+1}]")
    for k in range(4, n, 2): pk("add", rr, rr, d+k)
    I(f"v_add_f32 v{s2}, v{mm}, v{mm+1}\nv_add_f32 v{s1}, v{rr}, v{rr+1}")
    allreduce("add", [s1, s2], [u, w])
    I(f"v_mul_f32 v{s1}, 0x3ae38e39, v{s1}\nv_mul_f32 v{s2}, 0x3ae38e39, v{s2}")
    I(f"v_fma_f32 v{s2}, -v{s1}, v{s1}, v{s2}")
    I(f"v_add_f32 v{s1}, s48, v{s1}")
    I(f"v_max_f32 v{s2}, 0, v{s2}")
    I(f"v_cvt_pk_bf16_f32 v{u}, v{s1}, v{s2}")
    I(f"v_and_b32 v{s2}, 0xffff0000, v{u}\nv_lshlrev_b32 v{mm}, 16, v{u}")
    I(f"v_add_f32 v{s2}, 0x3727c5ac, v{s2}")
    I(f"v_mov_b32 v{mm+1}, v{mm}")
    rne1(s2, u)
    I(f"v_sqrt_f32 v{s2}, v{s2}")
    for k in range(0, n, 2): I(f"v_pk_add_f32 v[{d+k}:{d+k+1}], v[{f0+k}:{f0+k+1}], v[{mm}:{mm+1}] neg_lo:[0,1] neg_hi:[0,1]")
    rne1(s2, u)
    I(f"v_rcp_f32 v{rr}, v{s2}")
    for k in range(0, n, 2): I(f"v_cvt_pk_bf16_f32 v{f0+k}, v{d+k}, v{d+k+1}")
    I(f"v_mov_b32 v{rr+1}, v{rr}")
    for k in range(0, n, 2):
        I(f"v_lshlrev_b32 v{d+k}, 16, v{f0+k}\nv_and_b32 v{d+k+1}, 0xffff0000, v{f0+k}")
    for k in range(0, n, 2): pk("mul", d+k, d+k, rr)
    for k in range(0, n, 2): I(f"v_cvt_pk_bf16_f32 v{out+k//2}, v{d+k}, v{d+k+1}")

def ids():
    I("s_and_b32 s28, s2, 7\ns_lshl_b32 s28, s28, 1\ns_bfe_u32 s29, s2, 0x10003\ns_add_u32 s28, s28, s29")
    I("s_lshr_b32 s29, s2, 4")
    I(f"s_mov_b32 s{sBUD}, {O.budget}")

def prologue():
    e.raw(f".globl {NAME}\n.p2align 8\n.type {NAME},@function\n{NAME}:")
    I("s_cmp_ge_u32 s2, 256")
    br("s_cbranch_scc1 L_end")
    I("s_load_dwordx16 s[4:19], s[0:1], 0")
    I("s_load_dwordx8 s[20:27], s[0:1], 64")
    I("v_lshrrev_b32 v1, 6, v0")
    I("v_and_b32 v0, 63, v0")
    I("v_readfirstlane_b32 s3, v1")
    if O.prefetch and O.pf0:
        lp, ls = L("pc0"), L("nopf")
        I("s_cmp_lt_u32 s2, 16"); br(f"s_cbranch_scc0 {ls}")
        I("s_getpc_b64 s[32:33]")
        e.label(lp)
        I(f"s_sub_u32 s32, s32, {lp}-{NAME}\ns_subb_u32 s33, s33, 0")
        I("s_lshr_b32 s48, s2, 3\ns_mul_i32 s48, s48, 9\ns_add_u32 s48, s48, s3\ns_lshl_b32 s48, s48, 10")
        I("v_lshlrev_b32 v2, 4, v0\nv_add_u32 v2, s48, v2\nv_min_u32 v2, CODE_BYTES-16, v2")
        I(f"global_load_dwordx4 v[160:163], v2, s[32:33] {O.pfpol}")
        e.label(ls)
    if O.pad: I("s_memrealtime s[90:91]")
    if O.diag:
        for k in range(66, 88): I(f"s_mov_b32 s{k}, 0")
        I("s_mov_b32 s59, s3")
    stamp(0)
    I("s_cmp_eq_u32 s3, 8"); br("s_cbranch_scc1 L_C")
    I("s_cmp_ge_u32 s3, 6"); br("s_cbranch_scc1 L_T")
    I("s_cmp_eq_u32 s3, 1"); br("s_cbranch_scc1 L_T")
    I("s_cmp_ge_u32 s3, 2"); br("s_cbranch_scc1 L_A")

def merge_tile(t, DA, S0):
    d0, d1 = DA + 8*(t & 1), DA + 8*(t & 1) + 4
    for h in range(2):
        I(f"v_cndmask_b32 v{d0+h}, v{d0+h}, v{d1+h}, s[56:57]")
        I(f"v_cndmask_b32 v{d0+2+h}, v{d1+2+h}, v{d0+2+h}, s[56:57]")
    for h in range(2):
        I(f"v_add_f32_dpp v{S0+h}, v{d0+2+h}, v{d0+h} quad_perm:[1,0,3,2] row_mask:{1<<t:#x} bank_mask:0xf")

def role_A():
    KB, VB = 40, 104
    def KR(t, ee, l): return KB + 4*(4*t + 2*ee + l)
    def VR(i): return VB + 4*i
    QA, DA, S0, S1, P = 8, 16, 32, 33, 34
    QADDR, OADDR, HOFF = 35, 36, 37
    e.label("L_A")
    I("s_setprio 2")
    ids()
    I("s_sub_u32 s3, s3, 2")
    if O.aprio:
        lpz = L("prio")
        I(f"s_cmp_ge_u32 s3, {4-O.aprio}"); br(f"s_cbranch_scc0 {lpz}")
        I("s_setprio 3")
        e.label(lpz)
    I("v_bfe_u32 v8, v0, 1, 3\nv_lshlrev_b32 v8, 8, v8")
    I("v_lshrrev_b32 v9, 4, v0")
    I("v_and_b32 v10, 1, v0")
    I("v_lshl_add_u32 v11, v9, 1, v10\nv_lshl_add_u32 v1, v11, 4, v8")
    I("s_lshl_b32 s49, s3, 4\ns_add_u32 s49, s49, s29")
    I(f"s_lshl_b32 s48, s28, 24\ns_add_u32 s48, s48, {61440*256}")
    I("v_xor_b32 v10, 1, v10\nv_lshl_add_u32 v11, v9, 1, v10\nv_lshl_add_u32 v2, v11, 4, v8")
    I("s_lshl_b32 s40, s49, 11")
    def grp(k): I(f"s_add_u32 s50, s49, {O.krot*k}\ns_and_b32 s50, s50, 63\ns_add_u32 s50, s50, {64*k}\ns_lshl_b32 s{40+k}, s50, 11")
    for k in range(1, 8): grp(k)
    I("s_waitcnt lgkmcnt(0)")
    if O.diag3: stamp(9)
    add64(32, sK, "s48"); srd(32, 32, 0x100000)
    I("s_barrier")
    if O.diag3: stamp(10)
    seq = [("K", k) for k in range(16)] + [("V", i) for i in range(16)]
    def issue(n):
        kind, k = seq[n]
        if kind == "K":
            t, ee, l = k >> 2, (k >> 1) & 1, k & 1
            e.vm(f"buffer_load_dwordx4 {vr(KR(t,ee,l))}, v{1+ee}, s[32:35], s{40+2*t+ee} offen offset:{l*128} {O.nt}", ("K", k))
        else:
            e.vm(f"buffer_load_dwordx4 {vr(VR(k))}, v{(3, 31)[k & 1]}, s[36:39], 0 offen offset:{256*(k>>1)} {O.nt}", ("V", k))
            for idx, flag in ((O.iwo, F_GOE), (O.igo, F_GOL)):
                if k == idx: lds_inc(flag, 38, 39)
        if n == O.iq: lds_inc(F_K, 38, 39)
    for n in range(O.win): issue(n)
    stamp(1)
    for p_, vd in ((0, 3), (1, 31)):
        I(f"v_mov_b32 v{vd}, s{40+p_}")
        for g in range(1, 4):
            I(f"v_cmp_eq_u32 vcc, {g}, v9\nv_mov_b32 v11, s{40+2*g+p_}\nv_cndmask_b32 v{vd}, v{vd}, v11, vcc")
        I(f"v_and_b32 v10, 15, v0\nv_lshl_add_u32 v{vd}, v10, 4, v{vd}")
    add64(36, sV, "s48"); srd(36, 36, 0x100000)
    make_sel(20)
    I(f"v_and_b32 v20, 1, v0\nv_lshlrev_b32 v20, 8, v20")
    I("v_bfe_u32 v21, v0, 1, 1\nv_lshl_add_u32 v21, v9, 1, v21")
    I(f"v_lshl_add_u32 v{QADDR}, v21, 4, v20")
    I("s_mov_b32 s56, 0xaaaaaaaa\ns_mov_b32 s57, 0xaaaaaaaa")
    I("v_and_b32 v20, 15, v0\nv_lshlrev_b32 v20, 1, v20\nv_and_b32 v21, 1, v9\nv_add_u32 v20, v20, v21")
    I("v_lshrrev_b32 v21, 1, v9\nv_lshl_add_u32 v20, v21, 5, v20")
    I(f"s_lshl_b32 s49, s3, 10\ns_add_u32 s49, s49, {L_OP}\nv_lshl_add_u32 v{OADDR}, v20, 4, s49")
    I(f"v_lshlrev_b32 v20, 12, v9\nv_and_b32 v21, 15, v0\nv_lshl_add_u32 v{HOFF}, v21, 4, v20")
    I(f"s_lshl_b32 s49, s28, 14\ns_lshl_b32 s50, s29, 8\ns_add_u32 s49, s49, s50\ns_add_u32 s49, s49, {H2 if O.local else H2G}")
    add64(52, sWS, "s49")
    I(f"s_lshl_b32 s49, s28, 10\ns_lshl_b32 s50, s29, 4\ns_add_u32 s49, s49, s50\ns_add_u32 s49, s49, {HML if O.local else HMLG}")
    add64(54, sWS, "s49")
    nxt = O.win
    while nxt < 32:
        e.vm_wait_n(O.win - 1); issue(nxt); nxt += 1
    stamp(2)
    lds_spin(F_Q, 1, 38, 39)
    stamp(3)
    I(f"v_mov_b32 v38, {L_TAG}\nds_read_b32 v39, v38\ns_movk_i32 s{sTAGM}, {TAGM:#x}")
    e.lg(f"ds_read_b128 {vr(QA)}, v{QADDR} offset:{L_Q}", "qa0")
    e.lg(f"ds_read_b128 {vr(QA+4)}, v{QADDR} offset:{L_Q+128}", "qa1")
    e.vm_wait(("K", 15))
    e.lg_all()
    I(f"v_and_b32 v39, {TAGM:#x}, v39")
    for t in range(4):
        d0, d1 = DA + 8*(t & 1), DA + 8*(t & 1) + 4
        for ee, d in ((0, d0), (1, d1)): mfma(d, QA, KR(t, ee, 0), first=True)
        for ee, d in ((0, d0), (1, d1)): mfma(d, QA+4, KR(t, ee, 1))
        if t == 0: I("v_readfirstlane_b32 s58, v39")
        if t >= 1: merge_tile(t-1, DA, S0)
    merge_tile(3, DA, S0)
    rne2(S0, S1, 20)
    I(f"v_mul_f32 v{S0}, 0x3db504f3, v{S0}\nv_mul_f32 v{S1}, 0x3db504f3, v{S1}")
    rne2(S0, S1, 20)
    M0, L0, M1, L1 = 24, 25, 26, 27
    I(f"v_mov_b32 v{M0}, v{S0}\nv_mov_b32 v{M1}, v{S1}")
    allreduce("max", [M0, M1], [20, 21])
    I(f"v_sub_f32 v{S0}, v{S0}, v{M0}\nv_sub_f32 v{S1}, v{S1}, v{M1}")
    I(f"v_mul_f32 v{S0}, {LOG2E:#x}, v{S0}\nv_mul_f32 v{S1}, {LOG2E:#x}, v{S1}")
    I(f"v_exp_f32 v{L0}, v{S0}\nv_exp_f32 v{L1}, v{S1}")
    I(f"v_cvt_pk_bf16_f32 v{P}, v{L0}, v{L1}")
    stamp(4)
    ACC = 16
    def bld(i):
        I(f"v_mov_b32_dpp v{20+(i&1)}, v{P} row_newbcast:{i} row_mask:0xf bank_mask:0xf")
        build_a(QA + 4*(i & 1), 20 + (i & 1))
    def pv(i):
        e.vm_wait(("V", i))
        mfma(ACC, QA + 4*(i & 1), VR(i), first=(i == 0))
        if i + 2 < 16: bld(i + 2)
    bld(0); bld(1)
    for i in range(4): pv(i)
    allreduce("add", [L0, L1], [22, 23])
    I(f"s_lshl_b32 s48, s3, 4\ns_add_u32 s48, s48, {L_STAT}\nv_mov_b32 v22, s48")
    I("s_mov_b64 exec, 1")
    e.lg(f"ds_write_b128 v22, {vr(M0)}", "st")
    I(f"v_mov_b32 v22, {CNT_S}\nv_mov_b32 v23, 1")
    e.lg_wait("st")
    I("ds_add_u32 v22, v23")
    I("s_mov_b64 exec, -1")
    for i in range(4, 8): pv(i)
    lds_spin(CNT_S, 4, 22, 23)
    I(f"v_mov_b32 v22, {L_STAT}")
    ST = 40
    for w in range(4): e.lg(f"ds_read_b128 {vr(ST+4*w)}, v22 offset:{16*w}", ("sw", w))
    e.lg_wait(("sw", 3))
    GM0, GM1, GL0, GL1, F = 56, 57, 58, 59, 60
    I(f"v_max3_f32 v{GM0}, v{ST}, v{ST+4}, v{ST+8}\nv_max3_f32 v{GM1}, v{ST+2}, v{ST+6}, v{ST+10}")
    I(f"v_max_f32 v{GM0}, v{GM0}, v{ST+12}\nv_max_f32 v{GM1}, v{GM1}, v{ST+14}")
    for w in range(4): I(f"v_sub_f32 v{ST+4*w}, v{ST+4*w}, v{GM0}\nv_sub_f32 v{ST+4*w+2}, v{ST+4*w+2}, v{GM1}")
    for w in range(4): I(f"v_mul_f32 v{ST+4*w}, {LOG2E:#x}, v{ST+4*w}\nv_mul_f32 v{ST+4*w+2}, {LOG2E:#x}, v{ST+4*w+2}")
    for w in range(4): I(f"v_exp_f32 v{ST+4*w}, v{ST+4*w}\nv_exp_f32 v{ST+4*w+2}, v{ST+4*w+2}")
    I(f"v_sub_f32 v{M0}, v{M0}, v{GM0}\nv_sub_f32 v{M1}, v{M1}, v{GM1}")
    I(f"v_mul_f32 v{GL0}, v{ST}, v{ST+1}\nv_mul_f32 v{GL1}, v{ST+2}, v{ST+3}")
    I(f"v_mul_f32 v{M0}, {LOG2E:#x}, v{M0}\nv_mul_f32 v{M1}, {LOG2E:#x}, v{M1}")
    for w in range(1, 4): I(f"v_fmac_f32 v{GL0}, v{ST+4*w}, v{ST+4*w+1}\nv_fmac_f32 v{GL1}, v{ST+4*w+2}, v{ST+4*w+3}")
    I(f"v_exp_f32 v{M0}, v{M0}\nv_exp_f32 v{M1}, v{M1}")
    I("s_mov_b32 s48, 0\ns_mov_b32 s49, -1\ns_mov_b32 s50, 0xc\ns_mov_b32 s51, 0")
    I(f"v_cndmask_b32 v{F}, v{M0}, v{M1}, s[48:49]")
    ML = 64
    I(f"v_cndmask_b32 v{ML}, v{GM0}, v{GM1}, s[50:51]\nv_cndmask_b32 v{ML+1}, v{GL0}, v{GL1}, s[50:51]")
    I(f"v_mov_b32 v{ML+8}, s58")
    I(f"v_mov_b32 v{ML+2}, 0\nv_mov_b32 v{ML+3}, 0\nv_lshlrev_b32 v{ML+4}, 8, v0")
    tag4(ML, ML+8)
    I(f"v_mov_b32 v{ML+5}, {CNT_O}\nv_mov_b32 v{ML+6}, 1\nv_lshlrev_b32 v{ML+7}, 4, v0")
    I(f"v_mov_b32 v{F+1}, v{F}")
    for i in range(8, 16): pv(i)
    stamp(5)
    pk("mul", ACC, ACC, F); pk("mul", ACC+2, ACC+2, F)
    e.lg(f"ds_write_b128 v{OADDR}, {vr(ACC)}", "op")
    I("s_mov_b64 exec, 1")
    e.lg_wait("op")
    e.lg(f"ds_add_rtn_u32 v{ML+6}, v{ML+5}, v{ML+6}", "cnt")
    e.lg_wait("cnt")
    I(f"v_readfirstlane_b32 s48, v{ML+6}")
    I("s_mov_b64 exec, -1")
    I("s_cmp_eq_u32 s48, 3")
    br("s_cbranch_scc0 L_A_done")
    for w in range(4): e.lg(f"ds_read_b128 {vr(40+4*w)}, v{ML+7} offset:{L_OP+1024*w}", ("o", w))
    e.lg_wait(("o", 1))
    pk("add", 40, 40, 44); pk("add", 42, 42, 46)
    e.lg_wait(("o", 3))
    pk("add", 48, 48, 52); pk("add", 50, 50, 54)
    pk("add", 40, 40, 48); pk("add", 42, 42, 50)
    tag4(40, ML+8)
    if O.local:
        I(f"global_store_dwordx4 v{HOFF}, {vr(40)}, s[52:53]")
        I("s_mov_b64 exec, 0xf")
        I(f"global_store_dwordx4 v{ML+4}, {vr(ML)}, s[54:55]")
        I("s_mov_b64 exec, -1")
        add64(52, 52, H2G - H2); add64(54, 54, HMLG - HML)
    I(f"global_store_dwordx4 v{HOFF}, {vr(40)}, s[52:53] sc1")
    I("s_mov_b64 exec, 0xf")
    I(f"global_store_dwordx4 v{ML+4}, {vr(ML)}, s[54:55] sc1")
    I("s_mov_b64 exec, -1")
    lds_set(F_HP, 1, 38, 39)
    e.settle()
    e.label("L_A_done")
    stamp(6)
    if not O.x_notail:
        if O.pfslow:
            I("s_cmp_ge_u32 s29, 13"); br("s_cbranch_scc1 L_A_pf")
        I("s_cmp_lt_u32 s29, 9")
        br("s_cbranch_scc0 L_A_end")
        I("s_add_u32 s3, s3, 4")
        lds_spin(F_HP, 1, 38, 39)
        e.branch("s_branch L_FFN")
        if O.pfslow:
            e.label("L_A_pf")
            I("s_lshr_b32 s48, s28, 1")
            I("s_sub_u32 s49, 3, s48\ns_and_b32 s49, s49, 7")
            I("s_mul_i32 s50, s48, 9\ns_add_u32 s50, s50, s49\ns_lshl_b32 s50, s50, 7")
            I("s_and_b32 s51, s28, 1\ns_mul_i32 s51, s51, 3\ns_add_u32 s51, s51, s29\ns_sub_u32 s51, s51, 13\ns_lshl_b32 s51, s51, 2\ns_add_u32 s51, s51, s3")
            I("s_mul_i32 s51, s51, 24*9216\ns_add_u32 s50, s50, s51")
            I("v_lshrrev_b32 v8, 3, v0\nv_mul_u32_u24 v8, 9216, v8\nv_and_b32 v9, 7, v0\nv_lshl_add_u32 v8, v9, 4, v8")
            I(f"s_mov_b32 s32, s{sWG}"); srd(32, sWG, 576*9216)
            I(f"s_mov_b32 s36, s{sWU}"); srd(36, sWU, 576*9216)
            lds_spin(F_HP, 1, 38, 39)
            def six():
                for i in range(3):
                    I(f"s_add_u32 s51, s50, {8*9216*i}")
                    I(f"buffer_load_dwordx4 {vr(40+8*i)}, v8, s[32:35], s51 offen {O.pfnt}")
                    I(f"buffer_load_dwordx4 {vr(44+8*i)}, v8, s[36:39], s51 offen {O.pfnt}")
            six()
            lp2 = L("pf2")
            I("s_cmp_eq_u32 s48, 3"); br(f"s_cbranch_scc0 {lp2}")
            I("s_add_u32 s50, s50, 8*128")
            six()
            e.label(lp2)
            if O.pfall:
                nr = 8*O.pfall
                I("s_and_b32 s51, s28, 1\ns_mul_i32 s51, s51, 3\ns_add_u32 s51, s51, s29\ns_sub_u32 s51, s51, 13\ns_lshl_b32 s51, s51, 2\ns_add_u32 s51, s51, s3")
                I(f"s_and_b32 s50, s51, 7\ns_mul_i32 s50, s50, 72\ns_add_u32 s50, s50, {72-nr}")
                I(f"s_lshr_b32 s51, s51, 3\ns_mul_i32 s51, s51, {nr//3 if nr % 3 == 0 else (nr+2)//3}\ns_add_u32 s50, s50, s51")
                I("s_mul_i32 s50, s50, 9216\ns_mul_i32 s51, s48, 1152\ns_add_u32 s50, s50, s51")
                I("v_lshlrev_b32 v9, 4, v0")
                n3 = nr//3 if nr % 3 == 0 else (nr+2)//3
                for r in range(n3):
                    I(f"s_add_u32 s51, s50, {9216*r}")
                    I(f"buffer_load_dwordx4 {vr(40+8*(r&3))}, v9, s[32:35], s51 offen {O.pfnt}")
                    I(f"buffer_load_dwordx4 {vr(44+8*(r&3))}, v9, s[36:39], s51 offen {O.pfnt}")
                for r in range(0, n3, 8):
                    I(f"s_add_u32 s51, s50, {9216*r + 1024}")
                    I(f"buffer_load_dwordx4 {vr(72)}, v8, s[32:35], s51 offen {O.pfnt}")
                    I(f"buffer_load_dwordx4 {vr(76)}, v8, s[36:39], s51 offen {O.pfnt}")
    e.label("L_A_end")
    finish()

def half_combine(acc, t):
    for r in range(4): I(f"v_mov_b32 v{t+r}, v{acc+r}")
    for r in range(4): I(f"v_permlane32_swap_b32 v{acc+r}, v{t+r}")
    for r in range(4): I(f"v_add_f32_dpp v{acc+r}, v{t+r}, v{acc+r} row_ror:8 row_mask:0xf bank_mask:0xf")

def role_T0_head():
    WB = 32
    I("s_setprio 3")
    ids()
    I("s_mov_b32 s58, s29\ns_mov_b32 s57, 0")
    if O.movewq:
        I("s_sub_u32 s48, s29, 9\ns_cmp_lt_u32 s48, 4"); br("s_cbranch_scc1 L_T0_skip")
    e.label("L_head")
    I("v_lshlrev_b32 v1, 4, v0")
    I("v_lshrrev_b32 v16, 4, v0\nv_bfe_u32 v17, v0, 3, 1")
    I("v_and_b32 v18, 7, v0\nv_lshlrev_b32 v18, 4, v18")
    I("v_lshl_add_u32 v19, v16, 3, v17\nv_lshl_add_u32 v2, v19, 13, v18")
    I("v_lshl_add_u32 v19, v16, 2, v17\nv_lshl_add_u32 v3, v19, 13, v18")
    I("s_lshr_b32 s48, s58, 2\ns_mul_i32 s49, s48, 0x120000\ns_and_b32 s50, s58, 3\ns_lshl_b32 s50, s50, 7\ns_add_u32 s49, s49, s50")
    I("s_lshl_b32 s50, s28, 9\ns_add_u32 s49, s49, s50")
    if O.diag3: stamp(5)
    I("s_waitcnt lgkmcnt(0)")
    if O.diag3: stamp(6)
    srd(32, sX, 1152)
    e.vm(f"buffer_load_dwordx4 {vr(8)}, v1, s[32:35], 0 offen", "xa")
    e.vm(f"buffer_load_dwordx4 {vr(12)}, v1, s[32:35], 0 offen offset:1024", "xb")
    add64(36, sWQ, "s49"); srd(36, 36, 144*8192)
    steps = [(2, (32*Ig + 2*ii)*8192) for Ig in range(4) for ii in range(4)] + [(3, 128*8192), (3, 130*8192)]
    for k, (vo, so) in enumerate(steps):
        if so: I(f"s_mov_b32 s50, {so}")
        e.vm(f"buffer_load_dwordx4 {vr(WB+4*k)}, v{vo}, s[36:39], {'s50' if so else '0'} offen {O.nt}", ("wq", k))
    I("s_barrier")
    stamp(1)
    make_sel(104)
    I("v_lshrrev_b32 v104, 4, v0\nv_lshlrev_b32 v105, 4, v104\nv_lshlrev_b32 v106, 3, v104")
    I(f"s_mul_i32 s50, s48, 288\ns_add_u32 s50, s50, {L_LN1}")
    I("v_add_u32 v150, s50, v105\nv_add_u32 v151, s50, v106")
    I("v_and_b32 v152, 7, v0\nv_lshlrev_b32 v152, 1, v152\nv_add_u32 v152, v152, v104\nv_lshlrev_b32 v152, 4, v152")
    I("s_lshl_b32 s49, s28, 13\ns_lshl_b32 s50, s48, 11\ns_add_u32 s49, s49, s50\ns_and_b32 s50, s58, 3\ns_lshl_b32 s50, s50, 8\ns_add_u32 s49, s49, s50")
    I(f"s_add_u32 s49, s49, {H1 if O.qlocal else H1G}")
    add64(44, sWS, "s49")
    e.vm_wait("xb")
    for half, base in ((0, 8), (1, 12)):
        for d in range(4):
            I(f"v_lshlrev_b32 v{16+8*half+2*d}, 16, v{base+d}")
            I(f"v_and_b32 v{17+8*half+2*d}, 0xffff0000, v{base+d}")
    layernorm(list(range(16, 32)), 8, "0xff", 104, 8)
    e.lg(f"ds_write_b128 v1, {vr(8)} offset:{L_LN1}", "ln")
    I("s_mov_b64 exec, 0xff")
    e.lg(f"ds_write_b128 v1, {vr(12)} offset:{L_LN1+1024}", "ln2")
    I("s_mov_b64 exec, -1")
    e.lg_all()
    for Ig in range(4): e.lg(f"ds_read_b128 {vr(108+4*Ig)}, v150 offset:{64*Ig}", ("pk", Ig))
    e.lg(f"ds_read_b64 v[124:125], v151 offset:256", ("pk", 4))
    stamp(2)
    ACC = 16
    gemv(18, ACC, 20, lambda k: WB + 4*k, lambda k: 108 + k,
         pre=lambda k: e.lg_wait(("pk", k >> 2)) if (k & 3) == 0 else None,
         wait=lambda k: e.vm_wait(("wq", k)))
    stamp(3)
    get_tag_full = True
    lds_spin(F_TAG, 1, 28, 29)
    I(f"v_mov_b32 v28, {L_TAG}\nds_read_b32 v30, v28")
    half_combine(ACC, 20)
    I("s_waitcnt lgkmcnt(0)")
    I(f"v_mov_b32 v28, v{ACC}\nv_mov_b32 v29, v{ACC+1}\nv_mov_b32 v31, v30")
    I(f"v_mov_b32 v20, v{ACC+2}\nv_mov_b32 v21, v{ACC+3}\nv_mov_b32 v22, v30\nv_mov_b32 v23, v30")
    I("s_mov_b32 exec_lo, 0x00ff00ff\ns_mov_b32 exec_hi, 0")
    if O.qlocal:
        I(f"global_store_dwordx4 v152, v[28:31], s[44:45]")
        I(f"global_store_dwordx4 v152, v[20:23], s[44:45] offset:1024")
        add64(44, 44, H1G - H1)
    I(f"global_store_dwordx4 v152, v[28:31], s[44:45] sc1")
    I(f"global_store_dwordx4 v152, v[20:23], s[44:45] offset:1024 sc1")
    I("s_mov_b64 exec, -1")
    stamp(4)
    I("s_cmp_eq_u32 s57, 1"); br("s_cbranch_scc1 L_T_exit")
    I("s_mov_b32 s3, 0")
    e.branch("s_branch L_Tail")
    if O.movewq:
        e.label("L_T0_skip")
        I("s_waitcnt lgkmcnt(0)")
        I("s_barrier")
        make_sel(8)
        I("s_mov_b32 s3, 0")
        e.branch("s_branch L_Tail")
    e.label("L_T_exit")
    finish()

def role_C():
    e.comment("===== wave 1: launch tag, gathers")
    e.label("L_C")
    I("s_setprio 3")
    I("v_lshlrev_b32 v2, 2, v0\nv_mov_b32 v3, 0")
    I("ds_write_b32 v2, v3")
    ids()
    I("s_waitcnt lgkmcnt(0)")
    I("s_barrier")
    add64(34, sWS, EPOCH)
    I("s_load_dword s56, s[34:35], 0")
    I("v_lshlrev_b32 v1, 4, v0")
    if O.prefetch and not O.pf0:
        lp = L("pc")
        I("s_getpc_b64 s[32:33]")
        e.label(lp)
        I(f"s_sub_u32 s32, s32, {lp}-{NAME}\ns_subb_u32 s33, s33, 0")
        I("s_lshr_b32 s48, s2, 3\ns_and_b32 s48, s48, PF_MASK\ns_lshl_b32 s48, s48, 10")
        I("v_add_u32 v2, s48, v1\nv_min_u32 v2, CODE_BYTES-16, v2")
        I("global_load_dwordx4 v[16:19], v2, s[32:33]")
    stamp(1)
    I("s_waitcnt lgkmcnt(0)")
    I("s_add_u32 s56, s56, 1")
    I(f"v_mov_b32 v40, s56")
    I(f"v_mov_b32 v3, {L_TAG}\nds_write_b32 v3, v40\ns_waitcnt lgkmcnt(0)")
    lds_set(F_TAG, 1, 2, 3)
    stamp(2)
    if O.local:
        I("s_getreg_b32 s61, hwreg(HW_REG_XCC_ID)\ns_and_b32 s61, s61, 15")
        I(f"s_lshl_b32 s48, s28, 8\ns_add_u32 s48, s48, {HX}"); add64(36, sWS, "s48")
        I("v_mov_b32 v41, s61\nv_mov_b32 v42, v40\nv_mov_b32 v43, s61")
        I("s_lshl_b32 s48, s29, 4\nv_mov_b32 v2, s48\ns_mov_b64 exec, 1")
        I("global_store_dwordx4 v2, v[40:43], s[36:37] sc1")
        I("s_mov_b64 exec, -1")
    stamp(4)
    def qbase(off):
        I(f"s_lshl_b32 s48, s28, 13\ns_add_u32 s48, s48, {off}"); add64(32, sWS, "s48")
        add64(34, 32, 4096)
    qbase(H1 if O.qlocal else H1G)
    lds_spin(F_K, O.nq, 2, 3)
    def mk(b):
        for k in range(8): I(f"global_load_dwordx4 {vr(b+4*k)}, v1, s[{32+2*(k>>2)}:{33+2*(k>>2)}] offset:{1024*(k&3)} sc1")
    def chk():
        I("v_xor_b32 v8, v46, v40")
        for k in range(8):
            for x in ((47,) if k == 0 else (46+4*k, 47+4*k)): I(f"v_bitop3_b32 v8, v8, v{x}, v40 bitop3:0xf6")
        I("v_cmp_ne_u32 vcc, 0, v8")
    pollp(mk, 8, 32, 44, 0, 8, 40, check=chk, switch=(lambda: qbase(H1G)) if O.qlocal else None, tries=1)
    I("s_waitcnt vmcnt(0)")
    for half in range(2):
        pk("add", 16+2*half, 44+4*half, 52+4*half)
        pk("add", 20+2*half, 60+4*half, 68+4*half)
    pk("add", 16, 16, 20); pk("add", 18, 18, 22)
    I("v_cvt_pk_bf16_f32 v8, v16, v17\nv_cvt_pk_bf16_f32 v9, v18, v19")
    I("v_lshlrev_b32 v2, 3, v0")
    I(f"ds_write_b64 v2, v[8:9] offset:{L_Q}")
    I("s_waitcnt lgkmcnt(0)")
    lds_set(F_Q, 1, 2, 3)
    stamp(3)
    I(f"v_and_b32 v15, {TAGM:#x}, v40")
    if O.x_notail: e.branch("s_branch L_C_done")
    I("s_cmp_ge_u32 s29, 13"); br("s_cbranch_scc1 L_C_done")
    I("s_cmp_ge_u32 s29, 9"); br("s_cbranch_scc1 L_WO_C")
    e.branch("s_branch L_FFN_C")
    e.label("L_C_done")
    finish()

def role_T():
    e.comment("===== waves 6..9 (tail index 1..4) and wave 0 after its q slice")
    e.label("L_T")
    ids()
    I("s_cmp_eq_u32 s3, 1\ns_cselect_b32 s3, 8, s3\ns_sub_u32 s3, s3, 5")
    if O.movewq:
        ln = L("nohelp")
        I("s_sub_u32 s48, s29, 13\ns_cmp_lt_u32 s48, 2"); br(f"s_cbranch_scc0 {ln}")
        I("s_sub_u32 s49, s3, 1\ns_cmp_lt_u32 s49, 2"); br(f"s_cbranch_scc0 {ln}")
        I("s_lshl_b32 s48, s48, 1\ns_add_u32 s58, s48, s49\ns_add_u32 s58, s58, 9\ns_mov_b32 s57, 1\ns_setprio 3")
        e.branch("s_branch L_head")
        e.label(ln)
    I("s_waitcnt lgkmcnt(0)")
    I("s_barrier")
    make_sel(8)
    e.label("L_Tail")
    if O.x_notail: finish()
    I("s_setprio 0")
    I("s_cmp_ge_u32 s29, 13"); br("s_cbranch_scc1 L_RED")
    I("s_cmp_ge_u32 s29, 9"); br("s_cbranch_scc1 L_WO")
    if O.gearly: lds_spin(F_GOL, O.ngo, 8, 9)
    elif O.igo == 99: lds_spin(F_HP, 1, 8, 9)
    else: lds_spin(F_GOL, O.ngo, 8, 9)
    e.branch("s_branch L_FFN")

def main_voff(v, rowstride, t):
    I(f"v_lshrrev_b32 v{t}, 4, v0\nv_mul_u32_u24 v{t}, {rowstride}, v{t}\nv_and_b32 v{t+1}, 15, v0\nv_lshl_add_u32 v{v}, v{t+1}, 4, v{t}")
    I(f"s_lshl_b32 s48, s3, 8\nv_add_u32 v{v}, s48, v{v}")

def extra_voff(v, rowstride, t):
    I(f"v_lshrrev_b32 v{t}, 4, v0\nv_bfe_u32 v{t+1}, v0, 3, 1\nv_lshl_add_u32 v{t}, v{t+1}, 2, v{t}\nv_mul_u32_u24 v{t}, {rowstride}, v{t}")
    I(f"v_and_b32 v{t+1}, 7, v0\nv_lshl_add_u32 v{v}, v{t+1}, 4, v{t}\nv_add_u32 v{v}, 1024, v{v}")

def publish_addr(region, stride, prod_sgpr, t):
    I(f"v_and_b32 v{t}, 15, v0\ns_lshl_b32 s48, s3, 4\nv_add_u32 v{t}, s48, v{t}")
    I(f"v_mul_u32_u24 v{t}, {stride}, v{t}")
    I(f"v_lshrrev_b32 v{t+1}, 4, v0\nv_lshl_add_u32 v{t}, v{t+1}, 4, v{t}")
    I(f"s_lshl_b32 s48, s{prod_sgpr}, 5\ns_add_u32 s48, s48, {region}")
    add64(44, sWS, "s48")

def publish_main(acc, vaddr, vtag):
    I("s_mov_b32 exec_hi, 0")
    tag4(acc, vtag)
    I(f"global_store_dwordx4 v{vaddr}, {vr(acc)}, s[44:45] sc1")
    I("s_mov_b32 exec_hi, -1")

def publish_extra(acc, vaddr, vtag, stride):
    I("s_mov_b32 exec_lo, 0x00ff00ff\ns_mov_b32 exec_hi, 0")
    add64(44, 44, 64*stride)
    tag4(acc, vtag)
    I(f"global_store_dwordx4 v{vaddr}, {vr(acc)}, s[44:45] sc1")
    I("s_mov_b64 exec, -1")

def role_WO():
    WB, WX = 92, 60
    e.label("L_WO")
    main_voff(1, 1152, 8)
    extra_voff(2, 1152, 8)
    I("s_lshl_b32 s48, s28, 2\ns_add_u32 s48, s48, s29\ns_sub_u32 s52, s48, 9")
    I("s_mul_i32 s48, s52, 73728")
    add64(32, sWO, "s48"); srd(32, 32, 64*1152)
    publish_addr(H3A, 2048, 52, 8)
    get_tag(12, 10)
    make_msk()
    I(f"v_lshrrev_b32 v9, 4, v0\nv_lshlrev_b32 v9, 6, v9")
    I("s_mov_b32 s47, 0xffff")
    if O.iwo == 99: lds_spin(F_HP, 1, 10, 11)
    else: lds_spin(F_GOE, O.nwo, 10, 11)
    stamp(5)
    for i in range(16):
        if i: I(f"s_mov_b32 s48, {4608*i}")
        I(f"buffer_load_dwordx4 {vr(WB+4*i)}, v1, s[32:35], {'s48' if i else '0'} offen {O.nt}")
    ln = L("wonx")
    I("s_cmp_eq_u32 s3, 0"); br(f"s_cbranch_scc0 {ln}")
    for i in range(8):
        if i: I(f"s_mov_b32 s48, {9216*i}")
        I(f"buffer_load_dwordx4 {vr(WX+4*i)}, v2, s[32:35], {'s48' if i else '0'} offen {O.nt}")
    e.label(ln)
    Y, ACC = 32, 28
    I("s_setprio 3")
    I("s_waitcnt vmcnt(0)")
    stamp(6)
    I("s_barrier")
    stamp(7)
    e.lgq = []
    for q in range(4): e.lg(f"ds_read_b128 {vr(Y+4*q)}, v9 offset:{L_Y+16*q}", ("y", q))
    gemv(16, ACC, 16, lambda i: WB + 4*i, lambda i: Y + i, pre=lambda i: e.lg_wait(("y", i >> 2)) if (i & 3) == 0 else None, bld=build_m)
    publish_main(ACC, 8, 12)
    I("s_cmp_eq_u32 s3, 0"); br("s_cbranch_scc0 L_WO_done")
    AC2 = 48
    gemv(8, AC2, 16, lambda i: WX + 4*i, lambda i: 24 + (i & 1), pre=lambda i: I(f"v_bfi_b32 v{24+(i&1)}, s47, v{Y+2*i}, v{Y+2*i+1}"))
    half_combine(AC2, 20)
    publish_extra(AC2, 8, 12, 2048)
    e.label("L_WO_done")
    finish()

def role_WO_C():
    e.label("L_WO_C")
    I("s_lshl_b32 s48, s28, 2\ns_add_u32 s48, s48, s29\ns_sub_u32 s52, s48, 9")
    I("s_add_u32 s53, s52, 48")
    red_setup()
    I("s_mov_b32 s62, 0")
    if O.local:
        I(f"s_lshl_b32 s48, s28, 8\ns_add_u32 s48, s48, {HX}"); add64(36, sWS, "s48")
        lp, dn = L("xp"), L("xpd")
        I("s_mov_b64 exec, 0xffff")
        e.settle(); e.label(lp)
        I("global_load_dwordx4 v[16:19], v1, s[36:37] sc1")
        budget(dn)
        I("s_waitcnt vmcnt(0)")
        I("v_xor_b32 v8, v16, v40")
        I("v_bitop3_b32 v8, v8, v18, v40 bitop3:0xf6")
        I("v_cmp_ne_u32 vcc, 0, v8"); br(f"s_cbranch_vccnz {lp}")
        e.label(dn)
        I("s_waitcnt vmcnt(0)")
        I("v_cmp_ne_u32 vcc, s61, v17")
        I("s_cmp_eq_u64 vcc, 0\ns_cselect_b32 s62, 1, 0\ns_mov_b64 exec, -1")
    I(f"s_mov_b32 s48, {H2}\ns_mov_b32 s49, {H2G}\ns_cmp_eq_u32 s62, 1\ns_cselect_b32 s49, s48, s49")
    I(f"s_lshl_b32 s48, s52, 12\ns_add_u32 s48, s48, s49"); add64(36, sWS, "s48")
    I(f"s_mov_b32 s48, {HML}\ns_mov_b32 s49, {HMLG}\ns_cmp_eq_u32 s62, 1\ns_cselect_b32 s49, s48, s49")
    I(f"s_lshl_b32 s48, s52, 8\ns_add_u32 s48, s48, s49"); add64(38, sWS, "s48")
    I("v_and_b32 v3, 3, v0\nv_lshlrev_b32 v3, 2, v3\nv_lshrrev_b32 v9, 4, v0\nv_add_u32 v3, v3, v9\nv_lshlrev_b32 v3, 4, v3")
    I(f"v_lshlrev_b32 v12, 2, v0")
    lds_spin(F_HP, 1, 10, 11)
    I("s_waitcnt vmcnt(0)")
    I(f"v_lshlrev_b32 v{RX}, 16, v{RX}")
    stamp(5)
    def mk(b):
        for k in range(4): I(f"global_load_dwordx4 {vr(b+4*k)}, v1, s[36:37] offset:{1024*k} sc1")
        I(f"global_load_dwordx4 {vr(b+16)}, v3, s[38:39] sc1")
    pollp(mk, 5, 20, 44, 16, 10, 15)
    stamp(6)
    I("v_max_f32_dpp v36, v32, v32 quad_perm:[1,0,3,2] row_mask:0xf bank_mask:0xf")
    I("v_max_f32_dpp v36, v36, v36 quad_perm:[2,3,0,1] row_mask:0xf bank_mask:0xf")
    cross_allreduce("max", [36], [37])
    I(f"v_sub_f32 v32, v32, v36\nv_mul_f32 v32, {LOG2E:#x}, v32\nv_exp_f32 v32, v32")
    I("v_mul_f32 v33, v33, v32")
    for r in range(4): I(f"v_mul_f32_dpp v{16+r}, v32, v{16+r} quad_perm:[0,0,0,0] row_mask:0xf bank_mask:0xf")
    I("v_add_f32_dpp v33, v33, v33 quad_perm:[1,0,3,2] row_mask:0xf bank_mask:0xf")
    for r in range(4): I(f"v_fmac_f32_dpp v{16+r}, v32, v{20+r} quad_perm:[1,1,1,1] row_mask:0xf bank_mask:0xf")
    I("v_add_f32_dpp v33, v33, v33 quad_perm:[2,3,0,1] row_mask:0xf bank_mask:0xf")
    for r in range(4): I(f"v_fmac_f32_dpp v{16+r}, v32, v{24+r} quad_perm:[2,2,2,2] row_mask:0xf bank_mask:0xf")
    I("v_mov_b32 v37, v33")
    for r in range(4): I(f"v_fmac_f32_dpp v{16+r}, v32, v{28+r} quad_perm:[3,3,3,3] row_mask:0xf bank_mask:0xf")
    I("v_permlane16_swap_b32 v33, v37")
    I("v_add_f32 v33, v33, v37")
    I("v_permlane32_swap_b32 v16, v18\nv_permlane32_swap_b32 v17, v19")
    I("v_mov_b32 v37, v33")
    pk("add", 16, 16, 18)
    I("v_permlane32_swap_b32 v33, v37")
    I("v_permlane16_swap_b32 v16, v17")
    I("v_add_f32 v33, v33, v37")
    I("v_add_f32 v16, v16, v17")
    I("v_rcp_f32 v33, v33")
    I("v_mul_f32 v16, v16, v33")
    I("v_cvt_pk_bf16_f32 v16, v16, v16")
    I(f"ds_write_b32 v12, v16 offset:{L_Y}")
    I("s_waitcnt lgkmcnt(0)")
    I("s_barrier")
    stamp(7)
    I("s_cmp_lt_u32 s53, 72"); br("s_cbranch_scc1 L_RED_main")
    finish()

RX, RA, RH, RT = 120, 121, 122, 123
def red_setup():
    I(f"s_min_u32 s50, s53, 71")
    I(f"v_lshrrev_b32 v8, 4, v0\nv_and_b32 v9, 1, v0\nv_lshl_add_u32 v9, v9, 2, v8\nv_lshlrev_b32 v9, 1, v9\ns_lshl_b32 s48, s50, 4\nv_add_u32 v{RA}, s48, v9")
    I(f"global_load_ushort v{RX}, v{RA}, {sp(sX)}")
    I(f"s_lshl_b32 s48, s50, 11\ns_add_u32 s48, s48, {H3A}"); add64(40, sWS, "s48")
    I(f"s_mul_i32 s48, s50, 4608\ns_add_u32 s48, s48, {H4}"); add64(42, sWS, "s48")
    add64(44, 42, 4096)
    I("v_lshlrev_b32 v1, 4, v0")
    I(f"v_lshrrev_b32 v8, 1, v0\nv_mul_u32_u24 v8, 2304, v8\nv_and_b32 v9, 1, v0\nv_lshl_add_u32 v{RH}, v9, 4, v8")
    I(f"s_lshl_b32 s48, s50, 5\ns_add_u32 s48, s48, {H3B}"); add64(46, sWS, "s48")
    get_tag(RT, 8)
    for r in range(4): I(f"v_mov_b32 v{96+r}, v{RT}")

def role_RED():
    e.comment("===== column reducers: 8 columns per wave; blocks 0..47 on the reducer workgroups, 48..71 on wave C of output projections")
    e.label("L_RED")
    I("s_cmp_ge_u32 s3, 1"); br("s_cbranch_scc1 L_RED_done")
    I("s_mul_i32 s53, s28, 3\ns_add_u32 s53, s53, s29\ns_sub_u32 s53, s53, 13")
    red_setup()
    lds_spin(F_HP, 1, 12, 13)
    I("s_waitcnt vmcnt(0)"); e.vmq = []
    I(f"v_lshlrev_b32 v{RX}, 16, v{RX}")
    I("s_setprio 3")
    e.settle()
    e.label("L_RED_main")
    stamp(8)
    def mk(b):
        for k in range(2): I(f"global_load_dwordx4 {vr(b+4*k)}, v1, s[40:41] offset:{1024*k} sc1")
    pollp(mk, 2, 8, 60, 16, 12, RT)
    stamp(9)
    pk("add", 16, 16, 20); pk("add", 18, 18, 22)
    rscatter4(16)
    rows_allreduce("add", [16], (2, 4, 8))
    rne1(16, 12)
    I(f"v_add_f32 v{RX}, v{RX}, v16")
    rne1(RX, 12)
    gather_rows(RX, 20)
    if O.nrep == 16: I("s_mov_b32 exec_hi, 0")
    tag4(20, RT)
    I(f"global_store_dwordx4 v{RH}, v[20:23], s[46:47] sc1")
    if O.nrep == 16: I("s_mov_b32 exec_hi, -1")
    stamp(10)
    def mk4(b):
        for k in range(4): I(f"global_load_dwordx4 {vr(b+4*k)}, v1, s[42:43] offset:{1024*k} sc1")
        I("s_mov_b32 exec_hi, 0")
        I(f"global_load_dwordx4 {vr(b+16)}, v1, s[44:45] sc1")
        I("s_mov_b32 exec_hi, -1")
    pollp(mk4, 5, 20, 80, 16, 12, RT)
    stamp(7)
    pk("add", 16, 16, 20); pk("add", 18, 18, 22); pk("add", 24, 24, 28); pk("add", 26, 26, 30)
    pk("add", 16, 16, 32); pk("add", 18, 18, 34)
    pk("add", 16, 16, 24); pk("add", 18, 18, 26)
    rscatter4(16)
    rows_allreduce("add", [16], (2, 4, 8))
    rne1(16, 12)
    I(f"v_add_f32 v{RX}, v{RX}, v16")
    if O.x_pert: I(f"v_add_f32 v{RX}, {O.x_pert}, v{RX}")
    I(f"v_cvt_pk_bf16_f32 v{RX}, v{RX}, v{RX}")
    I("s_mov_b32 exec_lo, 0x00030003\ns_mov_b32 exec_hi, 0x00030003")
    I(f"global_store_short v{RA}, v{RX}, {sp(sOUT)}")
    le = L("noep")
    I("s_cmp_eq_u32 s53, 0"); e.branch(f"s_cbranch_scc0 {le}")
    I(f"v_mov_b32 v12, {L_TAG}\nds_read_b32 v13, v12\nv_mov_b32 v14, 0")
    add64(32, sWS, EPOCH)
    I("s_mov_b64 exec, 1\ns_waitcnt lgkmcnt(0)")
    I("global_store_dword v14, v13, s[32:33]")
    e.label(le)
    I("s_mov_b64 exec, -1")
    e.label("L_RED_done")
    if O.pad:
        lp = L("pad")
        e.label(lp)
        I("s_memrealtime s[92:93]\ns_waitcnt lgkmcnt(0)\ns_sub_u32 s92, s92, s90")
        I(f"s_cmp_lt_u32 s92, {O.pad}"); br(f"s_cbranch_scc1 {lp}")
    finish()

def ffn_ids():
    I("s_lshr_b32 s48, s28, 1\ns_mul_i32 s48, s48, 9\ns_add_u32 s48, s48, s29\ns_lshl_b32 s48, s48, 6")
    I("s_and_b32 s49, s28, 1\ns_lshl_b32 s49, s49, 5\ns_add_u32 s52, s48, s49")

def role_FFN():
    GB, DB, DX = 88, 124, 72
    e.label("L_FFN")
    stamp(7)
    ffn_ids()
    ld, lj = L("nodown"), L("ffj")
    I("v_lshrrev_b32 v16, 4, v0\nv_bfe_u32 v9, v0, 3, 1\nv_lshl_add_u32 v8, v16, 3, v9")
    I("s_mul_i32 s48, s3, 72\nv_add_u32 v8, s48, v8\nv_mul_u32_u24 v8, 9216, v8")
    I("v_and_b32 v9, 3, v0\nv_lshlrev_b32 v9, 4, v9\ns_lshl_b32 s48, s52, 1\nv_add3_u32 v8, v8, v9, s48")
    I("v_bfe_u32 v9, v0, 2, 1\nv_cmp_eq_u32 vcc, 1, v9")
    I(f"v_mov_b32 v10, s{sWG}\nv_mov_b32 v11, s{sWU}\nv_cndmask_b32 v10, v10, v11, vcc")
    I(f"v_mov_b32 v11, s{sWG+1}\nv_mov_b32 v12, s{sWU+1}\nv_cndmask_b32 v11, v11, v12, vcc")
    I("v_add_co_u32 v10, vcc, v10, v8\nv_addc_co_u32 v11, vcc, 0, v11, vcc")
    I(f"s_mov_b32 s48, {2*9216}\ns_mov_b32 s49, 0\ns_mov_b32 s50, {26*9216}\ns_mov_b32 s51, 0")
    I(f"v_mul_u32_u24 v18, {6*9216}, v16\nv_sub_u32 v18, {26*9216}, v18\nv_mov_b32 v19, 0")
    for k in range(9):
        if O.gearly and k == O.gearly:
            lds_spin(F_HP, 1, 20, 21)
            I("s_mov_b32 s51, 0")
        if not O.x_noffn: I(f"global_load_dwordx4 {vr(GB+4*k)}, v[10:11], off {O.ntg}")
        if k < 7: I(f"v_lshl_add_u64 v[10:11], v[10:11], 0, {'s[50:51]' if k == 3 else 's[48:49]'}")
        if k == 7: I("v_lshl_add_u64 v[10:11], v[18:19], 0, v[10:11]")
    I(f"s_mul_i32 s48, s3, 144\ns_add_u32 s48, s48, {L_XLN2}\nv_lshlrev_b32 v8, 4, v16\nv_add_u32 v13, s48, v8")
    I("v_lshlrev_b32 v8, 2, v16\nv_add_u32 v14, s48, v8")
    I(f"v_and_b32 v8, 7, v0\nv_lshlrev_b32 v8, 5, v8\nv_bfe_u32 v9, v0, 4, 1\nv_lshl_add_u32 v8, v9, 4, v8")
    I(f"v_lshrrev_b32 v9, 5, v0\nv_lshl_add_u32 v8, v9, 8, v8\ns_lshl_b32 s48, s3, 9\ns_add_u32 s48, s48, {L_GUP}\nv_add_u32 v15, s48, v8")
    I("s_cmp_ge_u32 s3, 4"); br(f"s_cbranch_scc1 {ld}")
    main_voff(1, 1152, 8)
    extra_voff(2, 1152, 8)
    I("s_mul_i32 s48, s52, 1152"); add64(32, sWD, "s48"); srd(32, 32, 32*1152)
    if O.dwait < 9: I(f"s_waitcnt vmcnt({O.dwait})")
    lx = L("dnx")
    I("s_cmp_eq_u32 s3, 0"); br(f"s_cbranch_scc0 {lx}")
    for i in range(4):
        if i: I(f"s_mov_b32 s48, {9216*i}")
        if not O.x_noffn: I(f"buffer_load_dwordx4 {vr(DX+4*i)}, v2, s[32:35], {'s48' if i else '0'} offen {O.nt}")
    e.label(lx)
    for i in range(8):
        if i: I(f"s_mov_b32 s48, {4608*i}")
        if not O.x_noffn: I(f"buffer_load_dwordx4 {vr(DB+4*i)}, v1, s[32:35], {'s48' if i else '0'} offen {O.nt}")
    I("s_mul_i32 s47, s28, 9\ns_add_u32 s47, s47, s29")
    publish_addr(H4, 4608, 47, 40)
    get_tag(42, 8)
    make_msk()
    I(f"v_lshrrev_b32 v8, 4, v0\nv_lshlrev_b32 v8, 10, v8\nv_and_b32 v9, 15, v0\nv_lshl_add_u32 v43, v9, 4, v8")
    I("s_mov_b32 s47, 0xffff")
    lw = L("w12")
    I("s_cmp_eq_u32 s3, 0"); br(f"s_cbranch_scc1 {lw}")
    I("s_waitcnt vmcnt(8)")
    e.branch(f"s_branch {lj}")
    e.label(lw)
    I("s_waitcnt vmcnt(12)")
    e.branch(f"s_branch {lj}")
    e.label(ld)
    I(f"s_mov_b64 s[44:45], {sp(sWS)}\nv_mov_b32 v40, 0")
    I("s_waitcnt vmcnt(0)")
    e.label(lj)
    I("s_setprio 3")
    stamp(8)
    I("s_barrier")
    if O.diag3: stamp(1)
    e.vmq = []; e.lgq = []
    for H in range(2): e.lg(f"ds_read_b128 {vr(16+4*H)}, v13 offset:{64*H}", ("pk", H))
    e.lg(f"ds_read_b32 v24, v14 offset:128", ("pk", 2))
    ACC = 28
    if O.diag3: I("s_waitcnt lgkmcnt(0)"); stamp(2)
    gemv(9, ACC, 32, lambda k: GB + 4*k, lambda k: 16 + k, pre=lambda k: e.lg_wait(("pk", k >> 2)) if (k & 3) == 0 else None)
    if O.diag3: stamp(3)
    I("s_mov_b32 exec_lo, 0x00ff00ff\ns_mov_b32 exec_hi, 0xff00ff00")
    I(f"ds_write_b128 v15, {vr(ACC)}")
    I("s_mov_b64 exec, -1")
    I("s_waitcnt lgkmcnt(0)")
    if O.diag3: stamp(4)
    I("s_barrier")
    I("s_cmp_ge_u32 s3, 4"); br("s_cbranch_scc1 L_FFN_done")
    stamp(9)
    e.lgq = []
    for k in range(4): e.lg(f"ds_read_b128 {vr(12+4*k)}, v43 offset:{L_GUP+256*k}", ("gp", k))
    e.lg_wait(("gp", 1))
    pk("add", 12, 12, 16); pk("add", 14, 14, 18)
    e.lg_wait(("gp", 3))
    pk("add", 20, 20, 24); pk("add", 22, 22, 26)
    pk("add", 12, 12, 20); pk("add", 14, 14, 22)
    rscatter4(12)
    rne1(12, 13)
    I("v_mul_f32 v14, v12, v12")
    I("v_mov_b32 v15, 0x3d372713")
    I("v_mov_b32_dpp v13, v12 row_ror:8 row_mask:0xf bank_mask:0xf")
    I("v_fma_f32 v14, v14, v15, 1.0")
    I("v_mul_f32 v14, v14, v12")
    I("v_mul_f32 v14, 0xc0135761, v14")
    I("v_exp_f32 v14, v14")
    I("v_add_f32 v14, 1.0, v14")
    I("v_rcp_f32 v14, v14")
    I("v_mul_f32 v12, v12, v14")
    rne1(12, 14)
    I("v_mul_f32 v12, v12, v13")
    I("v_cvt_pk_bf16_f32 v16, v12, v12")
    I("s_waitcnt vmcnt(0)")
    stamp(10)
    ACC2 = 28
    gemv(8, ACC2, 20, lambda i: DB + 4*i, lambda i: 18 + (i & 1),
         pre=lambda i: I(f"v_mov_b32_dpp v{18+(i&1)}, v16 row_newbcast:{i} row_mask:0xf bank_mask:0xf"), bld=build_m)
    publish_main(ACC2, 40, 42)
    I("s_cmp_eq_u32 s3, 0"); br("s_cbranch_scc0 L_FFN_done")
    AC3 = 48
    def pre4(i):
        I(f"v_mov_b32_dpp v17, v16 row_newbcast:{2*i} row_mask:0xf bank_mask:0xf")
        I(f"v_mov_b32_dpp v18, v16 row_newbcast:{2*i+1} row_mask:0xf bank_mask:0xf")
        I(f"v_bfi_b32 v{32+(i&1)}, s47, v17, v18")
    gemv(4, AC3, 20, lambda i: DX + 4*i, lambda i: 32 + (i & 1), pre=pre4)
    half_combine(AC3, 52)
    publish_extra(AC3, 40, 42, 4608)
    e.label("L_FFN_done")
    finish()

def role_FFN_C():
    e.label("L_FFN_C")
    I("s_mul_i32 s47, s28, 9\ns_add_u32 s47, s47, s29")
    I(f"s_and_b32 s48, s47, {O.nrep-1}\ns_mul_i32 s48, s48, 2304\ns_add_u32 s48, s48, {H3B}")
    add64(36, sWS, "s48")
    for r in range(4): I(f"v_mov_b32 v{68+r}, v15")
    I(f"v_lshlrev_b32 v2, 3, v0")
    lds_spin(F_HP, 1, 8, 9)
    stamp(5)
    def mk(b):
        I(f"global_load_dwordx4 {vr(b)}, v1, s[36:37] sc1")
        I(f"global_load_dwordx4 {vr(b+4)}, v1, s[36:37] offset:1024 sc1")
        I("s_mov_b64 exec, 0xffff")
        I(f"global_load_dwordx4 {vr(b+8)}, v1, s[36:37] offset:2048 sc1")
        I("s_mov_b64 exec, -1")
    pollp(mk, 3, 12, 60, 16, 8, 15)
    stamp(6)
    layernorm(list(range(16, 28)), 8, "0xffff", 32, 52)
    I(f"ds_write_b64 v2, v[52:53] offset:{L_XLN2}\nds_write_b64 v2, v[54:55] offset:{L_XLN2+512}")
    I("s_mov_b64 exec, 0xffff")
    I(f"ds_write_b64 v2, v[56:57] offset:{L_XLN2+1024}")
    I("s_mov_b64 exec, -1")
    I("s_waitcnt lgkmcnt(0)")
    I("s_barrier")
    stamp(7)
    I("s_barrier")
    finish()

def build():
    prologue()
    role_T0_head()
    role_A()
    role_C()
    role_T()
    role_WO()
    role_WO_C()
    role_RED()
    role_FFN_C()
    role_FFN()
    e.label("L_end")
    I("s_endpgm")
    e.raw("L_code_end:")
    head = []
    ref = open("sequential_preLN__sliding_block_cached__geglu_ffn__decode.s.ref").read().split("\n")
    for l in ref:
        if l.startswith("; @launch"): break
        if l.startswith("; Override") or l.startswith("; grid="): continue
        head.append(l)
    head.append(f"; @launch grid=(256,1,1) block=(576,1,1) lds={LDS_BYTES}")
    head.append('.amdgcn_target "amdgcn-amd-amdhsa--gfx950"')
    head.append(".text")
    head.append(f".set CODE_BYTES, L_code_end-{NAME}")
    head.append(".set PF_MASK, 15")
    tail = f""".section .rodata,"a"
.p2align 6
.amdhsa_kernel {NAME}
  .amdhsa_next_free_vgpr 168
  .amdhsa_next_free_sgpr 96
  .amdhsa_accum_offset 168
  .amdhsa_group_segment_fixed_size 0
  .amdhsa_kernarg_size 96
  .amdhsa_user_sgpr_count 2
  .amdhsa_user_sgpr_kernarg_segment_ptr 1
  .amdhsa_system_sgpr_workgroup_id_x 1
  .amdhsa_float_denorm_mode_32 3
.end_amdhsa_kernel
"""
    return "\n".join(head) + "\n" + e.text() + tail

if __name__ == "__main__":
    out = sys.argv[1]
    for a in sys.argv[2:]:
        k, v = a.split("=")
        cur = getattr(O, k)
        setattr(O, k, (v == "1") if isinstance(cur, bool) else (int(v) if isinstance(cur, int) else v))
    txt = build()
    open(out, "w").write(txt)
    print(f"wrote {out}: {len(txt)} bytes, nops {e.nnop}, lds {LDS_BYTES}")
```

```python
import sys, os
sys.path.insert(0, os.path.dirname(os.path.abspath(__file__)))
from emit import Emitter

NAME = "sequential_preLN__sliding_block_cached__geglu_ffn__decode_kernel"

class Opt:
    diag = False
    diag2 = False
    light = False
    diag3 = False
    win = 7
    igo = 15
    iwo = 7
    ngo = 4
    nwo = 4
    iq = 16
    nq = 1
    wowin = 16
    nt = "nt"
    ntg = "nt"
    budget = 200000
    prefetch = True
    krot = 17
    nrep = 32
    gearly = 4
    qlocal = False
    aprio = 0
    pfpol = ""
    pf0 = True
    fgate = 0
    gpoll = 5
    sperm = "FED876543210CBA9"
    winw = 0
    shift = 0
    align = 6
    fold = 2
    cprio = 0
    tbar = 18
    movewq = False
    local = True
    npoll = 1
    x_notail = False
    x_noqwait = False
    x_noln2 = False
    x_nogu = False
    x_nocomb = False
    rsl1 = 0
    rsl2 = 0
    x_fdelay = 0
    x_pert = ""
    x_noffn = False
    x_h2plain = False
    dwait = 9
    pfall = 0
    pfslow = True
    pfnt = ""
    pad = 0
O = Opt()

HML  = 0x10000
H3B  = 0x1D0000
H2   = 0x20000
H3A  = 0x60000
H4   = 0x84000
EPOCH = 0xE0000
H1   = 0xE8000
H1G, H2G, HMLG = 0x110000, 0x140000, 0x180000
HX = 0x1C0000
TAGM = 0x3ff
F_TAG, F_Q, CNT_O, F_GOE, F_GOL, F_X, CNT_GU, CNT_S, F_PUB, F_Y, F_K, F_HP = 0, 4, 8, 12, 16, 20, 24, 28, 32, 36, 40, 44
F_GO, CNT_GL = 52, 56
L_TAG = 48
L_Y = 0x80
L_STAT = 0x180
L_LN1, L_Q, L_OP, L_XLN2, L_GUP = 0x200, 0x700, 0xA00, 0x1A00, 0x1F00
L_CB = L_GUP + 16*256
L_CSP = L_CB + 512

LDS_BYTES = 0
sX, sK, sV, sWQ, sWO, sBX, sWG, sWU, sWD, sOUT, sDBG, sWS = 4, 6, 8, 10, 12, 14, 16, 18, 20, 22, 24, 26
sJ, sS, sBUD, sTAGM = 28, 29, 30, 31
sT3 = 51
LOG2E = 0x3fb8aa3b
SEL = 4
e = Emitter()
I = e.I
uid = [0]
def L(p):
    uid[0] += 1
    return f"L_{p}_{uid[0]}"
def sp(r): return f"s[{r}:{r+1}]"
def vr(r, n=4): return f"v[{r}:{r+n-1}]"
def br(text):
    e.raw("  " + text); e._advance(1)

def add64(d, b, off):
    I(f"s_add_u32 s{d}, s{b}, {off}")
    I(f"s_addc_u32 s{d+1}, s{b+1}, 0")

def srd(d, base, nrec):
    if d != base: I(f"s_mov_b32 s{d}, s{base}")
    I(f"s_and_b32 s{d+1}, s{base+1}, 0xffff")
    I(f"s_mov_b32 s{d+2}, {nrec}")
    I(f"s_mov_b32 s{d+3}, 0x20000")

def stamp(k):
    if O.diag and (k == 0 or not O.light): I(f"s_memrealtime s[{64+2*k}:{65+2*k}]")

def stamps_dyn():
    I("s_memrealtime s[86:87]")
    I("s_waitcnt lgkmcnt(0)")
    I("s_mov_b64 exec, 1")
    add64(62, sWS, "0x20000000")
    I("s_lshl_b32 s61, s60, 8\ns_add_u32 s61, s61, s2\ns_lshl_b32 s61, s61, 7")
    add64(62, 62, "s61")
    I("v_mov_b32 v2, 0")
    for k in ((0, 11) if O.light else range(12)):
        I(f"v_mov_b32 v4, s{64+2*k}\nv_mov_b32 v5, s{65+2*k}")
        I(f"global_store_dwordx2 v2, v[4:5], s[62:63] offset:{8*k}")
        I("s_nop 1")

def finish(role=None):
    if O.diag:
        I("s_mov_b32 s60, s59")
        stamps_dyn()
    I("s_endpgm")

def budget(done):
    I(f"s_cmp_eq_u32 s{sBUD}, 0")
    br(f"s_cbranch_scc1 {done}")
    I(f"s_sub_u32 s{sBUD}, s{sBUD}, 1")

def lds_spin(addr, val, vt=2, va=3):
    lp, done = L("spin"), L("spun")
    I(f"v_mov_b32 v{va}, {addr}")
    e.settle()
    e.label(lp)
    I(f"ds_read_b32 v{vt}, v{va}")
    budget(done)
    I("s_waitcnt lgkmcnt(0)")
    I(f"v_readfirstlane_b32 s{sT3}, v{vt}")
    I(f"s_cmp_ge_u32 s{sT3}, {val}")
    br(f"s_cbranch_scc0 {lp}")
    e.label(done)
    I("s_waitcnt lgkmcnt(0)")
    e.lgq = []

def lds_set(addr, val=1, vt=2, va=3):
    I(f"v_mov_b32 v{va}, {addr}\nv_mov_b32 v{vt}, {val}")
    I(f"ds_write_b32 v{va}, v{vt}")

def lds_inc(addr, va, vt):
    I(f"v_mov_b32 v{va}, {addr}\nv_mov_b32 v{vt}, 1\ns_mov_b64 exec, 1\nds_add_u32 v{va}, v{vt}\ns_mov_b64 exec, -1")

def check_set(src, dst, n, vt, vtag, mask=TAGM):
    for k in range(n): I(f"v_xor_b32 v{dst+k}, v{src+k}, v{vtag}")
    r = [dst+k for k in range(n)]
    I(f"v_or3_b32 v{vt}, v{r[0]}, v{r[1]}, v{r[2]}")
    q = r[3:]
    while len(q) >= 2:
        I(f"v_or3_b32 v{vt}, v{vt}, v{q[0]}, v{q[1]}"); q = q[2:]
    if q: I(f"v_or_b32 v{vt}, v{vt}, v{q[0]}")
    I(f"v_and_b32 v{vt}, {mask:#x}, v{vt}")
    I(f"v_cmp_ne_u32 vcc, 0, v{vt}")

def pollp(mk, nloads, n, setA, dst, vt, vtag, switch=None, check=None, tries=1):
    lp, done = L("poll"), L("polled")
    if switch: I(f"s_mov_b32 s57, {tries}")
    e.settle(); e.label(lp)
    if switch:
        lk = L("keep")
        I("s_sub_u32 s57, s57, 1"); br(f"s_cbranch_scc0 {lk}")
        switch()
        I("s_mov_b32 s57, 0x7fffffff")
        e.label(lk)
    mk(setA)
    budget(done)
    I("s_waitcnt vmcnt(0)")
    if check: check()
    else: check_set(setA, dst, n, vt, vtag)
    br(f"s_cbranch_vccnz {lp}")
    e.label(done)
    e.vmq = []

def get_tag(v, t):
    lds_spin(F_TAG, 1, t, t+1)
    I(f"v_mov_b32 v{t}, {L_TAG}")
    I(f"ds_read_b32 v{v}, v{t}")
    I(f"s_movk_i32 s{sTAGM}, {TAGM:#x}")
    I("s_waitcnt lgkmcnt(0)")
    I(f"v_and_b32 v{v}, {TAGM:#x}, v{v}")

def tag4(r, vtag):
    for k in range(4): I(f"v_bfi_b32 v{r+k}, s{sTAGM}, v{vtag}, v{r+k}")

def rows_allreduce(op, vs, steps=(8, 4, 2, 1)):
    for k in steps:
        for v in vs: I(f"v_{op}_f32_dpp v{v}, v{v}, v{v} row_ror:{k} row_mask:0xf bank_mask:0xf")

def cross_allreduce(op, vs, ts):
    for sw in ("v_permlane16_swap_b32", "v_permlane32_swap_b32"):
        for v, t in zip(vs, ts): I(f"v_mov_b32 v{t}, v{v}")
        for v, t in zip(vs, ts): I(f"{sw} v{v}, v{t}")
        for v, t in zip(vs, ts): I(f"v_{op}_f32 v{v}, v{v}, v{t}")

def allreduce(op, vs, ts):
    rows_allreduce(op, vs); cross_allreduce(op, vs, ts)

def rscatter4(r):
    I(f"v_permlane32_swap_b32 v{r}, v{r+2}")
    I(f"v_permlane32_swap_b32 v{r+1}, v{r+3}")
    I(f"v_pk_add_f32 v[{r}:{r+1}], v[{r}:{r+1}], v[{r+2}:{r+3}]")
    I(f"v_permlane16_swap_b32 v{r}, v{r+1}")
    I(f"v_add_f32 v{r}, v{r}, v{r+1}")

def gather_rows(src, dst):
    I(f"v_mov_b32 v{dst}, v{src}\nv_mov_b32 v{dst+1}, v{src}")
    I(f"v_permlane16_swap_b32 v{dst}, v{dst+1}")
    I(f"v_mov_b32 v{dst+2}, v{dst}\nv_mov_b32 v{dst+3}, v{dst+1}")
    I(f"v_permlane32_swap_b32 v{dst}, v{dst+2}\nv_permlane32_swap_b32 v{dst+1}, v{dst+3}")

def rne1(v, t):
    I(f"v_cvt_pk_bf16_f32 v{t}, v{v}, v{v}")
    I(f"v_lshlrev_b32 v{v}, 16, v{t}")

def rne2(a, b, t):
    I(f"v_cvt_pk_bf16_f32 v{t}, v{a}, v{b}")
    I(f"v_lshlrev_b32 v{a}, 16, v{t}")
    I(f"v_and_b32 v{b}, 0xffff0000, v{t}")

def pk(op, d, a, b, mods=""):
    I(f"v_pk_{op}_f32 v[{d}:{d+1}], v[{a}:{a+1}], v[{b}:{b+1}] {mods}".rstrip())

def make_sel(t):
    m, b, h, c = t, t+1, t+2, t+3
    I(f"v_and_b32 v{m}, 15, v0")
    I(f"v_lshrrev_b32 v{b}, 3, v{m}")
    I(f"v_mul_u32_u24 v{b}, 0x0202, v{b}")
    I(f"v_add_u32 v{b}, 0x0100, v{b}")
    I(f"v_lshlrev_b32 v{h}, 16, v{b}")
    I(f"v_or_b32 v{h}, 0x0c0c, v{h}")
    I(f"v_or_b32 v{b}, 0x0c0c0000, v{b}")
    I(f"v_and_b32 v{c}, 1, v{m}")
    I(f"v_cmp_eq_u32 vcc, 1, v{c}")
    I(f"v_cndmask_b32 v{b}, v{b}, v{h}, vcc")
    I(f"v_bfe_u32 v{m}, v{m}, 1, 2")
    I(f"v_mov_b32 v{c}, 0x0c0c0c0c")
    for d in range(4):
        I(f"v_cmp_eq_u32 vcc, {d}, v{m}")
        I(f"v_cndmask_b32 v{SEL+d}, v{c}, v{b}, vcc")

MSK = [156]
def make_msk(dst, t):
    MSK[0] = dst
    I(f"v_mov_b32 v{t}, -1")
    for d in range(4): I(f"v_perm_b32 v{dst+d}, v{t}, v{t}, v{SEL+d}")

def build_m(a, src):
    for d in range(4): I(f"v_and_b32 v{a+d}, v{src}, v{MSK[0]+d}")

def build_a(a, src):
    for d in range(4): I(f"v_perm_b32 v{a+d}, v{src}, v{src}, v{SEL+d}")

def mfma(acc, a, b, first=False):
    c = "0" if first else vr(acc)
    I(f"v_mfma_f32_16x16x32_bf16 {vr(acc)}, {vr(a)}, {vr(b)}, {c}")

def gemv(n, acc, abuf, wreg, src, pre=None, wait=None, bld=None, acc2=None, wreg2=None):
    def build(i):
        if pre: pre(i)
        (bld or build_a)(abuf + 4*(i & 1), src(i))
    build(0)
    if n > 1: build(1)
    for i in range(n):
        if wait: wait(i)
        mfma(acc, abuf + 4*(i & 1), wreg(i), first=(i == 0))
        if acc2 is not None: mfma(acc2, abuf + 4*(i & 1), wreg2(i), first=(i == 0))
        if i + 2 < n: build(i + 2)

def layernorm(f, nA, maskB, t, out):
    n = len(f); f0 = f[0]
    s1, s2, u, w, mm, rr = t, t+1, t+2, t+3, t+4, t+6
    d = t + 8
    I(f"v_readlane_b32 s48, v{f0}, 0")
    I("s_mov_b32 s49, s48")
    for k in range(0, nA, 2): I(f"v_pk_add_f32 v[{d+k}:{d+k+1}], v[{f0+k}:{f0+k+1}], s[48:49] neg_lo:[0,1] neg_hi:[0,1]")
    for k in range(nA, n): I(f"v_mov_b32 v{d+k}, 0")
    I(f"s_mov_b64 exec, {maskB}")
    for k in range(nA, n, 2): I(f"v_pk_add_f32 v[{d+k}:{d+k+1}], v[{f0+k}:{f0+k+1}], s[48:49] neg_lo:[0,1] neg_hi:[0,1]")
    I("s_mov_b64 exec, -1")
    pk("mul", mm, d, d)
    pk("add", rr, d, d+2)
    for k in range(2, n, 2): I(f"v_pk_fma_f32 v[{mm}:{mm+1}], v[{d+k}:{d+k+1}], v[{d+k}:{d+k+1}], v[{mm}:{mm+1}]")
    for k in range(4, n, 2): pk("add", rr, rr, d+k)
    I(f"v_add_f32 v{s2}, v{mm}, v{mm+1}\nv_add_f32 v{s1}, v{rr}, v{rr+1}")
    allreduce("add", [s1, s2], [u, w])
    I(f"v_mul_f32 v{s1}, 0x3ae38e39, v{s1}\nv_mul_f32 v{s2}, 0x3ae38e39, v{s2}")
    I(f"v_fma_f32 v{s2}, -v{s1}, v{s1}, v{s2}")
    I(f"v_add_f32 v{s1}, s48, v{s1}")
    I(f"v_max_f32 v{s2}, 0, v{s2}")
    I(f"v_cvt_pk_bf16_f32 v{u}, v{s1}, v{s2}")
    I(f"v_and_b32 v{s2}, 0xffff0000, v{u}\nv_lshlrev_b32 v{mm}, 16, v{u}")
    I(f"v_add_f32 v{s2}, 0x3727c5ac, v{s2}")
    I(f"v_mov_b32 v{mm+1}, v{mm}")
    rne1(s2, u)
    I(f"v_sqrt_f32 v{s2}, v{s2}")
    for k in range(0, n, 2): I(f"v_pk_add_f32 v[{d+k}:{d+k+1}], v[{f0+k}:{f0+k+1}], v[{mm}:{mm+1}] neg_lo:[0,1] neg_hi:[0,1]")
    rne1(s2, u)
    I(f"v_rcp_f32 v{rr}, v{s2}")
    for k in range(0, n, 2): I(f"v_cvt_pk_bf16_f32 v{f0+k}, v{d+k}, v{d+k+1}")
    I(f"v_mov_b32 v{rr+1}, v{rr}")
    for k in range(0, n, 2):
        I(f"v_lshlrev_b32 v{d+k}, 16, v{f0+k}\nv_and_b32 v{d+k+1}, 0xffff0000, v{f0+k}")
    for k in range(0, n, 2): pk("mul", d+k, d+k, rr)
    for k in range(0, n, 2): I(f"v_cvt_pk_bf16_f32 v{out+k//2}, v{d+k}, v{d+k+1}")

def ln_stats(f, nA, maskB, t):
    n = len(f); f0 = f[0]
    s1, s2, u, w, mm, rr = t, t+1, t+2, t+3, t+4, t+6
    d = t + 8
    I(f"v_readlane_b32 s48, v{f0}, 0")
    I("s_mov_b32 s49, s48")
    for k in range(0, nA, 2): I(f"v_pk_add_f32 v[{d+k}:{d+k+1}], v[{f0+k}:{f0+k+1}], s[48:49] neg_lo:[0,1] neg_hi:[0,1]")
    for k in range(nA, n): I(f"v_mov_b32 v{d+k}, 0")
    I(f"s_mov_b64 exec, {maskB}")
    for k in range(nA, n, 2): I(f"v_pk_add_f32 v[{d+k}:{d+k+1}], v[{f0+k}:{f0+k+1}], s[48:49] neg_lo:[0,1] neg_hi:[0,1]")
    I("s_mov_b64 exec, -1")
    pk("mul", mm, d, d)
    pk("add", rr, d, d+2)
    for k in range(2, n, 2): I(f"v_pk_fma_f32 v[{mm}:{mm+1}], v[{d+k}:{d+k+1}], v[{d+k}:{d+k+1}], v[{mm}:{mm+1}]")
    for k in range(4, n, 2): pk("add", rr, rr, d+k)
    I(f"v_add_f32 v{s2}, v{mm}, v{mm+1}\nv_add_f32 v{s1}, v{rr}, v{rr+1}")
    allreduce("add", [s1, s2], [u, w])
    I(f"v_mul_f32 v{s1}, 0x3ae38e39, v{s1}\nv_mul_f32 v{s2}, 0x3ae38e39, v{s2}")
    I(f"v_fma_f32 v{s2}, -v{s1}, v{s1}, v{s2}")
    I(f"v_add_f32 v{s1}, s48, v{s1}")
    I(f"v_max_f32 v{s2}, 0, v{s2}")
    I(f"v_cvt_pk_bf16_f32 v{u}, v{s1}, v{s2}")
    I(f"v_and_b32 v{s2}, 0xffff0000, v{u}\nv_lshlrev_b32 v{mm}, 16, v{u}")
    I(f"v_add_f32 v{s2}, 0x3727c5ac, v{s2}")
    rne1(s2, u)
    I(f"v_sqrt_f32 v{s2}, v{s2}")
    rne1(s2, u)
    I(f"v_rcp_f32 v{rr}, v{s2}")

def ids():
    I("s_and_b32 s28, s2, 7\ns_lshl_b32 s28, s28, 1\ns_bfe_u32 s29, s2, 0x10003\ns_add_u32 s28, s28, s29")
    I("s_lshr_b32 s29, s2, 4")
    if O.sperm:
        I(f"s_mov_b32 s50, 0x{O.sperm[8:]}\ns_mov_b32 s51, 0x{O.sperm[:8]}\ns_lshl_b32 s29, s29, 2\ns_lshr_b64 s[50:51], s[50:51], s29\ns_and_b32 s29, s50, 15")
    I(f"s_mov_b32 s{sBUD}, {O.budget}")

def prologue():
    e.raw(f".globl {NAME}\n.p2align 8\n.type {NAME},@function\n{NAME}:")
    I("s_cmp_ge_u32 s2, 256")
    br("s_cbranch_scc1 L_end")
    I("s_load_dwordx16 s[4:19], s[0:1], 0")
    I("s_load_dwordx8 s[20:27], s[0:1], 64")
    I("v_lshrrev_b32 v1, 6, v0")
    I("v_and_b32 v0, 63, v0")
    I("v_readfirstlane_b32 s3, v1")
    if O.prefetch and O.pf0:
        lp, ls = L("pc0"), L("nopf")
        I("s_cmp_lt_u32 s2, 16"); br(f"s_cbranch_scc0 {ls}")
        I("s_getpc_b64 s[32:33]")
        e.label(lp)
        I(f"s_sub_u32 s32, s32, {lp}-{NAME}\ns_subb_u32 s33, s33, 0")
        I("s_lshr_b32 s48, s2, 3\ns_mul_i32 s48, s48, 9\ns_add_u32 s48, s48, s3\ns_lshl_b32 s48, s48, 10")
        I("v_lshlrev_b32 v2, 4, v0\nv_add_u32 v2, s48, v2\nv_min_u32 v2, CODE_BYTES-16, v2")
        I(f"global_load_dwordx4 v[160:163], v2, s[32:33] {O.pfpol}")
        e.label(ls)
    if O.pad: I("s_memrealtime s[90:91]")
    if O.diag:
        for k in range(66, 88): I(f"s_mov_b32 s{k}, 0")
        I("s_mov_b32 s59, s3")
    stamp(0)
    I("s_cmp_eq_u32 s3, 8"); br("s_cbranch_scc1 L_C")
    I("s_cmp_ge_u32 s3, 6"); br("s_cbranch_scc1 L_T")
    I("s_cmp_eq_u32 s3, 1"); br("s_cbranch_scc1 L_T")
    I("s_cmp_ge_u32 s3, 2"); br("s_cbranch_scc1 L_A")

def merge_tile(t, DA, S0):
    d0, d1 = DA + 8*(t & 1), DA + 8*(t & 1) + 4
    for h in range(2):
        I(f"v_cndmask_b32 v{d0+h}, v{d0+h}, v{d1+h}, s[56:57]")
        I(f"v_cndmask_b32 v{d0+2+h}, v{d1+2+h}, v{d0+2+h}, s[56:57]")
    for h in range(2):
        I(f"v_add_f32_dpp v{S0+h}, v{d0+2+h}, v{d0+h} quad_perm:[1,0,3,2] row_mask:{1<<t:#x} bank_mask:0xf")

def role_A():
    KB, VB = 40, 104
    def KR(t, ee, l): return KB + 4*(4*t + 2*ee + l)
    def VR(i): return VB + 4*i
    QA, DA, S0, S1, P = 8, 16, 32, 33, 34
    QADDR, OADDR, HOFF = 35, 36, 37
    if O.shift: e.raw(f".fill {O.shift//4}, 4, 0xbf800000")
    if O.align: e.raw(f".p2align {O.align}")
    e.label("L_A")
    I("s_setprio 2")
    ids()
    I("s_sub_u32 s3, s3, 2")
    if O.aprio:
        lpz = L("prio")
        I(f"s_cmp_ge_u32 s3, {4-O.aprio}"); br(f"s_cbranch_scc0 {lpz}")
        I("s_setprio 3")
        e.label(lpz)
    I("v_bfe_u32 v8, v0, 1, 3\nv_lshlrev_b32 v8, 8, v8")
    I("v_lshrrev_b32 v9, 4, v0")
    I("v_and_b32 v10, 1, v0")
    I("v_lshl_add_u32 v11, v9, 1, v10\nv_lshl_add_u32 v1, v11, 4, v8")
    I("s_lshl_b32 s49, s3, 4\ns_add_u32 s49, s49, s29")
    I(f"s_lshl_b32 s48, s28, 24\ns_add_u32 s48, s48, {61440*256}")
    I("v_xor_b32 v10, 1, v10\nv_lshl_add_u32 v11, v9, 1, v10\nv_lshl_add_u32 v2, v11, 4, v8")
    I("s_lshl_b32 s40, s49, 11")
    def grp(k): I(f"s_add_u32 s50, s49, {O.krot*k}\ns_and_b32 s50, s50, 63\ns_add_u32 s50, s50, {64*k}\ns_lshl_b32 s{40+k}, s50, 11")
    for k in range(1, 8): grp(k)
    I("s_waitcnt lgkmcnt(0)")
    if O.diag3: stamp(9)
    add64(32, sK, "s48"); srd(32, 32, 0x100000)
    I("s_barrier")
    if O.diag3: stamp(10)
    seq = [("K", k) for k in range(16)] + [("V", i) for i in range(16)]
    def issue(n):
        kind, k = seq[n]
        if kind == "K":
            t, ee, l = k >> 2, (k >> 1) & 1, k & 1
            e.vm(f"buffer_load_dwordx4 {vr(KR(t,ee,l))}, v{1+ee}, s[32:35], s{40+2*t+ee} offen offset:{l*128} {O.nt}", ("K", k))
        else:
            e.vm(f"buffer_load_dwordx4 {vr(VR(k))}, v{(3, 31)[k & 1]}, s[36:39], 0 offen offset:{256*(k>>1)} {O.nt}", ("V", k))
            for idx, flag in ((O.iwo, F_GOE), (O.igo, F_GOL)):
                if k == idx: lds_inc(flag, 38, 39)
        if n == O.iq: lds_inc(F_K, 38, 39)
    for n in range(O.win): issue(n)
    stamp(1)
    for p_, vd in ((0, 3), (1, 31)):
        I(f"v_mov_b32 v{vd}, s{40+p_}")
        for g in range(1, 4):
            I(f"v_cmp_eq_u32 vcc, {g}, v9\nv_mov_b32 v11, s{40+2*g+p_}\nv_cndmask_b32 v{vd}, v{vd}, v11, vcc")
        I(f"v_and_b32 v10, 15, v0\nv_lshl_add_u32 v{vd}, v10, 4, v{vd}")
    add64(36, sV, "s48"); srd(36, 36, 0x100000)
    make_sel(20)
    I(f"v_and_b32 v20, 1, v0\nv_lshlrev_b32 v20, 8, v20")
    I("v_bfe_u32 v21, v0, 1, 1\nv_lshl_add_u32 v21, v9, 1, v21")
    I(f"v_lshl_add_u32 v{QADDR}, v21, 4, v20")
    I("s_mov_b32 s56, 0xaaaaaaaa\ns_mov_b32 s57, 0xaaaaaaaa")
    I("v_and_b32 v20, 15, v0\nv_lshlrev_b32 v20, 1, v20\nv_and_b32 v21, 1, v9\nv_add_u32 v20, v20, v21")
    I("v_lshrrev_b32 v21, 1, v9\nv_lshl_add_u32 v20, v21, 5, v20")
    I(f"s_lshl_b32 s49, s3, 10\ns_add_u32 s49, s49, {L_OP}\nv_lshl_add_u32 v{OADDR}, v20, 4, s49")
    I(f"v_lshlrev_b32 v20, 12, v9\nv_and_b32 v21, 15, v0\nv_lshl_add_u32 v{HOFF}, v21, 4, v20")
    I(f"s_lshl_b32 s49, s28, 14\ns_lshl_b32 s50, s29, 8\ns_add_u32 s49, s49, s50\ns_add_u32 s49, s49, {H2 if O.local else H2G}")
    add64(52, sWS, "s49")
    I(f"s_lshl_b32 s49, s28, 10\ns_lshl_b32 s50, s29, 4\ns_add_u32 s49, s49, s50\ns_add_u32 s49, s49, {HML if O.local else HMLG}")
    add64(54, sWS, "s49")
    def stream(win):
        nxt = O.win
        while nxt < 32:
            e.vm_wait_n(win - 1); issue(nxt); nxt += 1
    if O.winw and O.winw != O.win:
        lw, lj = L("winw"), L("winj")
        I("s_sub_u32 s50, s29, 9\ns_cmp_lt_u32 s50, 4"); br(f"s_cbranch_scc1 {lw}")
        q0 = list(e.vmq)
        stream(O.win)
        qa = list(e.vmq)
        e.branch(f"s_branch {lj}")
        e.label(lw)
        e.vmq = list(q0)
        stream(O.winw)
        e.label(lj)
        if len(qa) > len(e.vmq): e.vmq = qa
    else:
        stream(O.win)
    stamp(2)
    if not O.x_noqwait: lds_spin(F_Q, 1, 38, 39)
    else: lds_spin(F_TAG, 1, 38, 39)
    stamp(3)
    I(f"v_mov_b32 v38, {L_TAG}\nds_read_b32 v39, v38\ns_movk_i32 s{sTAGM}, {TAGM:#x}")
    e.lg(f"ds_read_b128 {vr(QA)}, v{QADDR} offset:{L_Q}", "qa0")
    e.lg(f"ds_read_b128 {vr(QA+4)}, v{QADDR} offset:{L_Q+128}", "qa1")
    e.vm_wait(("K", 15))
    e.lg_all()
    I(f"v_and_b32 v39, {TAGM:#x}, v39")
    for t in range(4):
        d0, d1 = DA + 8*(t & 1), DA + 8*(t & 1) + 4
        for ee, d in ((0, d0), (1, d1)): mfma(d, QA, KR(t, ee, 0), first=True)
        for ee, d in ((0, d0), (1, d1)): mfma(d, QA+4, KR(t, ee, 1))
        if t == 0: I("v_readfirstlane_b32 s58, v39")
        if t >= 1: merge_tile(t-1, DA, S0)
    merge_tile(3, DA, S0)
    rne2(S0, S1, 20)
    I(f"v_mul_f32 v{S0}, 0x3db504f3, v{S0}\nv_mul_f32 v{S1}, 0x3db504f3, v{S1}")
    rne2(S0, S1, 20)
    M0, L0, M1, L1 = 24, 25, 26, 27
    I(f"v_mov_b32 v{M0}, v{S0}\nv_mov_b32 v{M1}, v{S1}")
    allreduce("max", [M0, M1], [20, 21])
    I(f"v_sub_f32 v{S0}, v{S0}, v{M0}\nv_sub_f32 v{S1}, v{S1}, v{M1}")
    I(f"v_mul_f32 v{S0}, {LOG2E:#x}, v{S0}\nv_mul_f32 v{S1}, {LOG2E:#x}, v{S1}")
    I(f"v_exp_f32 v{L0}, v{S0}\nv_exp_f32 v{L1}, v{S1}")
    I(f"v_cvt_pk_bf16_f32 v{P}, v{L0}, v{L1}")
    stamp(4)
    ACC = 16
    def bld(i):
        I(f"v_mov_b32_dpp v{20+(i&1)}, v{P} row_newbcast:{i} row_mask:0xf bank_mask:0xf")
        build_a(QA + 4*(i & 1), 20 + (i & 1))
    def pv(i):
        e.vm_wait(("V", i))
        mfma(ACC, QA + 4*(i & 1), VR(i), first=(i == 0))
        if i + 2 < 16: bld(i + 2)
    bld(0); bld(1)
    for i in range(4): pv(i)
    allreduce("add", [L0, L1], [22, 23])
    I(f"s_lshl_b32 s48, s3, 4\ns_add_u32 s48, s48, {L_STAT}\nv_mov_b32 v22, s48")
    I("s_mov_b64 exec, 1")
    e.lg(f"ds_write_b128 v22, {vr(M0)}", "st")
    I(f"v_mov_b32 v22, {CNT_S}\nv_mov_b32 v23, 1")
    e.lg_wait("st")
    I("ds_add_u32 v22, v23")
    I("s_mov_b64 exec, -1")
    for i in range(4, 8): pv(i)
    lds_spin(CNT_S, 4, 22, 23)
    I(f"v_mov_b32 v22, {L_STAT}")
    ST = 40
    for w in range(4): e.lg(f"ds_read_b128 {vr(ST+4*w)}, v22 offset:{16*w}", ("sw", w))
    e.lg_wait(("sw", 3))
    GM0, GM1, GL0, GL1, F = 56, 57, 58, 59, 60
    I(f"v_max3_f32 v{GM0}, v{ST}, v{ST+4}, v{ST+8}\nv_max3_f32 v{GM1}, v{ST+2}, v{ST+6}, v{ST+10}")
    I(f"v_max_f32 v{GM0}, v{GM0}, v{ST+12}\nv_max_f32 v{GM1}, v{GM1}, v{ST+14}")
    for w in range(4): I(f"v_sub_f32 v{ST+4*w}, v{ST+4*w}, v{GM0}\nv_sub_f32 v{ST+4*w+2}, v{ST+4*w+2}, v{GM1}")
    for w in range(4): I(f"v_mul_f32 v{ST+4*w}, {LOG2E:#x}, v{ST+4*w}\nv_mul_f32 v{ST+4*w+2}, {LOG2E:#x}, v{ST+4*w+2}")
    for w in range(4): I(f"v_exp_f32 v{ST+4*w}, v{ST+4*w}\nv_exp_f32 v{ST+4*w+2}, v{ST+4*w+2}")
    I(f"v_sub_f32 v{M0}, v{M0}, v{GM0}\nv_sub_f32 v{M1}, v{M1}, v{GM1}")
    I(f"v_mul_f32 v{GL0}, v{ST}, v{ST+1}\nv_mul_f32 v{GL1}, v{ST+2}, v{ST+3}")
    I(f"v_mul_f32 v{M0}, {LOG2E:#x}, v{M0}\nv_mul_f32 v{M1}, {LOG2E:#x}, v{M1}")
    for w in range(1, 4): I(f"v_fmac_f32 v{GL0}, v{ST+4*w}, v{ST+4*w+1}\nv_fmac_f32 v{GL1}, v{ST+4*w+2}, v{ST+4*w+3}")
    I(f"v_exp_f32 v{M0}, v{M0}\nv_exp_f32 v{M1}, v{M1}")
    I("s_mov_b32 s48, 0\ns_mov_b32 s49, -1\ns_mov_b32 s50, 0xc\ns_mov_b32 s51, 0")
    I(f"v_cndmask_b32 v{F}, v{M0}, v{M1}, s[48:49]")
    ML = 64
    I(f"v_cndmask_b32 v{ML}, v{GM0}, v{GM1}, s[50:51]\nv_cndmask_b32 v{ML+1}, v{GL0}, v{GL1}, s[50:51]")
    I(f"v_mov_b32 v{ML+8}, s58")
    I(f"v_mov_b32 v{ML+2}, 0\nv_mov_b32 v{ML+3}, 0\nv_lshlrev_b32 v{ML+4}, 8, v0")
    tag4(ML, ML+8)
    I(f"v_mov_b32 v{ML+5}, {CNT_O}\nv_mov_b32 v{ML+6}, 1\nv_lshlrev_b32 v{ML+7}, 4, v0")
    I(f"v_mov_b32 v{F+1}, v{F}")
    for i in range(8, 16): pv(i)
    stamp(5)
    pk("mul", ACC, ACC, F); pk("mul", ACC+2, ACC+2, F)
    e.lg(f"ds_write_b128 v{OADDR}, {vr(ACC)}", "op")
    I("s_mov_b64 exec, 1")
    e.lg_wait("op")
    e.lg(f"ds_add_rtn_u32 v{ML+6}, v{ML+5}, v{ML+6}", "cnt")
    e.lg_wait("cnt")
    I(f"v_readfirstlane_b32 s48, v{ML+6}")
    I("s_mov_b64 exec, -1")
    I("s_cmp_eq_u32 s48, 3")
    br("s_cbranch_scc0 L_A_done")
    for w in range(4): e.lg(f"ds_read_b128 {vr(40+4*w)}, v{ML+7} offset:{L_OP+1024*w}", ("o", w))
    e.lg_wait(("o", 1))
    pk("add", 40, 40, 44); pk("add", 42, 42, 46)
    e.lg_wait(("o", 3))
    pk("add", 48, 48, 52); pk("add", 50, 50, 54)
    pk("add", 40, 40, 48); pk("add", 42, 42, 50)
    tag4(40, ML+8)
    if O.local:
        I(f"global_store_dwordx4 v{HOFF}, {vr(40)}, s[52:53]")
        I("s_mov_b64 exec, 0xf")
        I(f"global_store_dwordx4 v{ML+4}, {vr(ML)}, s[54:55]")
        I("s_mov_b64 exec, -1")
        add64(52, 52, H2G - H2); add64(54, 54, HMLG - HML)
    I(f"global_store_dwordx4 v{HOFF}, {vr(40)}, s[52:53] sc1")
    I("s_mov_b64 exec, 0xf")
    I(f"global_store_dwordx4 v{ML+4}, {vr(ML)}, s[54:55] sc1")
    I("s_mov_b64 exec, -1")
    lds_set(F_HP, 1, 38, 39)
    e.settle()
    e.label("L_A_done")
    stamp(6)
    if not O.x_notail:
        if O.pfslow:
            I("s_cmp_ge_u32 s29, 13"); br("s_cbranch_scc1 L_A_pf")
        I("s_cmp_lt_u32 s29, 9")
        br("s_cbranch_scc0 L_A_end")
        I("s_add_u32 s3, s3, 4")
        lds_spin(F_GO if O.fgate else F_HP, 1, 38, 39)
        e.branch("s_branch L_FFN")
        if O.pfslow:
            e.label("L_A_pf")
            I("s_lshr_b32 s48, s28, 1")
            I("s_sub_u32 s49, 3, s48\ns_and_b32 s49, s49, 7")
            I("s_mul_i32 s50, s48, 9\ns_add_u32 s50, s50, s49\ns_lshl_b32 s50, s50, 7")
            I("s_and_b32 s51, s28, 1\ns_mul_i32 s51, s51, 3\ns_add_u32 s51, s51, s29\ns_sub_u32 s51, s51, 13\ns_lshl_b32 s51, s51, 2\ns_add_u32 s51, s51, s3")
            I("s_mul_i32 s51, s51, 24*9216\ns_add_u32 s50, s50, s51")
            I("v_lshrrev_b32 v8, 3, v0\nv_mul_u32_u24 v8, 9216, v8\nv_and_b32 v9, 7, v0\nv_lshl_add_u32 v8, v9, 4, v8")
            I(f"s_mov_b32 s32, s{sWG}"); srd(32, sWG, 576*9216)
            I(f"s_mov_b32 s36, s{sWU}"); srd(36, sWU, 576*9216)
            lds_spin(F_HP, 1, 38, 39)
            def six():
                for i in range(3):
                    I(f"s_add_u32 s51, s50, {8*9216*i}")
                    I(f"buffer_load_dwordx4 {vr(40+8*i)}, v8, s[32:35], s51 offen {O.pfnt}")
                    I(f"buffer_load_dwordx4 {vr(44+8*i)}, v8, s[36:39], s51 offen {O.pfnt}")
            six()
            lp2 = L("pf2")
            I("s_cmp_eq_u32 s48, 3"); br(f"s_cbranch_scc0 {lp2}")
            I("s_add_u32 s50, s50, 8*128")
            six()
            e.label(lp2)
            if O.pfall:
                nr = 8*O.pfall
                I("s_and_b32 s51, s28, 1\ns_mul_i32 s51, s51, 3\ns_add_u32 s51, s51, s29\ns_sub_u32 s51, s51, 13\ns_lshl_b32 s51, s51, 2\ns_add_u32 s51, s51, s3")
                I(f"s_and_b32 s50, s51, 7\ns_mul_i32 s50, s50, 72\ns_add_u32 s50, s50, {72-nr}")
                I(f"s_lshr_b32 s51, s51, 3\ns_mul_i32 s51, s51, {nr//3 if nr % 3 == 0 else (nr+2)//3}\ns_add_u32 s50, s50, s51")
                I("s_mul_i32 s50, s50, 9216\ns_mul_i32 s51, s48, 1152\ns_add_u32 s50, s50, s51")
                I("v_lshlrev_b32 v9, 4, v0")
                n3 = nr//3 if nr % 3 == 0 else (nr+2)//3
                for r in range(n3):
                    I(f"s_add_u32 s51, s50, {9216*r}")
                    I(f"buffer_load_dwordx4 {vr(40+8*(r&3))}, v9, s[32:35], s51 offen {O.pfnt}")
                    I(f"buffer_load_dwordx4 {vr(44+8*(r&3))}, v9, s[36:39], s51 offen {O.pfnt}")
                for r in range(0, n3, 8):
                    I(f"s_add_u32 s51, s50, {9216*r + 1024}")
                    I(f"buffer_load_dwordx4 {vr(72)}, v8, s[32:35], s51 offen {O.pfnt}")
                    I(f"buffer_load_dwordx4 {vr(76)}, v8, s[36:39], s51 offen {O.pfnt}")
    e.label("L_A_end")
    finish()

def half_combine(acc, t):
    for r in range(4): I(f"v_mov_b32 v{t+r}, v{acc+r}")
    for r in range(4): I(f"v_permlane32_swap_b32 v{acc+r}, v{t+r}")
    for r in range(4): I(f"v_add_f32_dpp v{acc+r}, v{t+r}, v{acc+r} row_ror:8 row_mask:0xf bank_mask:0xf")

def role_T0_head():
    WB = 32
    I("s_setprio 3")
    ids()
    I("s_mov_b32 s58, s29\ns_mov_b32 s57, 0")
    if O.movewq:
        I("s_sub_u32 s48, s29, 9\ns_cmp_lt_u32 s48, 4"); br("s_cbranch_scc1 L_T0_skip")
    e.label("L_head")
    I("v_lshlrev_b32 v1, 4, v0")
    I("v_lshrrev_b32 v16, 4, v0\nv_bfe_u32 v17, v0, 3, 1")
    I("v_and_b32 v18, 7, v0\nv_lshlrev_b32 v18, 4, v18")
    I("v_lshl_add_u32 v19, v16, 3, v17\nv_lshl_add_u32 v2, v19, 13, v18")
    I("v_lshl_add_u32 v19, v16, 2, v17\nv_lshl_add_u32 v3, v19, 13, v18")
    I("s_lshr_b32 s48, s58, 2\ns_mul_i32 s49, s48, 0x120000\ns_and_b32 s50, s58, 3\ns_lshl_b32 s50, s50, 7\ns_add_u32 s49, s49, s50")
    I("s_lshl_b32 s50, s28, 9\ns_add_u32 s49, s49, s50")
    if O.diag3: stamp(5)
    I("s_waitcnt lgkmcnt(0)")
    if O.diag3: stamp(6)
    srd(32, sX, 1152)
    e.vm(f"buffer_load_dwordx4 {vr(8)}, v1, s[32:35], 0 offen", "xa")
    e.vm(f"buffer_load_dwordx4 {vr(12)}, v1, s[32:35], 0 offen offset:1024", "xb")
    add64(36, sWQ, "s49"); srd(36, 36, 144*8192)
    steps = [(2, (32*Ig + 2*ii)*8192) for Ig in range(4) for ii in range(4)] + [(3, 128*8192), (3, 130*8192)]
    I(f"s_movk_i32 s51, 0x4000\ns_mov_b32 s52, {(32-6)*8192}\ns_mov_b32 s50, 0")
    prev = 0
    for k, (vo, so) in enumerate(steps):
        if k == O.tbar: I("s_barrier")
        d = so - prev; prev = so
        if d == 16384: I("s_add_u32 s50, s50, s51")
        elif d: I("s_add_u32 s50, s50, s52"); assert d == 26*8192, d
        e.vm(f"buffer_load_dwordx4 {vr(WB+4*k)}, v{vo}, s[36:39], s50 offen {O.nt}", ("wq", k))
    if O.tbar >= 18: I("s_barrier")
    stamp(1)
    make_sel(104)
    I("v_lshrrev_b32 v104, 4, v0\nv_lshlrev_b32 v105, 4, v104\nv_lshlrev_b32 v106, 3, v104")
    I(f"s_mul_i32 s50, s48, 288\ns_add_u32 s50, s50, {L_LN1}")
    I("v_add_u32 v150, s50, v105\nv_add_u32 v151, s50, v106")
    I("v_and_b32 v152, 7, v0\nv_lshlrev_b32 v152, 1, v152\nv_add_u32 v152, v152, v104\nv_lshlrev_b32 v152, 4, v152")
    I("s_lshl_b32 s49, s28, 13\ns_lshl_b32 s50, s48, 11\ns_add_u32 s49, s49, s50\ns_and_b32 s50, s58, 3\ns_lshl_b32 s50, s50, 8\ns_add_u32 s49, s49, s50")
    I(f"s_add_u32 s49, s49, {H1 if O.qlocal else H1G}")
    add64(44, sWS, "s49")
    e.vm_wait("xb")
    for half, base in ((0, 8), (1, 12)):
        for d in range(4):
            I(f"v_lshlrev_b32 v{16+8*half+2*d}, 16, v{base+d}")
            I(f"v_and_b32 v{17+8*half+2*d}, 0xffff0000, v{base+d}")
    layernorm(list(range(16, 32)), 8, "0xff", 104, 8)
    e.lg(f"ds_write_b128 v1, {vr(8)} offset:{L_LN1}", "ln")
    I("s_mov_b64 exec, 0xff")
    e.lg(f"ds_write_b128 v1, {vr(12)} offset:{L_LN1+1024}", "ln2")
    I("s_mov_b64 exec, -1")
    e.lg_all()
    for Ig in range(4): e.lg(f"ds_read_b128 {vr(108+4*Ig)}, v150 offset:{64*Ig}", ("pk", Ig))
    e.lg(f"ds_read_b64 v[124:125], v151 offset:256", ("pk", 4))
    stamp(2)
    ACC = 16
    gemv(18, ACC, 20, lambda k: WB + 4*k, lambda k: 108 + k,
         pre=lambda k: e.lg_wait(("pk", k >> 2)) if (k & 3) == 0 else None,
         wait=lambda k: e.vm_wait(("wq", k)))
    stamp(3)
    get_tag_full = True
    lds_spin(F_TAG, 1, 28, 29)
    I(f"v_mov_b32 v28, {L_TAG}\nds_read_b32 v30, v28")
    half_combine(ACC, 20)
    I("s_waitcnt lgkmcnt(0)")
    I(f"v_mov_b32 v28, v{ACC}\nv_mov_b32 v29, v{ACC+1}\nv_mov_b32 v31, v30")
    I(f"v_mov_b32 v20, v{ACC+2}\nv_mov_b32 v21, v{ACC+3}\nv_mov_b32 v22, v30\nv_mov_b32 v23, v30")
    I("s_mov_b32 exec_lo, 0x00ff00ff\ns_mov_b32 exec_hi, 0")
    if O.qlocal:
        I(f"global_store_dwordx4 v152, v[28:31], s[44:45]")
        I(f"global_store_dwordx4 v152, v[20:23], s[44:45] offset:1024")
        add64(44, 44, H1G - H1)
    I(f"global_store_dwordx4 v152, v[28:31], s[44:45] sc1")
    I(f"global_store_dwordx4 v152, v[20:23], s[44:45] offset:1024 sc1")
    I("s_mov_b64 exec, -1")
    stamp(4)
    I("s_cmp_eq_u32 s57, 1"); br("s_cbranch_scc1 L_T_exit")
    I("s_mov_b32 s3, 0")
    e.branch("s_branch L_Tail")
    if O.movewq:
        e.label("L_T0_skip")
        I("s_waitcnt lgkmcnt(0)")
        I("s_barrier")
        make_sel(8)
        I("s_mov_b32 s3, 0")
        e.branch("s_branch L_Tail")
    e.label("L_T_exit")
    finish()

def role_C():
    e.comment("===== wave 1: launch tag, gathers")
    if O.align: e.raw(f".p2align {O.align}")
    e.label("L_C")
    I("s_setprio 3")
    I("v_lshlrev_b32 v2, 2, v0\nv_mov_b32 v3, 0")
    I("ds_write_b32 v2, v3")
    ids()
    I("s_waitcnt lgkmcnt(0)")
    I("s_barrier")
    add64(34, sWS, EPOCH)
    I("s_load_dword s56, s[34:35], 0")
    I("v_lshlrev_b32 v1, 4, v0")
    if O.prefetch and not O.pf0:
        lp = L("pc")
        I("s_getpc_b64 s[32:33]")
        e.label(lp)
        I(f"s_sub_u32 s32, s32, {lp}-{NAME}\ns_subb_u32 s33, s33, 0")
        I("s_lshr_b32 s48, s2, 3\ns_and_b32 s48, s48, PF_MASK\ns_lshl_b32 s48, s48, 10")
        I("v_add_u32 v2, s48, v1\nv_min_u32 v2, CODE_BYTES-16, v2")
        I("global_load_dwordx4 v[16:19], v2, s[32:33]")
    stamp(1)
    I("s_waitcnt lgkmcnt(0)")
    I("s_add_u32 s56, s56, 1")
    I(f"v_mov_b32 v40, s56")
    I(f"v_mov_b32 v3, {L_TAG}\nds_write_b32 v3, v40\ns_waitcnt lgkmcnt(0)")
    lds_set(F_TAG, 1, 2, 3)
    stamp(2)
    if O.local:
        I("s_getreg_b32 s61, hwreg(HW_REG_XCC_ID)\ns_and_b32 s61, s61, 15")
        I(f"s_lshl_b32 s48, s28, 8\ns_add_u32 s48, s48, {HX}"); add64(36, sWS, "s48")
        I("v_mov_b32 v41, s61\nv_mov_b32 v42, v40\nv_mov_b32 v43, s61")
        I("s_lshl_b32 s48, s29, 4\nv_mov_b32 v2, s48\ns_mov_b64 exec, 1")
        I("global_store_dwordx4 v2, v[40:43], s[36:37] sc1")
        I("s_mov_b64 exec, -1")
    stamp(4)
    def qbase(off):
        I(f"s_lshl_b32 s48, s28, 13\ns_add_u32 s48, s48, {off}"); add64(32, sWS, "s48")
        add64(34, 32, 4096)
    qbase(H1 if O.qlocal else H1G)
    lds_spin(F_K, O.nq, 2, 3)
    def mk(b):
        for k in range(8): I(f"global_load_dwordx4 {vr(b+4*k)}, v1, s[{32+2*(k>>2)}:{33+2*(k>>2)}] offset:{1024*(k&3)} sc1")
    def chk():
        I("v_xor_b32 v8, v46, v40")
        for k in range(8):
            for x in ((47,) if k == 0 else (46+4*k, 47+4*k)): I(f"v_bitop3_b32 v8, v8, v{x}, v40 bitop3:0xf6")
        I("v_cmp_ne_u32 vcc, 0, v8")
    pollp(mk, 8, 32, 44, 0, 8, 40, check=chk, switch=(lambda: qbase(H1G)) if O.qlocal else None, tries=1)
    I("s_waitcnt vmcnt(0)")
    for half in range(2):
        pk("add", 16+2*half, 44+4*half, 52+4*half)
        pk("add", 20+2*half, 60+4*half, 68+4*half)
    pk("add", 16, 16, 20); pk("add", 18, 18, 22)
    I("v_cvt_pk_bf16_f32 v8, v16, v17\nv_cvt_pk_bf16_f32 v9, v18, v19")
    I("v_lshlrev_b32 v2, 3, v0")
    I(f"ds_write_b64 v2, v[8:9] offset:{L_Q}")
    I("s_waitcnt lgkmcnt(0)")
    lds_set(F_Q, 1, 2, 3)
    stamp(3)
    I(f"v_and_b32 v15, {TAGM:#x}, v40")
    if O.x_notail: e.branch("s_branch L_C_done")
    I("s_cmp_ge_u32 s29, 13"); br("s_cbranch_scc1 L_C_done")
    I("s_cmp_ge_u32 s29, 9"); br("s_cbranch_scc1 L_WO_C")
    e.branch("s_branch L_FFN_C")
    e.label("L_C_done")
    finish()

def role_T():
    e.comment("===== waves 6..9 (tail index 1..4) and wave 0 after its q slice")
    if O.align: e.raw(f".p2align {O.align}")
    e.label("L_T")
    ids()
    I("s_cmp_eq_u32 s3, 1\ns_cselect_b32 s3, 8, s3\ns_sub_u32 s3, s3, 5")
    if O.movewq:
        ln = L("nohelp")
        I("s_sub_u32 s48, s29, 13\ns_cmp_lt_u32 s48, 2"); br(f"s_cbranch_scc0 {ln}")
        I("s_sub_u32 s49, s3, 1\ns_cmp_lt_u32 s49, 2"); br(f"s_cbranch_scc0 {ln}")
        I("s_lshl_b32 s48, s48, 1\ns_add_u32 s58, s48, s49\ns_add_u32 s58, s58, 9\ns_mov_b32 s57, 1\ns_setprio 3")
        e.branch("s_branch L_head")
        e.label(ln)
    I("s_waitcnt lgkmcnt(0)")
    I("s_barrier")
    make_sel(8)
    e.label("L_Tail")
    if O.x_notail: finish()
    I("s_setprio 0")
    I("s_cmp_ge_u32 s29, 13"); br("s_cbranch_scc1 L_RED")
    I("s_cmp_ge_u32 s29, 9"); br("s_cbranch_scc1 L_WO")
    if O.gearly: lds_spin(F_GOL, O.ngo, 8, 9)
    elif O.igo == 99: lds_spin(F_GO if O.fgate else F_HP, 1, 8, 9)
    else: lds_spin(F_GOL, O.ngo, 8, 9)
    e.branch("s_branch L_FFN")

def main_voff(v, rowstride, t):
    I(f"v_lshrrev_b32 v{t}, 4, v0\nv_mul_u32_u24 v{t}, {rowstride}, v{t}\nv_and_b32 v{t+1}, 15, v0\nv_lshl_add_u32 v{v}, v{t+1}, 4, v{t}")
    I(f"s_lshl_b32 s48, s3, 8\nv_add_u32 v{v}, s48, v{v}")

def extra_voff(v, rowstride, t):
    I(f"v_lshrrev_b32 v{t}, 4, v0\nv_mul_u32_u24 v{t}, {rowstride}, v{t}\nv_and_b32 v{t+1}, 15, v0\nv_lshl_add_u32 v{v}, v{t+1}, 4, v{t}")
    I(f"v_add_u32 v{v}, 1024, v{v}\nv_cmp_gt_u32 vcc, 8, v{t+1}\nv_mov_b32 v{t}, 0x7fffffff")
    I(f"v_cndmask_b32 v{v}, v{t}, v{v}, vcc")

def publish_addr(region, stride, prod_sgpr, t):
    I(f"v_and_b32 v{t}, 15, v0\ns_lshl_b32 s48, s3, 4\nv_add_u32 v{t}, s48, v{t}")
    I(f"v_mul_u32_u24 v{t}, {stride}, v{t}")
    I(f"v_lshrrev_b32 v{t+1}, 4, v0\nv_lshl_add_u32 v{t}, v{t+1}, 4, v{t}")
    I(f"s_lshl_b32 s48, s{prod_sgpr}, 5\ns_add_u32 s48, s48, {region}")
    add64(44, sWS, "s48")

def publish_main(acc, vaddr, vtag):
    I("s_mov_b32 exec_hi, 0")
    tag4(acc, vtag)
    I(f"global_store_dwordx4 v{vaddr}, {vr(acc)}, s[44:45] sc1")
    I("s_mov_b32 exec_hi, -1")

def publish_extra(acc, vaddr, vtag, stride):
    I("s_mov_b32 exec_lo, 0x00ff00ff\ns_mov_b32 exec_hi, 0")
    add64(44, 44, 64*stride)
    tag4(acc, vtag)
    I(f"global_store_dwordx4 v{vaddr}, {vr(acc)}, s[44:45] sc1")
    I("s_mov_b64 exec, -1")

def role_WO():
    WB, WX = 40, 104
    if O.align: e.raw(f".p2align {O.align}")
    e.label("L_WO")
    main_voff(1, 1152, 8)
    extra_voff(2, 1152, 8)
    I("s_lshl_b32 s48, s28, 2\ns_add_u32 s48, s48, s29\ns_sub_u32 s52, s48, 9")
    I("s_mul_i32 s48, s52, 73728")
    add64(32, sWO, "s48"); srd(32, 32, 64*1152)
    publish_addr(H3A, 2048, 52, 8)
    get_tag(12, 10)
    make_msk(16, 10)
    for d in range(4): I(f"v_mov_b32 v{4+d}, v{16+d}")
    MSK[0] = 4
    I(f"v_lshrrev_b32 v9, 4, v0\nv_lshlrev_b32 v9, 6, v9")
    if O.iwo == 99: lds_spin(F_HP, 1, 10, 11)
    else: lds_spin(F_GOE, O.nwo, 10, 11)
    stamp(5)
    l0 = L("wo0")
    I("s_cmp_eq_u32 s3, 0"); br(f"s_cbranch_scc1 {l0}")
    Y, ACC, AC2 = 32, 24, 28
    def body(extra):
        per = 2 if extra else 1
        for i in range(16):
            if i: I(f"s_mov_b32 s48, {4608*i}")
            if i >= O.wowin: I(f"s_waitcnt vmcnt({per*(O.wowin-1)})")
            I(f"buffer_load_dwordx4 {vr(WB+4*i)}, v1, s[32:35], {'s48' if i else '0'} offen {O.nt}")
            if extra: I(f"buffer_load_dwordx4 {vr(WX+4*i)}, v2, s[32:35], {'s48' if i else '0'} offen {O.nt}")
        I("s_setprio 3")
        I("s_waitcnt vmcnt(0)")
        stamp(6)
        I("s_barrier")
        stamp(7)
        e.lgq = []
        for q in range(2): e.lg(f"ds_read_b128 {vr(Y+4*q)}, v9 offset:{L_Y+16*q}", ("y", q))
        def pre(i):
            if (i & 3) == 0:
                e.lg_wait(("y", i >> 2))
        def src(i): return Y + 4*((i >> 2) & 1) + (i & 3)
        def bld(a, r):
            build_m(a, r)
            i = (a, r)
        state = {"n": 0}
        def bld2(a, r):
            build_m(a, r)
            n = state["n"]; state["n"] += 1
            if (n & 3) == 3 and (n >> 2) + 2 < 4:
                q = (n >> 2) + 2
                e.lg(f"ds_read_b128 {vr(Y+4*(q & 1))}, v9 offset:{L_Y+16*q}", ("y", q))
        gemv(16, ACC, 16, lambda i: WB + 4*i, src, pre=pre, bld=bld2,
             acc2=AC2 if extra else None, wreg2=(lambda i: WX + 4*i) if extra else None)
        publish_main(ACC, 8, 12)
        if extra: publish_extra(AC2, 8, 12, 2048)
        finish()
    body(False)
    e.label(l0)
    body(True)

def role_WO_C():
    if O.align: e.raw(f".p2align {O.align}")
    e.label("L_WO_C")
    I("s_lshl_b32 s48, s28, 2\ns_add_u32 s48, s48, s29\ns_sub_u32 s52, s48, 9")
    I("s_add_u32 s53, s52, 48")
    red_setup()
    I("s_mov_b32 s62, 0")
    if O.local:
        I(f"s_lshl_b32 s48, s28, 8\ns_add_u32 s48, s48, {HX}"); add64(36, sWS, "s48")
        lp, dn = L("xp"), L("xpd")
        I("s_mov_b64 exec, 0xffff")
        e.settle(); e.label(lp)
        I("global_load_dwordx4 v[16:19], v1, s[36:37] sc1")
        budget(dn)
        I("s_waitcnt vmcnt(0)")
        I("v_xor_b32 v8, v16, v40")
        I("v_bitop3_b32 v8, v8, v18, v40 bitop3:0xf6")
        I("v_cmp_ne_u32 vcc, 0, v8"); br(f"s_cbranch_vccnz {lp}")
        e.label(dn)
        I("s_waitcnt vmcnt(0)")
        I("v_cmp_ne_u32 vcc, s61, v17")
        I("s_cmp_eq_u64 vcc, 0\ns_cselect_b32 s62, 1, 0\ns_mov_b64 exec, -1")
    def h2bases(flag):
        I(f"s_mov_b32 s48, {H2}\ns_mov_b32 s49, {H2G}\ns_cmp_eq_u32 {flag}, 1\ns_cselect_b32 s49, s48, s49")
        I(f"s_lshl_b32 s48, s52, 12\ns_add_u32 s48, s48, s49"); add64(36, sWS, "s48")
        I(f"s_mov_b32 s48, {HML}\ns_mov_b32 s49, {HMLG}\ns_cmp_eq_u32 {flag}, 1\ns_cselect_b32 s49, s48, s49")
        I(f"s_lshl_b32 s48, s52, 8\ns_add_u32 s48, s48, s49"); add64(38, sWS, "s48")
    h2bases("s62")
    I("v_and_b32 v3, 3, v0\nv_lshlrev_b32 v3, 2, v3\nv_lshrrev_b32 v9, 4, v0\nv_add_u32 v3, v3, v9\nv_lshlrev_b32 v3, 4, v3")
    I(f"v_lshlrev_b32 v12, 2, v0")
    lds_spin(F_HP, 1, 10, 11)
    I("s_waitcnt vmcnt(0)")
    I(f"v_lshlrev_b32 v{RX}, 16, v{RX}")
    stamp(5)
    def mk(b):
        for k in range(4): I(f"global_load_dwordx4 {vr(b+4*k)}, v1, s[36:37] offset:{1024*k} sc1")
        I(f"global_load_dwordx4 {vr(b+16)}, v3, s[38:39] sc1")
    pollp(mk, 5, 20, 44, 16, 10, 15, switch=(lambda: h2bases("0")) if O.local else None, tries=48)
    stamp(6)
    I("v_max_f32_dpp v36, v32, v32 quad_perm:[1,0,3,2] row_mask:0xf bank_mask:0xf")
    I("v_max_f32_dpp v36, v36, v36 quad_perm:[2,3,0,1] row_mask:0xf bank_mask:0xf")
    cross_allreduce("max", [36], [37])
    I(f"v_sub_f32 v32, v32, v36\nv_mul_f32 v32, {LOG2E:#x}, v32\nv_exp_f32 v32, v32")
    I("v_mul_f32 v33, v33, v32")
    for r in range(4): I(f"v_mul_f32_dpp v{16+r}, v32, v{16+r} quad_perm:[0,0,0,0] row_mask:0xf bank_mask:0xf")
    I("v_add_f32_dpp v33, v33, v33 quad_perm:[1,0,3,2] row_mask:0xf bank_mask:0xf")
    for r in range(4): I(f"v_fmac_f32_dpp v{16+r}, v32, v{20+r} quad_perm:[1,1,1,1] row_mask:0xf bank_mask:0xf")
    I("v_add_f32_dpp v33, v33, v33 quad_perm:[2,3,0,1] row_mask:0xf bank_mask:0xf")
    for r in range(4): I(f"v_fmac_f32_dpp v{16+r}, v32, v{24+r} quad_perm:[2,2,2,2] row_mask:0xf bank_mask:0xf")
    I("v_mov_b32 v37, v33")
    for r in range(4): I(f"v_fmac_f32_dpp v{16+r}, v32, v{28+r} quad_perm:[3,3,3,3] row_mask:0xf bank_mask:0xf")
    I("v_permlane16_swap_b32 v33, v37")
    I("v_add_f32 v33, v33, v37")
    I("v_permlane32_swap_b32 v16, v18\nv_permlane32_swap_b32 v17, v19")
    I("v_mov_b32 v37, v33")
    pk("add", 16, 16, 18)
    I("v_permlane32_swap_b32 v33, v37")
    I("v_permlane16_swap_b32 v16, v17")
    I("v_add_f32 v33, v33, v37")
    I("v_add_f32 v16, v16, v17")
    I("v_rcp_f32 v33, v33")
    I("v_mul_f32 v16, v16, v33")
    I("v_cvt_pk_bf16_f32 v16, v16, v16")
    I(f"ds_write_b32 v12, v16 offset:{L_Y}")
    I("s_waitcnt lgkmcnt(0)")
    I("s_barrier")
    stamp(7)
    I("s_cmp_lt_u32 s53, 72"); br("s_cbranch_scc1 L_RED_main")
    finish()

RX, RA, RH, RT = 120, 121, 122, 123
def red_setup():
    I(f"s_min_u32 s50, s53, 71")
    I(f"v_lshrrev_b32 v8, 4, v0\nv_and_b32 v9, 1, v0\nv_lshl_add_u32 v9, v9, 2, v8\nv_lshlrev_b32 v9, 1, v9\ns_lshl_b32 s48, s50, 4\nv_add_u32 v{RA}, s48, v9")
    I(f"global_load_ushort v{RX}, v{RA}, {sp(sX)}")
    I(f"s_lshl_b32 s48, s50, 11\ns_add_u32 s48, s48, {H3A}"); add64(40, sWS, "s48")
    I(f"s_mul_i32 s48, s50, 4608\ns_add_u32 s48, s48, {H4}"); add64(42, sWS, "s48")
    add64(44, 42, 4096)
    I("v_lshlrev_b32 v1, 4, v0")
    I(f"v_lshrrev_b32 v8, 1, v0\nv_mul_u32_u24 v8, 2304, v8\nv_and_b32 v9, 1, v0\nv_lshl_add_u32 v{RH}, v9, 4, v8")
    I(f"s_lshl_b32 s48, s50, 5\ns_add_u32 s48, s48, {H3B}"); add64(46, sWS, "s48")
    get_tag(RT, 8)
    for r in range(4): I(f"v_mov_b32 v{96+r}, v{RT}")

def role_RED():
    e.comment("===== column reducers: 8 columns per wave; blocks 0..47 on the reducer workgroups, 48..71 on wave C of output projections")
    if O.align: e.raw(f".p2align {O.align}")
    e.label("L_RED")
    I("s_cmp_ge_u32 s3, 1"); br("s_cbranch_scc1 L_RED_done")
    I("s_mul_i32 s53, s28, 3\ns_add_u32 s53, s53, s29\ns_sub_u32 s53, s53, 13")
    red_setup()
    lds_spin(F_HP, 1, 12, 13)
    I("s_waitcnt vmcnt(0)"); e.vmq = []
    I(f"v_lshlrev_b32 v{RX}, 16, v{RX}")
    I("s_setprio 3")
    if O.rsl1:
        for k in range(0, O.rsl1, 15): I(f"s_sleep {min(15, O.rsl1-k)}")
    e.settle()
    e.label("L_RED_main")
    stamp(8)
    def mk(b):
        for k in range(2): I(f"global_load_dwordx4 {vr(b+4*k)}, v1, s[40:41] offset:{1024*k} sc1")
    pollp(mk, 2, 8, 60, 16, 12, RT)
    stamp(9)
    pk("add", 16, 16, 20); pk("add", 18, 18, 22)
    rscatter4(16)
    rows_allreduce("add", [16], (2, 4, 8))
    rne1(16, 12)
    I(f"v_add_f32 v{RX}, v{RX}, v16")
    rne1(RX, 12)
    gather_rows(RX, 20)
    if O.nrep == 16: I("s_mov_b32 exec_hi, 0")
    tag4(20, RT)
    I(f"global_store_dwordx4 v{RH}, v[20:23], s[46:47] sc1")
    if O.nrep == 16: I("s_mov_b32 exec_hi, -1")
    stamp(10)
    if O.rsl2:
        for k in range(0, O.rsl2, 15): I(f"s_sleep {min(15, O.rsl2-k)}")
    def mk4(b):
        for k in range(4): I(f"global_load_dwordx4 {vr(b+4*k)}, v1, s[42:43] offset:{1024*k} sc1")
        I("s_mov_b32 exec_hi, 0")
        I(f"global_load_dwordx4 {vr(b+16)}, v1, s[44:45] sc1")
        I("s_mov_b32 exec_hi, -1")
    pollp(mk4, 5, 20, 80, 16, 12, RT)
    stamp(7)
    pk("add", 16, 16, 20); pk("add", 18, 18, 22); pk("add", 24, 24, 28); pk("add", 26, 26, 30)
    pk("add", 16, 16, 32); pk("add", 18, 18, 34)
    pk("add", 16, 16, 24); pk("add", 18, 18, 26)
    rscatter4(16)
    rows_allreduce("add", [16], (2, 4, 8))
    rne1(16, 12)
    I(f"v_add_f32 v{RX}, v{RX}, v16")
    if O.x_pert: I(f"v_add_f32 v{RX}, {O.x_pert}, v{RX}")
    I(f"v_cvt_pk_bf16_f32 v{RX}, v{RX}, v{RX}")
    I("s_mov_b32 exec_lo, 0x00030003\ns_mov_b32 exec_hi, 0x00030003")
    I(f"global_store_short v{RA}, v{RX}, {sp(sOUT)}")
    le = L("noep")
    I("s_cmp_eq_u32 s53, 0"); e.branch(f"s_cbranch_scc0 {le}")
    I(f"v_mov_b32 v12, {L_TAG}\nds_read_b32 v13, v12\nv_mov_b32 v14, 0")
    add64(32, sWS, EPOCH)
    I("s_mov_b64 exec, 1\ns_waitcnt lgkmcnt(0)")
    I("global_store_dword v14, v13, s[32:33]")
    e.label(le)
    I("s_mov_b64 exec, -1")
    e.label("L_RED_done")
    if O.pad:
        lp = L("pad")
        e.label(lp)
        I("s_memrealtime s[92:93]\ns_waitcnt lgkmcnt(0)\ns_sub_u32 s92, s92, s90")
        I(f"s_cmp_lt_u32 s92, {O.pad}"); br(f"s_cbranch_scc1 {lp}")
    finish()

def ffn_ids():
    I("s_lshr_b32 s48, s28, 1\ns_mul_i32 s48, s48, 9\ns_add_u32 s48, s48, s29\ns_lshl_b32 s48, s48, 6")
    I("s_and_b32 s49, s28, 1\ns_lshl_b32 s49, s49, 5\ns_add_u32 s52, s48, s49")

def role_FFN():
    GB, DB, DX = 88, 124, 56
    if O.align: e.raw(f".p2align {O.align}")
    e.label("L_FFN")
    if O.x_fdelay:
        lp = L("fd")
        I("s_memrealtime s[92:93]\ns_waitcnt lgkmcnt(0)\ns_mov_b32 s94, s92")
        e.label(lp)
        I("s_memrealtime s[92:93]\ns_waitcnt lgkmcnt(0)\ns_sub_u32 s92, s92, s94")
        I(f"s_cmp_lt_u32 s92, {O.x_fdelay}"); br(f"s_cbranch_scc1 {lp}")
    stamp(7)
    ffn_ids()
    ld, lj = L("nodown"), L("ffj")
    I("v_lshrrev_b32 v16, 4, v0\nv_bfe_u32 v9, v0, 3, 1\nv_lshl_add_u32 v8, v16, 3, v9")
    I("s_mul_i32 s48, s3, 72\nv_add_u32 v8, s48, v8\nv_mul_u32_u24 v8, 9216, v8")
    I("v_and_b32 v9, 3, v0\nv_lshlrev_b32 v9, 4, v9\ns_lshl_b32 s48, s52, 1\nv_add3_u32 v8, v8, v9, s48")
    I("v_bfe_u32 v9, v0, 2, 1\nv_cmp_eq_u32 vcc, 1, v9")
    I(f"v_mov_b32 v10, s{sWG}\nv_mov_b32 v11, s{sWU}\nv_cndmask_b32 v10, v10, v11, vcc")
    I(f"v_mov_b32 v11, s{sWG+1}\nv_mov_b32 v12, s{sWU+1}\nv_cndmask_b32 v11, v11, v12, vcc")
    I("v_add_co_u32 v10, vcc, v10, v8\nv_addc_co_u32 v11, vcc, 0, v11, vcc")
    I(f"s_mov_b32 s48, {2*9216}\ns_mov_b32 s49, 0\ns_mov_b32 s50, {26*9216}\ns_mov_b32 s51, 0")
    I(f"v_mul_u32_u24 v18, {6*9216}, v16\nv_sub_u32 v18, {26*9216}, v18\nv_mov_b32 v19, 0")
    for k in range(9):
        if O.gearly and k == O.gearly:
            lds_spin(F_GO if O.fgate else F_HP, 1, 20, 21)
            I("s_mov_b32 s51, 0")
        if not O.x_noffn: I(f"global_load_dwordx4 {vr(GB+4*k)}, v[10:11], off {O.ntg}")
        if k < 7: I(f"v_lshl_add_u64 v[10:11], v[10:11], 0, {'s[50:51]' if k == 3 else 's[48:49]'}")
        if k == 7: I("v_lshl_add_u64 v[10:11], v[18:19], 0, v[10:11]")
    I(f"s_mul_i32 s48, s3, 144\ns_add_u32 s48, s48, {L_XLN2}\nv_lshlrev_b32 v8, 4, v16\nv_add_u32 v13, s48, v8")
    I("v_lshlrev_b32 v8, 2, v16\nv_add_u32 v14, s48, v8")
    I(f"v_and_b32 v8, 7, v0\nv_lshlrev_b32 v8, 5, v8\nv_bfe_u32 v9, v0, 4, 1\nv_lshl_add_u32 v8, v9, 4, v8")
    I(f"v_lshrrev_b32 v9, 5, v0\nv_lshl_add_u32 v8, v9, 8, v8\ns_lshl_b32 s48, s3, 9\ns_add_u32 s48, s48, {L_GUP}\nv_add_u32 v15, s48, v8")
    I("s_cmp_ge_u32 s3, 4"); br(f"s_cbranch_scc1 {ld}")
    main_voff(1, 1152, 8)
    extra_voff(2, 1152, 8)
    I("s_mul_i32 s48, s52, 1152"); add64(32, sWD, "s48"); srd(32, 32, 32*1152)
    if O.dwait < 9: I(f"s_waitcnt vmcnt({O.dwait})")
    lx = L("dnx")
    I("s_cmp_eq_u32 s3, 0"); br(f"s_cbranch_scc0 {lx}")
    for i in range(8):
        if i: I(f"s_mov_b32 s48, {4608*i}")
        if not O.x_noffn: I(f"buffer_load_dwordx4 {vr(DX+4*i)}, v2, s[32:35], {'s48' if i else '0'} offen {O.nt}")
    e.label(lx)
    for i in range(8):
        if i: I(f"s_mov_b32 s48, {4608*i}")
        if not O.x_noffn: I(f"buffer_load_dwordx4 {vr(DB+4*i)}, v1, s[32:35], {'s48' if i else '0'} offen {O.nt}")
    I("s_mul_i32 s47, s28, 9\ns_add_u32 s47, s47, s29")
    publish_addr(H4, 4608, 47, 40)
    get_tag(42, 8)
    make_msk(156, 8)
    I(f"v_lshrrev_b32 v8, 4, v0\nv_lshlrev_b32 v8, 10, v8\nv_and_b32 v9, 15, v0\nv_lshl_add_u32 v43, v9, 4, v8")
    I("s_mov_b32 s47, 0xffff")
    lw = L("w12")
    def landing(behind):
        if O.fold == 1:
            I("v_mov_b32 v24, 0x3f803f80")
            build_a(32, 24)
        for k in range(9):
            if O.fold == 1 or k == 8 or (O.gpoll and k == O.gpoll - 1): I(f"s_waitcnt vmcnt({behind + 8 - k})")
            if O.fold == 1: mfma(28, 32, GB + 4*k, first=(k == 0))
            if O.gpoll and k == O.gpoll - 1: lds_inc(CNT_GL, 8, 9)
        if O.fold == 1:
            I("s_mov_b32 exec_lo, 0x00ff00ff\ns_mov_b32 exec_hi, 0xff00ff00")
            I(f"ds_write_b128 v15, {vr(28)} offset:{L_CSP - L_GUP}")
            I("s_mov_b64 exec, -1")
            I("s_waitcnt lgkmcnt(0)")
    I("s_cmp_eq_u32 s3, 0"); br(f"s_cbranch_scc1 {lw}")
    landing(8)
    e.branch(f"s_branch {lj}")
    e.label(lw)
    landing(16)
    e.branch(f"s_branch {lj}")
    e.label(ld)
    I(f"s_mov_b64 s[44:45], {sp(sWS)}\nv_mov_b32 v40, 0")
    landing(0)
    e.settle()
    e.label(lj)
    I("s_setprio 3")
    stamp(8)
    I("s_barrier")
    if O.diag3: stamp(1)
    e.vmq = []; e.lgq = []
    for H in range(2): e.lg(f"ds_read_b128 {vr(16+4*H)}, v13 offset:{64*H}", ("pk", H))
    e.lg(f"ds_read_b32 v24, v14 offset:128", ("pk", 2))
    ACC = 28
    if O.diag3: I("s_waitcnt lgkmcnt(0)"); stamp(2)
    gemv(1 if O.x_nogu else 9, ACC, 32, lambda k: GB + 4*k, lambda k: 16 + k, pre=lambda k: e.lg_wait(("pk", k >> 2)) if (k & 3) == 0 else None)
    if O.diag3: stamp(3)
    I("s_mov_b32 exec_lo, 0x00ff00ff\ns_mov_b32 exec_hi, 0xff00ff00")
    I(f"ds_write_b128 v15, {vr(ACC)}")
    I("s_mov_b64 exec, -1")
    I("s_waitcnt lgkmcnt(0)")
    if O.diag3: stamp(4)
    I("s_barrier")
    I("s_cmp_ge_u32 s3, 4"); br("s_cbranch_scc1 L_FFN_done")
    stamp(9)
    e.lgq = []
    if O.fold == 1:
        I("v_lshlrev_b32 v8, 3, v0")
        e.lg(f"ds_read_b64 v[44:45], v8 offset:{L_CB}", ("gp", -1))
    if O.fold == 2:
        I(f"v_mov_b32 v8, {L_CB}")
        e.lg("ds_read_b32 v45, v8", ("gp", -1))
    for k in range(4): e.lg(f"ds_read_b128 {vr(12+4*k)}, v43 offset:{L_GUP+256*k}", ("gp", k))
    e.lg_wait(("gp", 1))
    pk("add", 12, 12, 16); pk("add", 14, 14, 18)
    e.lg_wait(("gp", 3))
    pk("add", 20, 20, 24); pk("add", 22, 22, 26)
    pk("add", 12, 12, 20); pk("add", 14, 14, 22)
    rscatter4(12)
    if O.fold == 1: I("v_fma_f32 v12, v12, v45, v44")
    if O.fold == 2: I("v_mul_f32 v12, v12, v45")
    rne1(12, 13)
    I("v_mul_f32 v14, v12, v12")
    I("v_mov_b32 v15, 0x3d372713")
    I("v_mov_b32_dpp v13, v12 row_ror:8 row_mask:0xf bank_mask:0xf")
    I("v_fma_f32 v14, v14, v15, 1.0")
    I("v_mul_f32 v14, v14, v12")
    I("v_mul_f32 v14, 0xc0135761, v14")
    I("v_exp_f32 v14, v14")
    I("v_add_f32 v14, 1.0, v14")
    I("v_rcp_f32 v14, v14")
    I("v_mul_f32 v12, v12, v14")
    rne1(12, 14)
    I("v_mul_f32 v12, v12, v13")
    I("v_cvt_pk_bf16_f32 v16, v12, v12")
    I("s_waitcnt vmcnt(0)")
    stamp(10)
    ACC2, AC3 = 28, 48
    MSK[0] = 156
    l0 = L("dn0")
    bc = lambda i: I(f"v_mov_b32_dpp v{18+(i&1)}, v16 row_newbcast:{i} row_mask:0xf bank_mask:0xf")
    I("s_cmp_eq_u32 s3, 0"); br(f"s_cbranch_scc1 {l0}")
    gemv(8, ACC2, 20, lambda i: DB + 4*i, lambda i: 18 + (i & 1), pre=bc, bld=build_m)
    publish_main(ACC2, 40, 42)
    finish()
    e.label(l0)
    gemv(8, ACC2, 20, lambda i: DB + 4*i, lambda i: 18 + (i & 1), pre=bc, bld=build_m, acc2=AC3, wreg2=lambda i: DX + 4*i)
    publish_main(ACC2, 40, 42)
    publish_extra(AC3, 40, 42, 4608)
    finish()
    e.label("L_FFN_done")
    finish()

def role_FFN_C():
    if O.align: e.raw(f".p2align {O.align}")
    e.label("L_FFN_C")
    I("s_mul_i32 s47, s28, 9\ns_add_u32 s47, s47, s29")
    I(f"s_and_b32 s48, s47, {O.nrep-1}\ns_mul_i32 s48, s48, 2304\ns_add_u32 s48, s48, {H3B}")
    add64(36, sWS, "s48")
    for r in range(4): I(f"v_mov_b32 v{68+r}, v15")
    I(f"v_lshlrev_b32 v2, 3, v0")
    lds_spin(F_HP, 1, 8, 9)
    if O.fgate:
        I(f"s_lshl_b32 s48, s28, 10\ns_add_u32 s48, s48, {HMLG}"); add64(38, sWS, "s48")
        lp, dn = L("gp"), L("gpd")
        I("s_mov_b64 exec, 0xffff")
        e.settle(); e.label(lp)
        I("global_load_dwordx4 v[16:19], v1, s[38:39] sc1")
        budget(dn)
        I("s_waitcnt vmcnt(0)")
        check_set(16, 20, 4, 8, 15)
        br(f"s_cbranch_vccnz {lp}")
        e.label(dn)
        I("s_mov_b64 exec, -1")
        lds_set(F_GO, 1, 8, 9)
    if O.gpoll: lds_spin(CNT_GL, 8, 8, 9)
    stamp(5)
    def mk(b):
        I(f"global_load_dwordx4 {vr(b)}, v1, s[36:37] sc1")
        I(f"global_load_dwordx4 {vr(b+4)}, v1, s[36:37] offset:1024 sc1")
        I("s_mov_b64 exec, 0xffff")
        I(f"global_load_dwordx4 {vr(b+8)}, v1, s[36:37] offset:2048 sc1")
        I("s_mov_b64 exec, -1")
    pollp(mk, 3, 12, 60, 16, 8, 15)
    stamp(6)
    if O.fold == 1 or O.x_noln2:
        for k in range(6): I(f"v_cvt_pk_bf16_f32 v{52+k}, v{16+2*k}, v{17+2*k}")
    elif O.fold == 2:
        pk("add", 32, 16, 18); pk("add", 34, 20, 22); pk("add", 36, 24, 26)
        pk("add", 32, 32, 34); pk("add", 32, 32, 36)
        I("v_add_f32 v32, v32, v33")
        allreduce("add", [32], [33])
        I("v_mul_f32 v32, 0x3ae38e39, v32")
        I("v_cvt_pk_bf16_f32 v33, v32, v32")
        I("v_and_b32 v34, 0xffff0000, v33\nv_and_b32 v35, 0xffff0000, v33")
        for k in range(6): I(f"v_pk_add_f32 v[{40+2*k}:{41+2*k}], v[{16+2*k}:{17+2*k}], v[34:35] neg_lo:[0,1] neg_hi:[0,1]")
        for k in range(6): I(f"v_cvt_pk_bf16_f32 v{52+k}, v{40+2*k}, v{41+2*k}")
    else: layernorm(list(range(16, 28)), 8, "0xffff", 32, 52)
    I(f"ds_write_b64 v2, v[52:53] offset:{L_XLN2}\nds_write_b64 v2, v[54:55] offset:{L_XLN2+512}")
    I("s_mov_b64 exec, 0xffff")
    I(f"ds_write_b64 v2, v[56:57] offset:{L_XLN2+1024}")
    I("s_mov_b64 exec, -1")
    I("s_waitcnt lgkmcnt(0)")
    I("s_barrier")
    stamp(7)
    if O.fold == 2:
        if O.cprio != 3: I(f"s_setprio {O.cprio}")
        I("v_mov_b32 v33, v32")
        for k in range(4): I(f"v_pk_add_f32 v[{40+2*k}:{41+2*k}], v[{16+2*k}:{17+2*k}], v[32:33] neg_lo:[0,1] neg_hi:[0,1]")
        for k in range(48, 52): I(f"v_mov_b32 v{k}, 0")
        I("s_mov_b64 exec, 0xffff")
        for k in range(4, 6): I(f"v_pk_add_f32 v[{40+2*k}:{41+2*k}], v[{16+2*k}:{17+2*k}], v[32:33] neg_lo:[0,1] neg_hi:[0,1]")
        I("s_mov_b64 exec, -1")
        pk("mul", 34, 40, 40)
        for k in range(1, 6): I(f"v_pk_fma_f32 v[34:35], v[{40+2*k}:{41+2*k}], v[{40+2*k}:{41+2*k}], v[34:35]")
        I("v_add_f32 v34, v34, v35")
        allreduce("add", [34], [35])
        I("v_mul_f32 v34, 0x3ae38e39, v34")
        rne1(34, 35)
        I("v_add_f32 v34, 0x3727c5ac, v34")
        rne1(34, 35)
        I("v_sqrt_f32 v34, v34")
        rne1(34, 35)
        I("v_rcp_f32 v34, v34")
        I(f"v_mov_b32 v8, {L_CB}\ns_mov_b64 exec, 1")
        I("ds_write_b32 v8, v34")
        I("s_mov_b64 exec, -1\ns_waitcnt lgkmcnt(0)")
    if O.fold == 1:
        I("v_lshrrev_b32 v8, 4, v0\nv_lshlrev_b32 v8, 10, v8\nv_and_b32 v9, 15, v0\nv_lshl_add_u32 v8, v9, 4, v8")
        for k in range(4): I(f"ds_read_b128 {vr(60+4*k)}, v8 offset:{L_CSP+256*k}")
        ln_stats(list(range(16, 28)), 8, "0xffff", 32)
        I("s_waitcnt lgkmcnt(0)")
        pk("add", 60, 60, 64); pk("add", 62, 62, 66); pk("add", 68, 68, 72); pk("add", 70, 70, 74)
        pk("add", 60, 60, 68); pk("add", 62, 62, 70)
        rscatter4(60)
        I("v_mul_f32 v61, v36, v38")
        I("v_mul_f32 v60, v60, v61")
        I("v_sub_f32 v60, 0, v60\nv_mov_b32 v61, v38")
        I(f"ds_write_b64 v2, v[60:61] offset:{L_CB}")
        I("s_waitcnt lgkmcnt(0)")
    I("s_barrier")
    finish()

def build():
    global LDS_BYTES
    LDS_BYTES = L_CSP + (16*256 if O.fold == 1 else 0)
    prologue()
    role_T0_head()
    role_A()
    role_C()
    role_T()
    role_WO()
    role_WO_C()
    role_RED()
    role_FFN_C()
    role_FFN()
    e.label("L_end")
    I("s_endpgm")
    e.raw("L_code_end:")
    head = []
    ref = open("sequential_preLN__sliding_block_cached__geglu_ffn__decode.s.ref").read().split("\n")
    for l in ref:
        if l.startswith("; @launch"): break
        if l.startswith("; Override") or l.startswith("; grid="): continue
        head.append(l)
    head.append(f"; @launch grid=(256,1,1) block=(576,1,1) lds={LDS_BYTES}")
    head.append('.amdgcn_target "amdgcn-amd-amdhsa--gfx950"')
    head.append(".text")
    head.append(f".set CODE_BYTES, L_code_end-{NAME}")
    head.append(".set PF_MASK, 15")
    tail = f""".section .rodata,"a"
.p2align 6
.amdhsa_kernel {NAME}
  .amdhsa_next_free_vgpr 168
  .amdhsa_next_free_sgpr 96
  .amdhsa_accum_offset 168
  .amdhsa_group_segment_fixed_size 0
  .amdhsa_kernarg_size 96
  .amdhsa_user_sgpr_count 2
  .amdhsa_user_sgpr_kernarg_segment_ptr 1
  .amdhsa_system_sgpr_workgroup_id_x 1
  .amdhsa_float_denorm_mode_32 3
.end_amdhsa_kernel
"""
    return "\n".join(head) + "\n" + e.text() + tail

if __name__ == "__main__":
    out = sys.argv[1]
    for a in sys.argv[2:]:
        k, v = a.split("=")
        cur = getattr(O, k)
        setattr(O, k, (v == "1") if isinstance(cur, bool) else (int(v) if isinstance(cur, int) else v))
    txt = build()
    open(out, "w").write(txt)
    print(f"wrote {out}: {len(txt)} bytes, nops {e.nnop}, lds {LDS_BYTES}")
```
